```python
import torch

def _softmax(x, axis=-1):
    return torch.softmax(x, dim=axis)
def _gelu(x):
    return torch.nn.functional.gelu(x, approximate="tanh")
def _silu(x):
    return torch.nn.functional.silu(x)
def _sigmoid(x):
    return torch.sigmoid(x)
def _layernorm(x, axis=-1, eps=1e-5):
    m = x.mean(dim=axis, keepdim=True)
    v = x.var(dim=axis, keepdim=True, unbiased=False)
    return (x - m) / torch.sqrt(v + eps)
def _scatter_add(tgt, idx, src, axis=0):
    return tgt.clone().index_add_(axis, idx, src)
def _segment_sum(src, seg, n):
    out = torch.zeros((n,) + src.shape[1:], dtype=src.dtype)
    return out.index_add_(0, seg, src)
def _pad(x, pw):
    flat = tuple(v for pair in reversed(pw) for v in pair)
    return torch.nn.functional.pad(x, flat)

kernel_name = 'gated_mix__mha_block__linear_kernel_hedgehog__prompt'

def setup_inputs():

    _w = (lambda a: (lambda t: t.to(torch.bfloat16) if t.is_floating_point() else t)(torch.as_tensor(a)))
    def _A_setup():
        B, S, D, H = 1, 2048, 640, 32
        return {
            "x": _w((lambda *s: torch.randn(*s, dtype=torch.bfloat16) * 0.05)(B, S, D)),
            "wqkv": _w((lambda *s: torch.randn(*s, dtype=torch.bfloat16) * 0.8)(D, 3 * D)),
            "wo": _w((lambda *s: torch.randn(*s, dtype=torch.bfloat16) * 0.05)(D, D)),
        }
    _A_in = _A_setup()

    def _B_setup():
        B, S, D, H = 1, 2048, 640, 32
        Dh = D // H
        return {
            "x": _w((lambda *s: torch.randn(*s, dtype=torch.bfloat16) * 0.05)(B, S, D)),
            "wqkv": _w((lambda *s: torch.randn(*s, dtype=torch.bfloat16) * 1.6)(D, 3 * D)),
            "w_phi": _w((lambda *s: torch.randn(*s, dtype=torch.bfloat16) * 1.6)(H, Dh, Dh) * (Dh ** -0.5)),
            "wo": _w((lambda *s: torch.randn(*s, dtype=torch.bfloat16) * 0.05)(D, D)),
        }
    _B_in = _B_setup()

    return {
        "A_x": _A_in["x"],
        "A_wqkv": _A_in["wqkv"],
        "A_wo": _A_in["wo"],
        "B_x": _B_in["x"],
        "B_wqkv": _B_in["wqkv"],
        "B_w_phi": _B_in["w_phi"],
        "B_wo": _B_in["wo"],
        "gate_w": _w((lambda *s: torch.randn(*s, dtype=torch.bfloat16) * 0.05)(640) * 16.0),
    }

def reference(A_x, A_wqkv, A_wo, B_x, B_wqkv, B_w_phi, B_wo, gate_w):
    def _A_ref(x, wqkv, wo):
        B, S, D = x.shape
        H = 32
        Dh = D // H
        qkv = (lambda x, *d: x.permute(*d))((x @ wqkv).reshape(B, S, 3, H, Dh), 2, 0, 3, 1, 4)
        q, k, v = qkv[0], qkv[1], qkv[2]
        scores = torch.einsum("bhqd,bhkd->bhqk", q, k) * (Dh ** -0.5)
        p = _softmax(scores, axis=-1)
        o = torch.einsum("bhqk,bhkd->bhqd", p, v)
        return (lambda x, *d: x.permute(*d))(o, 0, 2, 1, 3).reshape(B, S, D) @ wo

    def _B_ref(x, wqkv, w_phi, wo):
        B, S, D = x.shape
        H = 32; Dh = D // H
        qkv = (lambda x, *d: x.permute(*d))((x @ wqkv).reshape(B, S, 3, H, Dh), 2, 0, 3, 1, 4)
        q, k, v = qkv[0], qkv[1], qkv[2]
        pq = torch.einsum("bhsd,hdf->bhsf", q, w_phi)
        pk = torch.einsum("bhsd,hdf->bhsf", k, w_phi)
        phi_q = torch.concatenate([_softmax(pq, axis=-1), _softmax(-pq, axis=-1)], axis=-1)
        phi_k = torch.concatenate([_softmax(pk, axis=-1), _softmax(-pk, axis=-1)], axis=-1)
        kv = torch.einsum("bhsf,bhsd->bhfd", phi_k, v)
        z  = torch.einsum("bhsf->bhf", phi_k)
        num = torch.einsum("bhqf,bhfd->bhqd", phi_q, kv)
        den = torch.einsum("bhqf,bhf->bhq", phi_q, z)[..., None] + 1e-6
        o = num / den
        return (lambda x, *d: x.permute(*d))(o, 0, 2, 1, 3).reshape(B, S, D) @ wo

    x = A_x
    g = _sigmoid((x * gate_w).sum(-1, keepdims=True))
    a = _A_ref(x, A_wqkv, A_wo)
    b = _B_ref(x, B_wqkv, B_w_phi, B_wo)
    return g * a + (1 - g) * b
```

```python
class Asm:
    def __init__(self):
        self.lines = []
        self.nlabel = 0
    def __call__(self, s):
        for ln in s.strip("\n").split("\n"):
            self.lines.append("    " + ln.strip() if not ln.strip().endswith(":") else ln.strip())
    def raw(self, s):
        self.lines.append(s)
    def label(self, name):
        self.lines.append(name + ":")
    def newlabel(self, base):
        self.nlabel += 1
        return f"L_{base}_{self.nlabel}"
    def text(self):
        return "\n".join(self.lines) + "\n"

def vr(b, n=1):
    return f"v{b}" if n == 1 else f"v[{b}:{b+n-1}]"
def sr(b, n=1):
    return f"s{b}" if n == 1 else f"s[{b}:{b+n-1}]"

def srd(a, d, base, nbytes):
    a(f"""s_mov_b32 s{d}, s{base}
s_mov_b32 s{d+1}, s{base+1}
s_mov_b32 s{d+2}, {hex(nbytes)}
s_mov_b32 s{d+3}, 0x20000""")

def kernel_begin(a, name):
    a.raw(f".globl {name}\n.p2align 8\n.type {name},@function\n{name}:")

def kernel_desc(name, vgpr, sgpr=102):
    acc = (vgpr + 3) // 4 * 4
    return f""".p2align 6
.amdhsa_kernel {name}
  .amdhsa_next_free_vgpr {vgpr}
  .amdhsa_next_free_sgpr {sgpr}
  .amdhsa_accum_offset {acc}
  .amdhsa_group_segment_fixed_size 0
  .amdhsa_kernarg_size 88
  .amdhsa_user_sgpr_count 2
  .amdhsa_user_sgpr_kernarg_segment_ptr 1
  .amdhsa_system_sgpr_workgroup_id_x 1
  .amdhsa_float_denorm_mode_32 3
  .amdhsa_float_denorm_mode_16_64 3
.end_amdhsa_kernel
"""
```

```python
from asmlib import *
from layout import *

NS = 4
K1_LDS = NS * 32768
K1_VGPR = 168

def gen_k1(a, name):
    kernel_begin(a, name)
    S_MT, S_NT, S_W, S_TT, S_FH = 30, 31, 32, 33, 34
    a(f"""
s_cmp_ge_u32 s2, 256
s_cbranch_scc1 L_k1_end
s_load_dwordx4 s[4:7], s[0:1], 0
s_load_dwordx2 s[20:21], s[0:1], 80
s_load_dwordx4 s[24:27], s[0:1], 32
s_load_dwordx2 s[28:29], s[0:1], 56
s_and_b32 s36, s2, 7
s_lshr_b32 s37, s2, 3
s_and_b32 s{S_MT}, s36, 1
s_lshl_b32 s{S_MT}, s{S_MT}, 3
s_and_b32 s38, s37, 7
s_add_u32 s{S_MT}, s{S_MT}, s38
s_lshr_b32 s{S_NT}, s36, 1
s_lshl_b32 s{S_NT}, s{S_NT}, 2
s_lshr_b32 s38, s37, 3
s_add_u32 s{S_NT}, s{S_NT}, s38
v_lshrrev_b32 v1, 6, v0
v_and_b32 v2, 63, v0
v_readfirstlane_b32 s{S_W}, v1
s_and_b32 s{S_TT}, s{S_W}, 3
s_lshr_b32 s{S_FH}, s{S_W}, 2
s_waitcnt lgkmcnt(0)
""")
    srd(a, 8, 4, X_BYTES); srd(a, 12, 6, WQKV_BYTES); srd(a, 16, 20, WS_BYTES)
    srd(a, 40, 24, WQKV_BYTES); srd(a, 44, 26, WPHI_BYTES); srd(a, 48, 28, GATEW_BYTES)
    a(f"""
s_cmp_eq_u32 s{S_NT}, 15
s_cbranch_scc1 L_k1_prep
""")
    VL = 2
    XG0, XG1, WG = 3, 4, 5
    XA = 8
    WA = 16
    EA = 20
    XE = 28
    XF = 32
    WF = 40
    ACC = 64
    S_XO, S_WO, S_WO2, S_LB, S_EXO = 52, 53, 54, 55, 56
    a(f"""
v_lshrrev_b32 v6, 3, v{VL}
s_lshl_b32 s36, s{S_MT}, 7
s_lshl_b32 s37, s{S_W}, 4
s_add_u32 s36, s36, s37
v_add_u32 v6, s36, v6
v_mul_u32_u24 v6, 1280, v6
v_lshrrev_b32 v7, 4, v{VL}
v_and_b32 v29, 7, v{VL}
v_xor_b32 v29, v29, v7
v_lshlrev_b32 v30, 4, v29
v_add_u32 v{XG0}, v6, v30
v_xor_b32 v30, 64, v30
v_add_u32 v{XG1}, v6, v30
v_add_u32 v{XG1}, {8*1280}, v{XG1}
s_lshl_b32 s36, s{S_W}, 3
v_add_u32 v6, s36, v7
v_mul_u32_u24 v6, 3840, v6
v_and_b32 v29, 15, v{VL}
v_lshlrev_b32 v30, 2, v7
v_xor_b32 v29, v29, v30
v_lshlrev_b32 v29, 4, v29
v_add_u32 v6, v6, v29
s_lshl_b32 s36, s{S_NT}, 8
v_add_u32 v{WG}, s36, v6
s_lshl_b32 s{S_LB}, s{S_W}, 11
""")
    def dma(st):
        slot = st % NS
        a(f"""
s_mov_b32 s{S_XO}, {st*128}
s_mov_b32 s{S_WO}, {st*64*3840}
s_mov_b32 s{S_WO2}, {st*64*3840 + 4*3840}
s_add_u32 m0, s{S_LB}, {slot*32768}
s_nop 0
buffer_load_dwordx4 v{XG0}, s[8:11], s{S_XO} offen lds
s_add_u32 m0, s{S_LB}, {slot*32768 + 1024}
s_nop 0
buffer_load_dwordx4 v{XG1}, s[8:11], s{S_XO} offen lds
s_add_u32 m0, s{S_LB}, {slot*32768 + 16384}
s_nop 0
buffer_load_dwordx4 v{WG}, s[12:15], s{S_WO} offen lds
s_add_u32 m0, s{S_LB}, {slot*32768 + 16384 + 1024}
s_nop 0
buffer_load_dwordx4 v{WG}, s[12:15], s{S_WO2} offen lds
""")
    for st in range(NS - 1):
        dma(st)
    a(f"""
v_and_b32 v29, 31, v{VL}
v_lshrrev_b32 v30, 5, v{VL}
s_lshl_b32 s36, s{S_TT}, 12
v_lshlrev_b32 v6, 7, v29
v_add_u32 v6, s36, v6
v_bfe_u32 v7, v29, 1, 3
v_xor_b32 v7, v7, v30
""")
    for ks in range(4):
        a(f"""v_xor_b32 v31, {2*ks}, v7
v_lshl_add_u32 v{XA+ks}, v31, 4, v6
v_add_u32 v{XA+4+ks}, 0x10000, v{XA+ks}""")
    a(f"""
v_bfe_u32 v6, v{VL}, 2, 2
v_lshl_add_u32 v7, v30, 3, v6
v_lshlrev_b32 v7, 8, v7
v_add_u32 v7, 16384, v7
v_and_b32 v31, 1, v{VL}
v_lshl_add_u32 v7, v31, 3, v7
v_bfe_u32 v31, v{VL}, 4, 1
v_lshlrev_b32 v31, 1, v31
v_bfe_u32 v58, v{VL}, 1, 1
v_add_u32 v31, v31, v58
s_lshl_b32 s36, s{S_FH}, 3
v_add_u32 v31, s36, v31
v_lshlrev_b32 v6, 2, v6
v_xor_b32 v31, v31, v6
v_lshl_add_u32 v{WA}, v31, 4, v7
v_xor_b32 v31, 4, v31
v_lshl_add_u32 v{WA+1}, v31, 4, v7
v_add_u32 v{WA+2}, 0x10000, v{WA}
v_add_u32 v{WA+3}, 0x10000, v{WA+1}
s_lshl_b32 s57, s{S_MT}, 2
s_add_u32 s57, s57, s{S_TT}
s_mul_i32 s36, s57, 40960
s_lshl_b32 s37, s{S_NT}, 12
s_add_u32 s36, s36, s37
s_add_u32 s36, s36, {XFRAG}
v_lshlrev_b32 v{XE}, 4, v{VL}
v_add_u32 v{XE}, s36, v{XE}
s_cmp_eq_u32 s{S_FH}, 0
s_cselect_b32 s{S_EXO}, s{S_NT}, 99
""")
    for i in range(32):
        a(f"v_mov_b32 v{ACC+i}, 0")
    a(f"""
s_cmp_ge_u32 s{S_NT}, 10
s_cbranch_scc1 L_k1_v
""")
    def mainloop(swapped):
        def reads(st, ks, b):
            slot = st % NS
            hi = 4 if slot >= 2 else 0
            hw = 2 if slot >= 2 else 0
            so = (slot & 1) * 32768
            a(f"ds_read_b128 {vr(XF+4*b,4)}, v{XA+hi+ks} offset:{so}")
            for ft in range(2):
                for aa in range(2):
                    a(f"ds_read_b64_tr_b16 {vr(WF+8*b+4*ft+2*aa,2)}, v{WA+hw+ft} offset:{so + (16*ks+4*aa)*256}")
        for st in range(10):
            rem = min(NS - 2, 9 - st)
            a(f"s_waitcnt vmcnt({4*rem})")
            a("s_barrier")
            reads(st, 0, 0)
            if st + NS - 1 < 10:
                dma(st + NS - 1)
            for ks in range(4):
                b = ks & 1
                if ks < 3:
                    reads(st, ks + 1, 1 - b)
                    a("s_waitcnt lgkmcnt(5)")
                else:
                    a("s_waitcnt lgkmcnt(0)")
                for ft in range(2):
                    A, B = vr(WF+8*b+4*ft,4), vr(XF+4*b,4)
                    if swapped: A, B = B, A
                    a(f"v_mfma_f32_32x32x16_bf16 {vr(ACC+16*ft,16)}, {A}, {B}, {vr(ACC+16*ft,16)}")
                if not swapped:
                    lb = a.newlabel("k1x")
                    a(f"""s_cmp_lg_u32 s{S_EXO}, {st}
s_cbranch_scc1 {lb}
buffer_store_dwordx4 {vr(XF+4*b,4)}, v{XE}, s[16:19], 0 offen offset:{ks*1024}
s_nop 1""")
                    a.label(lb)
    a(f"""
s_cmp_ge_u32 s{S_NT}, 5
s_cselect_b32 s36, 5, 0
s_sub_u32 s36, s{S_NT}, s36
s_lshl_b32 s36, s36, 5
s_lshl_b32 s37, s{S_FH}, 4
s_add_u32 s36, s36, s37
s_cmp_ge_u32 s{S_NT}, 5
s_mov_b32 s37, {64*1280}
s_cselect_b32 s58, {64*2560}, s37
s_mov_b32 s37, 1280
s_cselect_b32 s59, 2560, s37
s_mov_b32 s37, {QIMG}
s_cselect_b32 s60, {KVIMG}, s37
s_mov_b32 s37, {f32hex(QSCALE)}
s_cselect_b32 s61, 1.0, s37
s_cselect_b64 vcc, -1, 0
s_mul_i32 s59, s59, s57
s_add_u32 s60, s60, s59
v_and_b32 v6, 0x13, v29
v_bfe_u32 v7, v29, 2, 1
v_lshl_or_b32 v6, v7, 3, v6
v_bfe_u32 v7, v29, 3, 1
v_lshl_or_b32 v6, v7, 2, v6
v_cndmask_b32 v6, v29, v6, vcc
v_lshlrev_b32 v7, 3, v6
v_lshlrev_b32 v6, 4, v6
v_add_u32 v31, s36, v30
""")
    for j in range(8):
        a(f"""v_add_u32 v58, {2*j}, v31
v_mul_u32_u24 v59, 205, v58
v_lshrrev_b32 v59, 10, v59
v_mul_u32_u24 v60, 5, v59
v_sub_u32 v60, v58, v60
v_mul_lo_u32 v59, v59, s58
v_cmp_eq_u32 vcc, 4, v60
v_lshrrev_b32 v61, 1, v60
v_lshl_add_u32 v59, v61, 9, v59
v_and_b32 v61, 1, v60
v_lshl_add_u32 v59, v61, 3, v59
v_cndmask_b32 v61, v6, v7, vcc
v_add3_u32 v{EA+j}, v59, v61, s60""")
    mainloop(False)
    a("s_nop 7\ns_nop 3")
    for j in range(8):
        r = ACC + 4*j
        for e in range(4):
            a(f"v_mul_f32 v{r+e}, s61, v{r+e}")
        a(f"""v_cvt_pk_bf16_f32 v{r}, v{r}, v{r+1}
v_cvt_pk_bf16_f32 v{r+1}, v{r+2}, v{r+3}
buffer_store_dwordx2 {vr(r,2)}, v{EA+j}, s[16:19], 0 offen""")
    a("s_endpgm")
    a.label("L_k1_v")
    a(f"""
s_sub_u32 s36, s{S_NT}, 10
s_lshl_b32 s36, s36, 7
s_lshl_b32 s37, s{S_FH}, 6
s_add_u32 s36, s36, s37
s_mul_i32 s60, s57, 2560
s_add_u32 s60, s60, {KVIMG + 1280}
s_mov_b32 s58, {64*2560}
v_mul_u32_u24 v6, 320, v30
v_add_u32 v6, s60, v6
v_add_u32 v31, s36, v29
""")
    for ft in range(2):
        a(f"""v_add_u32 v58, {32*ft}, v31
v_mul_u32_u24 v59, 3277, v58
v_lshrrev_b32 v59, 16, v59
v_mul_u32_u24 v60, 20, v59
v_sub_u32 v60, v58, v60
v_mul_lo_u32 v59, v59, s58
v_lshl_add_u32 v59, v60, 4, v59
v_add_u32 v{EA+ft}, v59, v6""")
    mainloop(True)
    a("s_nop 7\ns_nop 7")
    for ft in range(2):
        for g in range(2):
            r = ACC + 16*ft + 8*g
            for e in range(4):
                a(f"v_cvt_pk_bf16_f32 v{r+e}, v{r+2*e}, v{r+2*e+1}")
            a(f"buffer_store_dwordx4 {vr(r,4)}, v{EA+ft}, s[16:19], 0 offen offset:{640*g}")
    a("s_endpgm")
    a.label("L_k1_prep")
    gen_prep(a, S_MT, S_W)
    a.label("L_k1_end")
    a("s_endpgm")

PH_STRIDE = 304
def gen_prep(a, S_P, S_W):
    VL = 2
    BF = 16
    AF = 88
    D = 124
    GT = 156
    AG, AG2, GG, OG, SC = 3, 4, 5, 6, 7
    a(f"""
s_mul_i32 s36, s{S_P}, 1600
v_lshlrev_b32 v8, 2, v0
v_add_u32 v8, s36, v8
v_cmp_gt_u32 vcc, 400, v0
v_mov_b32 v9, 0x7ffffff0
s_nop 0
v_cndmask_b32 v8, v9, v8, vcc
buffer_load_dword v10, v8, s[44:47], 0 offen
v_mov_b32 v12, 0
v_mov_b32 v13, 0
v_mov_b32 v14, 0
v_mov_b32 v15, 0
s_lshl_b32 s36, s{S_P}, 13
s_add_u32 s36, s36, {KVACC}
v_lshlrev_b32 v8, 4, v0
buffer_store_dwordx4 v[12:15], v8, s[16:19], s36 offen sc0 sc1
""")
    for i in range(5):
        a(f"ds_write_b128 v8, v[12:15] offset:{i*8192}")
    a(f"""
v_and_b32 v29, 31, v{VL}
v_lshrrev_b32 v30, 5, v{VL}
v_and_b32 v8, 0x13, v29
v_bfe_u32 v9, v29, 2, 1
v_lshl_or_b32 v8, v9, 3, v8
v_bfe_u32 v9, v29, 3, 1
v_lshl_or_b32 v8, v9, 2, v8
v_mul_u32_u24 v8, 3840, v8
s_mul_i32 s36, s{S_P}, 80
v_lshl_add_u32 v8, v30, 4, v8
v_add_u32 v{AG}, s36, v8
v_cmp_eq_u32 vcc, 0, v30
v_mov_b32 v9, 0x7ffffff0
s_nop 0
v_cndmask_b32 v{AG2}, v9, v{AG}, vcc
v_lshlrev_b32 v{GG}, 4, v30
s_mul_i32 s36, s{S_P}, {40*4096}
s_add_u32 s36, s36, {WBF}
v_lshlrev_b32 v{OG}, 4, v{VL}
v_add_u32 v{OG}, s36, v{OG}
s_waitcnt lgkmcnt(0)
s_barrier
; scatter w_phi: e = 2*tid ; hh = e/400 ; d = (e%400)/20 ; f = e%20
v_cmp_le_u32 vcc, 200, v0
v_mov_b32 v8, 0
s_nop 0
v_cndmask_b32 v8, 0, 1, vcc
v_mul_u32_u24 v9, 200, v8
v_sub_u32 v9, v0, v9
v_mul_u32_u24 v11, 6554, v9
v_lshrrev_b32 v11, 16, v11
v_mul_u32_u24 v12, 10, v11
v_sub_u32 v12, v9, v12
v_lshlrev_b32 v12, 1, v12
v_lshrrev_b32 v13, 2, v12
v_lshlrev_b32 v13, 3, v13
v_lshl_add_u32 v13, v8, 2, v13
v_and_b32 v14, 3, v12
v_add_u32 v13, v13, v14
v_mul_u32_u24 v13, {PH_STRIDE}, v13
v_mul_u32_u24 v14, 20, v8
v_add_u32 v14, v14, v11
v_lshl_add_u32 v13, v14, 1, v13
v_cmp_gt_u32 vcc, 400, v0
s_and_saveexec_b64 s[62:63], vcc
s_waitcnt vmcnt(1)
ds_write_b16 v13, v10
ds_write_b16_d16_hi v13, v10 offset:{PH_STRIDE}
ds_write_b16 v13, v10 offset:{40*PH_STRIDE + 96}
ds_write_b16_d16_hi v13, v10 offset:{41*PH_STRIDE + 96}
s_mov_b64 exec, s[62:63]
; identity for v: tid<40: hh = tid/20, d = tid%20 ; n = 8*(10 + d/4) + 4hh + d%4 ; K = 96 + tid
v_cmp_le_u32 vcc, 20, v0
s_nop 1
v_cndmask_b32 v8, 0, 1, vcc
v_mul_u32_u24 v9, 20, v8
v_sub_u32 v9, v0, v9
v_lshrrev_b32 v13, 2, v9
v_lshlrev_b32 v13, 3, v13
v_lshl_add_u32 v13, v8, 2, v13
v_and_b32 v14, 3, v9
v_add_u32 v13, v13, v14
v_mul_u32_u24 v13, {PH_STRIDE}, v13
v_lshl_add_u32 v13, v0, 1, v13
v_mov_b32 v10, 0x3f80
v_cmp_gt_u32 vcc, 40, v0
s_and_saveexec_b64 s[62:63], vcc
ds_write_b16 v13, v10 offset:{80*PH_STRIDE + 192}
s_mov_b64 exec, s[62:63]
s_waitcnt lgkmcnt(0)
s_barrier
v_mul_u32_u24 v8, {PH_STRIDE}, v29
v_lshl_add_u32 v8, v30, 4, v8
""")
    a(f"""
v_cmp_gt_u32 vcc, 16, v29
v_mov_b32 v9, {f32hex(LOG2E)}
s_mov_b32 s66, {f32hex(LOG2E)}
v_cndmask_b32 v{SC}, 1.0, v9, vcc
v_cmp_le_u32 s[64:65], 24, v29
s_mov_b32 s67, s{S_W}
""")
    combos = [(0,0),(1,0),(1,1),(2,1),(2,2),(3,2)]
    for ci, (t, seg) in enumerate(combos):
        for u in range(3):
            a(f"ds_read_b128 {vr(BF + 4*(3*ci+u),4)}, v8 offset:{32*t*PH_STRIDE + 96*seg + 32*u}")
        if ci % 2 == 1: a("s_waitcnt lgkmcnt(0)")
    a.label("L_prep_loop")
    a(f"""
s_mul_i32 s68, s67, {32*3840}
s_lshl_b32 s69, s67, 6
s_lshl_b32 s70, s67, 13
""")
    for seg in range(3):
        for u in range(3):
            a(f"buffer_load_dwordx4 {vr(AF+4*(3*seg+u),4)}, v{AG2 if u==2 else AG}, s[40:43], s68 offen offset:{1280*seg+32*u}")
    a(f"""buffer_load_dwordx4 {vr(GT,4)}, v{GG}, s[48:51], s69 offen
buffer_load_dwordx4 {vr(GT+4,4)}, v{GG}, s[48:51], s69 offen offset:32
s_waitcnt vmcnt(0)""")
    for t in range(4):
        d = D + 16*(t & 1)
        first = True
        for ci, (tt, seg) in enumerate(combos):
            if tt != t: continue
            for u in range(3):
                a(f"v_mfma_f32_32x32x16_bf16 {vr(d,16)}, {vr(AF+4*(3*seg+u),4)}, {vr(BF+4*(3*ci+u),4)}, {'0' if first else vr(d,16)}")
                first = False
        a("s_nop 7\ns_nop 7")
        if t < 3:
            for e in range(16):
                a(f"v_mul_f32 v{d+e}, {'s66' if t < 2 else f'v{SC}'}, v{d+e}")
        for g in range(2):
            r = d + 8*g
            for e in range(4):
                a(f"v_cvt_pk_bf16_f32 v{r+e}, v{r+2*e}, v{r+2*e+1}")
            if t == 3:
                for e in range(4):
                    a(f"v_cndmask_b32 v{r+e}, v{r+e}, v{GT+4*g+e}, s[64:65]")
        a(f"""s_add_u32 s71, s70, 4096
buffer_store_dwordx4 {vr(d,4)}, v{OG}, s[16:19], s70 offen offset:{t*1024}
buffer_store_dwordx4 {vr(d+8,4)}, v{OG}, s[16:19], s71 offen offset:{t*1024}""")
    a(f"""
s_add_u32 s67, s67, 8
s_cmp_lt_u32 s67, 20
s_cbranch_scc1 L_prep_loop
s_endpgm
""")
```

```python
from asmlib import *
from layout import *

K2_LDS = 53760
K2_VGPR = 168
SLOT = 10304

def gen_k2(a, name):
    kernel_begin(a, name)
    a(f"""
s_cmp_ge_u32 s2, 768
s_cbranch_scc1 L_k2_end
s_load_dwordx4 s[20:23], s[0:1], 72
v_lshrrev_b32 v1, 6, v0
v_and_b32 v2, 63, v0
v_readfirstlane_b32 s32, v1
s_and_b32 s36, s2, 7
s_lshr_b32 s37, s2, 3
s_waitcnt lgkmcnt(0)
""")
    srd(a, 16, 22, WS_BYTES)
    srd(a, 12, 20, 256)
    a("""
s_cmp_lt_u32 s2, 256
s_cbranch_scc1 L_k2_b
""")
    gen_attn(a)
    a.label("L_k2_b")
    gen_brole(a)
    a.label("L_k2_end")
    a("s_endpgm")

def gen_attn(a):
    VL = 2
    S = [16, 32, 48, 64]; O = [80, 96]
    Q1 = [112, 116]; Q2 = [120, 122]
    K1 = [124, 128]; K2 = [132, 134]
    V = [[136, 140], [144, 148]]
    VA = 152; KA1 = 160; KA2 = 161; IDX = 162; DG = 163; L16 = 164; L8 = 165; MX = [166, 167]
    S_HEAD, S_QB, S_QP, S_KH, S_MODE, S_WIN, S_M0, S_KVB, S_IT = 30, 31, 33, 34, 35, 40, 41, 42, 43
    a(f"""
s_sub_u32 s37, s37, 32
s_bfe_u32 s38, s37, 0x20003
s_lshl_b32 s{S_HEAD}, s36, 2
s_add_u32 s{S_HEAD}, s{S_HEAD}, s38
s_and_b32 s38, s37, 7
s_lshl_b32 s38, s38, 1
s_lshr_b32 s39, s37, 5
s_add_u32 s{S_QB}, s38, s39
s_and_b32 s{S_QP}, s32, 1
s_lshr_b32 s{S_KH}, s32, 1
s_mul_i32 s{S_KVB}, s{S_HEAD}, {64*2560}
s_add_u32 s{S_KVB}, s{S_KVB}, {KVIMG}
v_and_b32 v3, 31, v{VL}
v_lshrrev_b32 v4, 5, v{VL}
v_lshlrev_b32 v{L16}, 4, v{VL}
v_lshlrev_b32 v{L8}, 3, v3
v_lshl_add_u32 v{L8}, v4, 2, v{L8}
s_lshl_b32 s38, s{S_QB}, 2
s_lshl_b32 s39, s{S_QP}, 1
s_add_u32 s44, s38, s39
s_mul_i32 s38, s44, 1280
s_mul_i32 s39, s{S_HEAD}, {64*1280}
s_add_u32 s38, s38, s39
s_add_u32 s38, s38, {QIMG}
buffer_load_dwordx4 {vr(Q1[0],4)}, v{L16}, s[16:19], s38 offen
buffer_load_dword v{Q2[0]}, v{L8}, s[16:19], s38 offen offset:1024
buffer_load_dwordx4 {vr(Q1[1],4)}, v{L16}, s[16:19], s38 offen offset:1280
buffer_load_dword v{Q2[1]}, v{L8}, s[16:19], s38 offen offset:2304
s_mul_i32 s38, s{S_QP}, 5120
v_add_u32 v{DG}, s38, v{L16}
s_mul_i32 s39, s{S_KH}, {2*SLOT}
s_add_u32 s{S_M0}, s39, s38
v_add_u32 v{KA1}, s39, v{L16}
v_add_u32 v{KA2}, s39, v{L8}
v_mul_u32_u24 v5, 320, v4
v_lshl_add_u32 v5, v3, 4, v5
v_add_u32 v5, s39, v5
s_add_u32 s39, s39, 10240
v_mov_b32 v6, s39
v_cmp_gt_u32 vcc, 20, v3
v_mov_b32 v{IDX}, 0xdddddddd
v_mov_b32 v8, 0x3f803f80
v_mov_b32 v9, 0x3f803f80
v_mov_b32 v10, 0x3f803f80
v_mov_b32 v11, 0x3f803f80
""")
    for j in range(4):
        for g in range(2):
            a(f"""v_add_u32 v7, {j*2560 + g*640}, v5
v_cndmask_b32 v{VA+2*j+g}, v6, v7, vcc""")
    a(f"""
s_mov_b32 s{S_MODE}, 0
""")
    a.label("L_at_restart")
    a(f"""
ds_write_b128 v6, v[8:11]
ds_write_b128 v6, v[8:11] offset:{SLOT}
s_mul_i32 s{S_WIN}, s{S_KH}, {32*2560}
s_add_u32 s{S_WIN}, s{S_WIN}, s{S_KVB}
buffer_load_dwordx4 {vr(K1[1],4)}, v{L16}, s[16:19], s{S_WIN} offen
buffer_load_dword v{K2[1]}, v{L8}, s[16:19], s{S_WIN} offen offset:1024
s_add_u32 s{S_WIN}, s{S_WIN}, 1280
""")
    def dma(slot):
        a(f"""s_add_u32 m0, s{S_M0}, {slot*SLOT}
s_add_u32 s45, s{S_WIN}, 4096
buffer_load_dwordx4 v{DG}, s[16:19], s{S_WIN} offen lds
buffer_load_dwordx4 v{DG}, s[16:19], s{S_WIN} offen offset:1024 lds
buffer_load_dwordx4 v{DG}, s[16:19], s{S_WIN} offen offset:2048 lds
buffer_load_dwordx4 v{DG}, s[16:19], s{S_WIN} offen offset:3072 lds
s_add_u32 m0, s{S_M0}, {slot*SLOT + 4096}
s_add_u32 s{S_WIN}, s{S_WIN}, 10240
buffer_load_dwordx4 v{DG}, s[16:19], s45 offen lds""")
    a(f"""
v_mov_b32 v{K2[0]+1}, 0x3f803f80
v_mov_b32 v{K2[1]+1}, 0x3f803f80
v_mov_b32 v{Q2[0]+1}, 0
v_mov_b32 v{Q2[1]+1}, 0
v_mov_b32 v{MX[0]}, 0xff800000
v_mov_b32 v{MX[1]}, 0xff800000
s_mov_b32 s46, s{S_KVB}
s_cmp_eq_u32 s{S_MODE}, 0
s_cselect_b32 s47, 1, 64
buffer_load_dwordx4 {vr(K1[0],4)}, v{L16}, s[16:19], s46 offen
buffer_load_dword v{K2[0]}, v{L8}, s[16:19], s46 offen offset:1024
""")
    dma(0)
    a("s_waitcnt vmcnt(5)")
    a.label("L_at_max")
    for q in range(2):
        a(f"""v_mfma_f32_32x32x16_bf16 {vr(S[q],16)}, {vr(K1[0],4)}, {vr(Q1[q],4)}, 0
v_mfma_f32_32x32x8_bf16 {vr(S[q],16)}, {vr(K2[0],2)}, {vr(Q2[q],2)}, {vr(S[q],16)}""")
    a("s_nop 7\ns_nop 3")
    for q in range(2):
        for e in range(8):
            a(f"v_max3_f32 v{MX[q]}, v{S[q]+2*e}, v{S[q]+2*e+1}, v{MX[q]}")
    a(f"""
s_sub_u32 s47, s47, 1
s_cmp_eq_u32 s47, 0
s_cbranch_scc1 L_at_maxdone
s_add_u32 s46, s46, 2560
buffer_load_dwordx4 {vr(K1[0],4)}, v{L16}, s[16:19], s46 offen
buffer_load_dword v{K2[0]}, v{L8}, s[16:19], s46 offen offset:1024
s_waitcnt vmcnt(0)
s_branch L_at_max
""")
    a.label("L_at_maxdone")
    a(f"v_cmp_gt_u32 vcc, 32, v{VL}")
    for q in range(2):
        m = MX[q]
        a(f"""
v_mov_b32 v3, v{m}
s_nop 1
v_permlane32_swap_b32 v3, v{m}
s_nop 1
v_max_f32 v3, v3, v{m}
v_xor_b32 v3, 0x80000000, v3
v_and_b32 v4, 0xffff0000, v3
v_sub_f32 v3, v3, v4
v_and_b32 v5, 0xffff0000, v3
v_sub_f32 v3, v3, v5
v_lshrrev_b32 v4, 16, v4
v_or_b32 v4, v4, v5
v_lshrrev_b32 v3, 16, v3
v_cndmask_b32 v{Q2[q]+1}, v3, v4, vcc
""")
    for i in range(32):
        a(f"v_mov_b32 v{O[0]+i}, 0")
    for i in range(8):
        a(f"v_mov_b32 v{S[3]+8+i}, 0")
    for i in range(4):
        a(f"v_mov_b32 v{V[1][1]+i}, 0")
    for q in range(2):
        a(f"""v_mfma_f32_32x32x16_bf16 {vr(S[q],16)}, {vr(K1[1],4)}, {vr(Q1[q],4)}, 0
v_mfma_f32_32x32x8_bf16 {vr(S[q],16)}, {vr(K2[1],2)}, {vr(Q2[q],2)}, {vr(S[q],16)}""")
    def G(rec):
        slot, j = (rec >> 2) & 1, rec & 3
        p = rec & 1
        so = slot * SLOT
        a(f"""ds_read_b128 {vr(K1[p],4)}, v{KA1} offset:{so + j*2560 + 1280}
ds_read_b32 v{K2[p]}, v{KA2} offset:{so + j*2560 + 2304}
ds_read_b128 {vr(V[p][0],4)}, v{VA+2*j} offset:{so}
ds_read_b128 {vr(V[p][1],4)}, v{VA+2*j+1} offset:{so}""")
    a("s_waitcnt vmcnt(0) lgkmcnt(0)\ns_barrier")
    dma(1)
    G(0)
    a(f"s_mov_b32 s{S_IT}, 0\ns_waitcnt lgkmcnt(0)")
    a.raw(".p2align 6")
    a.label("L_at_loop")
    for t in range(8):
        for q in range(2):
            i = (2*t + q) & 3
            X, W, Y = S[i], S[(i-1) & 3], S[(i+2) & 3]
            p = t & 1
            pw, qw = (p, 0) if q == 1 else (1 - p, 1)
            ex = [f"v_exp_f32 v{X+e}, v{X+e}" for e in range(16)]
            a("\n".join(ex[0:2]))
            a(f"v_smfmac_f32_32x32x32_bf16 {vr(O[qw],16)}, {vr(V[pw][1],4)}, {vr(W+8,8)}, v{IDX}")
            if q == 0:
                rec = t + 1
                if rec & 3 == 0:
                    lb = a.newlabel("atd")
                    a("s_waitcnt vmcnt(0)\ns_barrier")
                    a(f"s_cmp_ge_u32 s{S_IT}, {3}\ns_cbranch_scc1 {lb}" if rec == 4 else f"s_cmp_ge_u32 s{S_IT}, 3\ns_cbranch_scc1 {lb}")
                    dma(0 if rec == 4 else 1)
                    a.label(lb)
                G(rec & 7)
            a("\n".join(ex[2:6]))
            a(f"v_mfma_f32_32x32x16_bf16 {vr(Y,16)}, {vr(K1[p],4)}, {vr(Q1[q],4)}, 0")
            a("\n".join(ex[6:10]))
            a(f"v_smfmac_f32_32x32x32_bf16 {vr(O[q],16)}, {vr(V[p][0],4)}, {vr(X,8)}, v{IDX}")
            a("\n".join(ex[10:14]))
            a(f"v_mfma_f32_32x32x8_bf16 {vr(Y,16)}, {vr(K2[p],2)}, {vr(Q2[q],2)}, {vr(Y,16)}")
            a("\n".join(ex[14:16]))
            if q == 1:
                a("s_waitcnt lgkmcnt(0)")
    a(f"""
s_add_u32 s{S_IT}, s{S_IT}, 1
s_cmp_lt_u32 s{S_IT}, 4
s_cbranch_scc1 L_at_loop
v_smfmac_f32_32x32x32_bf16 {vr(O[1],16)}, {vr(V[1][1],4)}, {vr(S[3]+8,8)}, v{IDX}
s_barrier
s_lshl_b32 s38, s32, 12
v_add_u32 v3, s38, v{L16}
s_xor_b32 s38, s38, 8192
v_add_u32 v4, s38, v{L16}
s_nop 7
s_cmp_eq_u32 s{S_KH}, 0
s_cbranch_scc1 L_at_m0
""")
    def send(o):
        for i in range(4):
            a(f"ds_write_b128 v3, {vr(o+4*i,4)} offset:{i*1024}")
    send(O[0])
    a("s_waitcnt lgkmcnt(0)")
    for i in range(13):
        a(f"v_mov_b32 v{O[0]+i}, v{O[1]+i}")
    a("s_branch L_at_m1")
    a.label("L_at_m0")
    send(O[1])
    a.label("L_at_m1")
    a("s_waitcnt lgkmcnt(0)\ns_barrier")
    for i in range(4):
        a(f"ds_read_b128 {vr(S[0]+4*i,4)}, v4 offset:{i*1024}")
    a("s_waitcnt lgkmcnt(0)")
    o = O[0]
    for i in range(13):
        a(f"v_add_f32 v{o+i}, v{o+i}, v{S[0]+i}")
    a(f"v_mul_f32 v5, 0, v{o}")
    for i in range(1, 12):
        a(f"v_fmac_f32 v5, 0, v{o+i}")
    a(f"""
v_add_f32 v5, v5, v{o+12}
v_mov_b32 v6, 0x4b800000
v_cmp_nle_f32 vcc, v5, v6
s_nop 3
s_cmp_lg_u64 vcc, 0
s_cselect_b32 s38, 1, 0
v_mov_b32 v5, s38
s_lshl_b32 s39, s32, 2
v_mov_b32 v6, s39
ds_write_b32 v6, v5 offset:16384
v_mov_b32 v6, 0
s_waitcnt lgkmcnt(0)
s_barrier
ds_read_b128 v[8:11], v6 offset:16384
v_rcp_f32 v7, v{o+12}
s_waitcnt lgkmcnt(0)
v_or3_b32 v8, v8, v9, v10
v_or_b32 v8, v8, v11
s_nop 0
v_readfirstlane_b32 s38, v8
s_andn2_b32 s38, s38, s{S_MODE}
s_cmp_eq_u32 s38, 0
s_cbranch_scc1 L_at_fin
s_mov_b32 s{S_MODE}, 1
s_mul_i32 s39, s{S_KH}, {2*SLOT}
s_add_u32 s39, s39, 10240
v_mov_b32 v6, s39
v_mov_b32 v8, 0x3f803f80
v_mov_b32 v9, 0x3f803f80
v_mov_b32 v10, 0x3f803f80
v_mov_b32 v11, 0x3f803f80
s_barrier
s_branch L_at_restart
""")
    a.label("L_at_fin")
    for i in range(12):
        a(f"v_mul_f32 v{o+i}, v{o+i}, v7")
    for i in range(6):
        a(f"v_cvt_pk_bf16_f32 v{o+i}, v{o+2*i}, v{o+2*i+1}")
    a(f"""
s_add_u32 s38, s44, s{S_KH}
s_mul_i32 s38, s38, 40960
s_add_u32 s38, s38, {OAF}
v_bfe_u32 v3, v{VL}, 4, 1
v_mul_u32_u24 v3, 20480, v3
v_and_b32 v4, 15, v{VL}
v_lshl_add_u32 v3, v4, 4, v3
s_mul_i32 s39, s{S_HEAD}, 5
v_lshrrev_b32 v4, 5, v{VL}
v_add_u32 v4, s39, v4
v_lshrrev_b32 v5, 1, v4
v_lshl_add_u32 v3, v5, 8, v3
v_and_b32 v5, 1, v4
v_lshl_add_u32 v3, v5, 3, v3
v_cmp_gt_u32 vcc, 32, v{VL}
v_mov_b32 v5, 0x7ffffff0
buffer_store_dwordx2 {vr(o,2)}, v3, s[16:19], s38 offen
buffer_store_dwordx2 {vr(o+2,2)}, v3, s[16:19], s38 offen offset:256
v_cndmask_b32 v3, v5, v3, vcc
buffer_store_dwordx2 {vr(o+4,2)}, v3, s[16:19], s38 offen offset:512
s_endpgm
""")

BROW = 272
def gen_brole(a):
    VL = 2
    S_TB, S_P = 30, 31
    ACC = 64
    XF = 32
    WF = 128
    L16 = 3; RA = 4
    a(f"""
s_setprio 2
s_and_b32 s{S_TB}, s36, 3
s_lshl_b32 s{S_TB}, s{S_TB}, 2
s_and_b32 s38, s37, 3
s_add_u32 s{S_TB}, s{S_TB}, s38
s_lshr_b32 s{S_P}, s36, 2
s_lshl_b32 s{S_P}, s{S_P}, 3
s_lshr_b32 s38, s37, 2
s_add_u32 s{S_P}, s{S_P}, s38
v_lshlrev_b32 v{L16}, 4, v{VL}
; T = 4*tb + w
s_lshl_b32 s44, s{S_TB}, 2
s_add_u32 s44, s44, s32
s_mul_i32 s40, s44, 40960
s_add_u32 s40, s40, {XFRAG}
s_mul_i32 s41, s{S_P}, {40*4096}
s_lshl_b32 s42, s32, 12
s_add_u32 s41, s41, s42
s_add_u32 s41, s41, {WBF}
""")
    def loads(st):
        slot = st % 3
        a(f"s_add_u32 m0, s42, {slot*16384}")
        a("s_nop 0")
        for i in range(4):
            a(f"buffer_load_dwordx4 v{L16}, s[16:19], s41 offen offset:{i*1024} lds")
        a("s_add_u32 s41, s41, 16384")
    def xloads(st):
        b = st & 1
        for i in range(4):
            a(f"buffer_load_dwordx4 {vr(XF+16*b+4*i,4)}, v{L16}, s[16:19], s40 offen offset:{i*1024}")
        a("s_add_u32 s40, s40, 4096")
    loads(0); xloads(0); loads(1)
    for i in range(64):
        a(f"v_mov_b32 v{ACC+i}, 0")
    def reads(st, ks, b):
        for t in range(4):
            a(f"ds_read_b128 {vr(WF+16*b+4*t,4)}, v{L16} offset:{(st%3)*16384 + ks*4096 + t*1024}")
    for st in range(10):
        a(f"s_waitcnt vmcnt({4 if st < 9 else 0})")
        a("s_barrier")
        reads(st, 0, 0)
        if st + 1 < 10: xloads(st + 1)
        if st + 2 < 10: loads(st + 2)
        elif st + 1 < 10:
            pass
        for ks in range(4):
            b = ks & 1
            if ks < 3:
                reads(st, ks + 1, 1 - b)
                a("s_waitcnt lgkmcnt(4)")
            else:
                a("s_waitcnt lgkmcnt(0)")
            for t in range(4):
                a(f"v_mfma_f32_32x32x16_bf16 {vr(ACC+16*t,16)}, {vr(WF+16*b+4*t,4)}, {vr(XF+16*(st&1)+4*ks,4)}, {vr(ACC+16*t,16)}")
    a("s_nop 7\ns_nop 7")
    PQ = 128
    PK = 8
    EP = 32
    def phi(u, dst):
        mx, mn, sp, sn = 52, 53, 54, 56
        a(f"v_max3_f32 v{mx}, v{u}, v{u+1}, v{u+2}\nv_min3_f32 v{mn}, v{u}, v{u+1}, v{u+2}")
        for e in range(3, 19, 2):
            a(f"v_max3_f32 v{mx}, v{u+e}, v{u+e+1}, v{mx}\nv_min3_f32 v{mn}, v{u+e}, v{u+e+1}, v{mn}")
        a(f"v_max_f32 v{mx}, v{u+19}, v{mx}\nv_min_f32 v{mn}, v{u+19}, v{mn}")
        for e in range(20):
            a(f"v_sub_f32 v{EP+e}, v{mn}, v{u+e}\nv_sub_f32 v{u+e}, v{u+e}, v{mx}")
        for e in range(20):
            a(f"v_exp_f32 v{EP+e}, v{EP+e}\nv_exp_f32 v{u+e}, v{u+e}")
        a(f"v_pk_add_f32 {vr(sp,2)}, {vr(u,2)}, {vr(u+2,2)}\nv_pk_add_f32 {vr(sn,2)}, {vr(EP,2)}, {vr(EP+2,2)}")
        for e in range(4, 20, 2):
            a(f"v_pk_add_f32 {vr(sp,2)}, {vr(sp,2)}, {vr(u+e,2)}\nv_pk_add_f32 {vr(sn,2)}, {vr(sn,2)}, {vr(EP+e,2)}")
        a(f"""v_add_f32 v{sp}, v{sp}, v{sp+1}
v_add_f32 v{sn}, v{sn}, v{sn+1}
v_rcp_f32 v{sp}, v{sp}
v_rcp_f32 v{sn}, v{sn}
s_nop 0""")
        for e in range(20):
            a(f"v_mul_f32 v{u+e}, v{u+e}, v{sp}\nv_mul_f32 v{EP+e}, v{EP+e}, v{sn}")
        for e in range(10):
            a(f"v_cvt_pk_bf16_f32 v{dst+e}, v{u+2*e}, v{u+2*e+1}\nv_cvt_pk_bf16_f32 v{dst+10+e}, v{EP+2*e}, v{EP+2*e+1}")
    phi(ACC + 20, PK)
    VP = 148
    for e in range(10):
        a(f"v_cvt_pk_bf16_f32 v{VP+e}, v{ACC+40+2*e}, v{ACC+41+2*e}")
    a(f"""
v_mov_b32 v{VP+10}, 0x3f80
v_mov_b32 v{VP+11}, 0
v_and_b32 v5, 31, v{VL}
v_lshrrev_b32 v6, 5, v{VL}
s_lshl_b32 s38, s32, 5
v_add_u32 v7, s38, v5
v_mul_u32_u24 v7, {BROW}, v7
v_mul_u32_u24 v28, 80, v6
v_add_u32 v28, v28, v7
v_mul_u32_u24 v29, 48, v6
v_add_u32 v29, v29, v7
s_barrier
""")
    for i in range(5):
        a(f"ds_write_b128 v28, {vr(PK+4*i,4)} offset:{16*i}")
    for i in range(3):
        a(f"ds_write_b128 v29, {vr(VP+4*i,4)} offset:{160+16*i}")
    a(f"""
s_and_b32 s45, s32, 1
s_lshr_b32 s46, s32, 1
v_bfe_u32 v7, v{VL}, 2, 2
v_lshl_add_u32 v7, v6, 3, v7
v_mul_u32_u24 v7, {BROW}, v7
v_bfe_u32 v30, v{VL}, 4, 1
v_lshl_add_u32 v7, v30, 5, v7
v_and_b32 v30, 3, v{VL}
v_lshl_add_u32 v7, v30, 3, v7
s_mul_i32 s38, s45, 48
s_add_u32 s38, s38, 160
v_add_u32 v30, s38, v7
s_mul_i32 s38, s45, 80
s_lshl_b32 s39, s46, 6
s_add_u32 s38, s38, s39
v_add_u32 v31, s38, v7
s_waitcnt lgkmcnt(0)
s_barrier
""")
    KD = 32
    for ks in range(8):
        b = 48 + 8*(ks & 1)
        for aa in range(2):
            a(f"ds_read_b64_tr_b16 {vr(b+2*aa,2)}, v30 offset:{(16*ks+4*aa)*BROW}")
            a(f"ds_read_b64_tr_b16 {vr(b+4+2*aa,2)}, v31 offset:{(16*ks+4*aa)*BROW}")
        a("s_waitcnt lgkmcnt(0)")
        a(f"v_mfma_f32_32x32x16_bf16 {vr(KD,16)}, {vr(b,4)}, {vr(b+4,4)}, {'0' if ks == 0 else vr(KD,16)}")
    a(f"""
s_lshl_b32 s38, s{S_P}, 1
s_add_u32 s38, s38, s45
s_lshl_b32 s38, s38, 12
s_add_u32 s38, s38, {KVACC}
s_lshl_b32 s39, s46, 5
v_add_u32 v7, s39, v5
v_cmp_gt_u32 vcc, 40, v7
v_lshlrev_b32 v7, 2, v7
v_mul_u32_u24 v30, 640, v6
v_add_u32 v7, v7, v30
v_mov_b32 v30, 0x7ffffff0
v_cndmask_b32 v7, v30, v7, vcc
v_cmp_gt_u32 vcc, 32, v{VL}
s_nop 1
v_cndmask_b32 v30, v30, v7, vcc
s_nop 3
""")
    for r in range(12):
        ad = 30 if r > 8 else 7
        a(f"buffer_atomic_add_f32 v{KD+r}, v{ad}, s[16:19], s38 offen offset:{(8*(r//4) + r%4)*160}")
    phi(ACC, PQ)
    a(f"""
v_mul_f32 v{ACC+60}, {f32hex(-LOG2E)}, v{ACC+60}
v_exp_f32 v{ACC+60}, v{ACC+60}
s_nop 0
v_add_f32 v{ACC+60}, 1.0, v{ACC+60}
v_rcp_f32 v{ACC+60}, v{ACC+60}
s_waitcnt vmcnt(0)
s_barrier
s_cmp_lg_u32 s32, 0
s_cbranch_scc1 L_b_wait_done
s_lshl_b32 s38, s{S_P}, 2
v_mov_b32 v7, s38
v_mov_b32 v30, 1
s_mov_b64 s[48:49], exec
s_mov_b64 exec, 1
buffer_atomic_add v30, v7, s[12:15], 0 offen
s_mov_b32 s50, 0x40000
L_b_spin:
buffer_load_dword v30, v7, s[12:15], 0 offen sc0 sc1
s_waitcnt vmcnt(0)
v_readfirstlane_b32 s38, v30
s_cmp_ge_u32 s38, 16
s_cbranch_scc1 L_b_spin_done
s_sleep 4
s_sub_u32 s50, s50, 1
s_cmp_lg_u32 s50, 0
s_cbranch_scc1 L_b_spin
L_b_spin_done:
s_mov_b64 exec, s[48:49]
L_b_wait_done:
s_barrier
s_lshl_b32 s38, s44, 7
s_add_u32 s38, s38, {GATE}
v_lshlrev_b32 v7, 2, v5
s_cmp_eq_u32 s{S_P}, 0
s_cselect_b32 s39, 32, 0
v_cmp_gt_u32 vcc, s39, v{VL}
v_mov_b32 v30, 0x7ffffff0
s_nop 0
v_cndmask_b32 v7, v30, v7, vcc
buffer_store_dword v{ACC+60}, v7, s[16:19], s38 offen
v_bfe_u32 v7, v5, 2, 1
v_cmp_eq_u32 vcc, v7, v6
v_lshrrev_b32 v7, 3, v5
v_lshlrev_b32 v7, 2, v7
v_and_b32 v28, 3, v5
v_add_u32 v7, v7, v28
v_mul_u32_u24 v28, 160, v7
v_lshl_add_u32 v28, v6, 12, v28
v_cndmask_b32 v28, v30, v28, vcc
v_cmp_ge_u32 vcc, 4, v7
s_lshl_b32 s38, s{S_P}, 13
s_add_u32 s38, s38, {KVACC}
v_cndmask_b32 v29, v30, v28, vcc
""")
    raw = [[ACC + 8*u for u in range(5)], [8, 16, 32, 40, 48]]
    for T in range(2):
        for u in range(5):
            for hf in range(2):
                a(f"buffer_load_dwordx4 {vr(raw[T][u]+4*hf,4)}, v{28+T}, s[16:19], s38 offen offset:{2560*T + 32*u + 16*hf} sc0 sc1")
    D0, D1 = 148, ACC + 44
    a("s_waitcnt vmcnt(0)")
    for T in range(2):
        for u in range(5):
            r = raw[T][u]
            for e in range(4):
                a(f"v_cvt_pk_bf16_f32 v{r+e}, v{r+2*e}, v{r+2*e+1}")
    a("s_nop 1")
    for T in range(2):
        d = (D0, D1)[T]
        for u in range(5):
            a(f"v_mfma_f32_32x32x16_bf16 {vr(d,16)}, {vr(raw[T][u],4)}, {vr(PQ+4*u,4)}, {'0' if u == 0 else vr(d,16)}")
    a(f"""
s_mul_i32 s38, s44, 40960
s_add_u32 s38, s38, {OBF}
v_bfe_u32 v7, v{VL}, 4, 1
v_mul_u32_u24 v7, 20480, v7
v_and_b32 v28, 15, v{VL}
v_lshl_add_u32 v7, v28, 4, v7
s_mul_i32 s39, s{S_P}, 1280
v_add_u32 v7, s39, v7
v_mul_u32_u24 v28, 520, v6
v_add_u32 v28, v28, v7
v_mul_u32_u24 v29, 760, v6
v_add_u32 v29, v29, v7
v_sub_f32 v{ACC+60}, 1.0, v{ACC+60}
s_nop 7
v_add_f32 v30, {f32hex(1e-6)}, v{D1+4}
v_rcp_f32 v30, v30
s_nop 0
v_mul_f32 v30, v30, v{ACC+60}
""")
    vals = [D0 + e for e in range(16)] + [D1 + e for e in range(4)]
    for e in range(20):
        a(f"v_mul_f32 v{vals[e]}, v{vals[e]}, v30")
    for e in range(10):
        a(f"v_cvt_pk_bf16_f32 v{8+e}, v{vals[2*e]}, v{vals[2*e+1]}")
    for qd in range(5):
        if qd % 2 == 0:
            a(f"buffer_store_dwordx2 {vr(8+2*qd,2)}, v28, s[16:19], s38 offen offset:{(qd//2)*256}")
        else:
            a(f"buffer_store_dwordx2 {vr(8+2*qd,2)}, v29, s[16:19], s38 offen offset:{(qd//2)*256 + 8}")
    a("s_endpgm")
```

```python
from asmlib import *
from layout import *

K3_NS = 7
K3_LDS = K3_NS * 20480
K3_VGPR = 200

def gen_k3(a, name):
    kernel_begin(a, name)
    VL = 2
    NS = K3_NS
    WGA = 8
    RB = 13
    L16 = 3; GV = 4; OA = 5
    ACC = 16
    WF = 40
    OF = 80
    a(f"""
s_cmp_ge_u32 s2, 256
s_cbranch_scc1 L_k3_end
s_load_dwordx2 s[4:5], s[0:1], 16
s_load_dwordx2 s[6:7], s[0:1], 48
s_load_dwordx2 s[24:25], s[0:1], 64
s_load_dwordx2 s[22:23], s[0:1], 80
v_lshrrev_b32 v1, 6, v0
v_and_b32 v2, 63, v0
v_readfirstlane_b32 s32, v1
s_and_b32 s36, s2, 7
s_lshr_b32 s37, s2, 3
s_and_b32 s30, s36, 3
s_lshl_b32 s30, s30, 3
s_and_b32 s38, s37, 7
s_add_u32 s30, s30, s38
s_lshr_b32 s31, s36, 2
s_lshl_b32 s31, s31, 2
s_lshr_b32 s38, s37, 3
s_add_u32 s31, s31, s38
v_lshlrev_b32 v{L16}, 4, v{VL}
s_lshl_b32 s44, s30, 2
s_add_u32 s44, s44, s32
s_mul_i32 s40, s44, 20480
s_add_u32 s40, s40, {OAF}
s_mul_i32 s41, s32, {32*1280}
s_mul_i32 s42, s32, 5120
s_mul_i32 s39, s31, 160
""")
    for i in range(5):
        a(f"""v_add_u32 v6, {64*i}, v{VL}
v_mul_u32_u24 v7, 6554, v6
v_lshrrev_b32 v7, 16, v7
v_mul_u32_u24 v36, 10, v7
v_sub_u32 v6, v6, v36
v_bfe_u32 v36, v7, 2, 2
v_lshlrev_b32 v36, 3, v36
v_lshrrev_b32 v37, 4, v7
v_lshl_add_u32 v36, v37, 2, v36
v_and_b32 v37, 3, v7
v_add_u32 v36, v36, v37
v_mul_u32_u24 v36, 1280, v36
v_lshl_add_u32 v36, v6, 4, v36
v_add_u32 v{WGA+i}, s39, v36""")
    a("s_waitcnt lgkmcnt(0)")
    srd(a, 8, 4, WO_BYTES); srd(a, 12, 6, WO_BYTES); srd(a, 16, 22, WS_BYTES); srd(a, 48, 24, OUT_BYTES)
    def loads(st):
        slot = st % NS
        srdw = "s[8:11]" if st < 5 else "s[12:15]"
        a(f"s_add_u32 s43, s41, {(st%5)*128*1280}")
        for i in range(5):
            a(f"""s_add_u32 m0, s42, {slot*20480 + i*1024}
s_nop 0
buffer_load_dwordx4 v{WGA+i}, {srdw}, s43 offen lds""")
        a(f"s_add_u32 s43, s40, {(st%5)*4096 + (0 if st < 5 else OBF - OAF)}")
        for i in range(4):
            a(f"buffer_load_dwordx4 {vr(OF+16*slot+4*i,4)}, v{L16}, s[16:19], s43 offen offset:{i*1024}")
    a(f"""
s_lshl_b32 s38, s44, 6
s_add_u32 s38, s38, {GATE}
v_and_b32 v6, 15, v{VL}
v_lshlrev_b32 v7, 2, v6
buffer_load_dword v{GV}, v7, s[16:19], s38 offen
""")
    for st in range(NS - 1):
        loads(st)
    a(f"""
v_lshrrev_b32 v7, 2, v{VL}
v_mul_u32_u24 v7, 160, v7
v_and_b32 v36, 3, v{VL}
v_mul_u32_u24 v36, 40, v36
v_add_u32 v{RB}, v7, v36
v_add_u32 v{RB+1}, 61440, v{RB}
v_add_u32 v{RB+2}, 122880, v{RB}
s_lshl_b32 s38, s44, 4
v_add_u32 v6, s38, v6
v_mul_u32_u24 v6, 1280, v6
v_lshrrev_b32 v7, 4, v{VL}
v_mul_u32_u24 v7, 40, v7
v_add3_u32 v{OA}, v6, v7, s39
""")
    for i in range(20):
        a(f"v_mov_b32 v{ACC+i}, 0")
    def reads(st, ks, b):
        slot = st % NS
        for t in range(5):
            for aa in range(2):
                a(f"ds_read_b64_tr_b16 {vr(WF+20*b+4*t+2*aa,2)}, v{RB+slot//3} offset:{(slot%3)*20480 + ks*5120 + aa*2560 + t*8}")
    for st in range(10):
        rem = min(NS - 2, 9 - st)
        a(f"s_waitcnt vmcnt({9*rem})")
        a("s_barrier")
        reads(st, 0, 0)
        if st + NS - 1 < 10:
            loads(st + NS - 1)
        if st == 5:
            for i in range(20):
                a(f"v_mul_f32 v{ACC+i}, v{ACC+i}, v{GV}")
        for ks in range(4):
            b = ks & 1
            if ks < 3:
                reads(st, ks + 1, 1 - b)
                a("s_waitcnt lgkmcnt(10)")
            else:
                a("s_waitcnt lgkmcnt(0)")
            for t in range(5):
                a(f"v_mfma_f32_16x16x32_bf16 {vr(ACC+4*t,4)}, {vr(WF+20*b+4*t,4)}, {vr(OF+16*(st%NS)+4*ks,4)}, {vr(ACC+4*t,4)}")
    a("s_nop 7")
    for e in range(10):
        a(f"v_cvt_pk_bf16_f32 v{WF+e}, v{ACC+2*e}, v{ACC+2*e+1}")
    a(f"""
buffer_store_dwordx4 {vr(WF,4)}, v{OA}, s[48:51], 0 offen
buffer_store_dwordx4 {vr(WF+4,4)}, v{OA}, s[48:51], 0 offen offset:16
buffer_store_dwordx2 {vr(WF+8,2)}, v{OA}, s[48:51], 0 offen offset:32
""")
    a.label("L_k3_end")
    a("s_endpgm")
```

```python
QIMG   = 0x0000000
KVIMG  = 0x0280000
XFRAG  = 0x0790000
WBF    = 0x0A10000
KVACC  = 0x0C90000
GATE   = 0x0CB0000
OAF    = 0x0CC0000
OBF    = 0x0F40000
WS_BYTES = 0x1200000
X_BYTES = 2048*640*2
WQKV_BYTES = 640*1920*2
WO_BYTES = 640*640*2
WPHI_BYTES = 32*20*20*2
GATEW_BYTES = 640*2
OUT_BYTES = 2048*640*2
import math, struct
def f32hex(x):
    return hex(struct.unpack("<I", struct.pack("<f", x))[0])
LOG2E = math.log2(math.e)
QSCALE = LOG2E / math.sqrt(20.0)
```

```python
import sys
from asmlib import *
from layout import *
import k1, k2, k3
NAME = "gated_mix__mha_block__linear_kernel_hedgehog__prompt"
def build():
    ref = open(f"cdna_kernels/{NAME}.s.ref").read().split("\n")
    head = [l for l in ref if l.startswith(";") and "@launch" not in l and "Override launch" not in l and "grid=ceil" not in l]
    a = Asm()
    for l in head: a.raw(l)
    a.raw(f"; @launch kernel=qkv_kernel grid=(256,1,1) block=(512,1,1) lds={k1.K1_LDS}")
    a.raw(f"; @launch kernel=attn_kernel grid=(768,1,1) block=(256,1,1) lds={k2.K2_LDS}")
    a.raw(f"; @launch kernel=proj_kernel grid=(256,1,1) block=(256,1,1) lds={k3.K3_LDS}")
    a.raw('.amdgcn_target "amdgcn-amd-amdhsa--gfx950"\n.text')
    k1.gen_k1(a, "qkv_kernel")
    k2.gen_k2(a, "attn_kernel")
    k3.gen_k3(a, "proj_kernel")
    a.raw('.section .rodata,"a"')
    a.raw(kernel_desc("qkv_kernel", k1.K1_VGPR, 80))
    a.raw(kernel_desc("attn_kernel", k2.K2_VGPR, 80))
    a.raw(kernel_desc("proj_kernel", k3.K3_VGPR, 80))
    return a.text()
if __name__ == "__main__":
    out = sys.argv[1] if len(sys.argv) > 1 else f"cdna_kernels/{NAME}.s"
    open(out, "w").write(build())
```

```python
class Asm:
    def __init__(self):
        self.lines = []
        self.nlabel = 0
    def __call__(self, s):
        for ln in s.strip("\n").split("\n"):
            self.lines.append("    " + ln.strip() if not ln.strip().endswith(":") else ln.strip())
    def raw(self, s):
        self.lines.append(s)
    def label(self, name):
        self.lines.append(name + ":")
    def newlabel(self, base):
        self.nlabel += 1
        return f"L_{base}_{self.nlabel}"
    def text(self):
        return "\n".join(self.lines) + "\n"

def vr(b, n=1):
    return f"v{b}" if n == 1 else f"v[{b}:{b+n-1}]"
def sr(b, n=1):
    return f"s{b}" if n == 1 else f"s[{b}:{b+n-1}]"

def srd(a, d, base, nbytes):
    a(f"""s_mov_b32 s{d}, s{base}
s_mov_b32 s{d+1}, s{base+1}
s_mov_b32 s{d+2}, {hex(nbytes)}
s_mov_b32 s{d+3}, 0x20000""")

def kernel_begin(a, name):
    a.raw(f".globl {name}\n.p2align 8\n.type {name},@function\n{name}:")

def kernel_desc(name, vgpr, sgpr=102):
    acc = (vgpr + 3) // 4 * 4
    return f""".p2align 6
.amdhsa_kernel {name}
  .amdhsa_next_free_vgpr {vgpr}
  .amdhsa_next_free_sgpr {sgpr}
  .amdhsa_accum_offset {acc}
  .amdhsa_group_segment_fixed_size 0
  .amdhsa_kernarg_size 88
  .amdhsa_user_sgpr_count 2
  .amdhsa_user_sgpr_kernarg_segment_ptr 1
  .amdhsa_system_sgpr_workgroup_id_x 1
  .amdhsa_float_denorm_mode_32 3
  .amdhsa_float_denorm_mode_16_64 3
.end_amdhsa_kernel
"""

import os
DIAG = bool(os.environ.get("DIAG"))
from layout import STAMP_BASE
def stamp(a, i):
    if DIAG:
        a(f"s_memrealtime s[{80+2*i}:{81+2*i}]")
def cstamp(a, i):
    if DIAG:
        a(f"s_memtime s[{80+2*i}:{81+2*i}]")
def stamp_init(a):
    if DIAG:
        for i in range(8):
            a(f"s_mov_b64 s[{80+2*i}:{81+2*i}], 0")
def stamp_flush(a, kidx, wave_sgpr, nw, srd_ws=16, keep=False):
    if not DIAG: return
    if not keep: a("s_waitcnt vmcnt(0)")
    a(f"""s_memrealtime s[94:95]
s_waitcnt lgkmcnt(0)
s_mul_i32 s96, s2, {nw}
s_add_u32 s96, s96, s{wave_sgpr}
s_lshl_b32 s96, s96, 5
s_add_u32 s96, s96, {STAMP_BASE + kidx*0x40000}
s_mov_b64 exec, 1
v_mov_b32 v6, 0""")
    for i in range(8):
        a(f"v_mov_b32 v{8+i}, s{80+2*i}")
    a(f"""buffer_store_dwordx4 v[8:11], v6, s[{srd_ws}:{srd_ws+3}], s96 offen
buffer_store_dwordx4 v[12:15], v6, s[{srd_ws}:{srd_ws+3}], s96 offen offset:16
s_mov_b64 exec, -1
s_nop 1""")
```

```python
from asmlib import *
from layout import *

NS = 4
TOP = NS * 32768
BROW = 272
STG = 126976
VL, L16, VN, VH = 2, 3, 4, 5
XG0, XG1, WG = 6, 7, 8
XA = 10
WA = 18
WB = 22
EA = 24
WFB = [40, 48, 248]
LA = 2
ACC = 56
XR = 88
DIST = 3
PHQ_R = 228
OMG = 252
S_XO, S_WO, S_KR, S_LB, S_T, S_PREP, S_WBB = 44, 45, 46, 47, 48, 49, 50

def common_init(a):
    a(f"""
s_and_b32 s{S_XCD}, s2, 7
s_lshr_b32 s{S_J}, s2, 3
v_lshrrev_b32 v1, 6, v0
v_and_b32 v{VL}, 63, v0
v_readfirstlane_b32 s{S_W}, v1
s_and_b32 s{S_MT}, s{S_XCD}, 1
s_lshl_b32 s{S_MT}, s{S_MT}, 3
s_and_b32 s52, s{S_J}, 7
s_add_u32 s{S_MT}, s{S_MT}, s52
s_lshr_b32 s{S_NT}, s{S_XCD}, 1
s_lshl_b32 s{S_NT}, s{S_NT}, 2
s_lshr_b32 s52, s{S_J}, 3
s_add_u32 s{S_NT}, s{S_NT}, s52
s_and_b32 s{S_TT}, s{S_W}, 3
s_lshr_b32 s{S_FH}, s{S_W}, 2
v_lshlrev_b32 v{L16}, 4, v{VL}
v_and_b32 v{VN}, 31, v{VL}
v_lshrrev_b32 v{VH}, 5, v{VL}
""")

def nonce_publish(a):
    lb = a.newlabel("np")
    a(f"""s_mov_b32 s{S_NONCE}, 0
s_xor_b32 s60, s{S_W}, 7
s_or_b32 s60, s2, s60
s_cmp_lg_u32 s60, 0
s_cbranch_scc1 {lb}
s_memrealtime s[60:61]
v_mov_b32 v9, 0
s_waitcnt lgkmcnt(0)
s_or_b32 s60, s60, 1
v_mov_b32 v1, s60
s_mov_b64 exec, 1
buffer_store_dword v1, v9, {q4(SRD_DBG)}, 0 offen sc0 sc1
s_mov_b64 exec, -1""")
    a.label(lb)

def nonce_get(a):
    lp, dn = a.newlabel("ng"), a.newlabel("ngd")
    a(f"""s_cmp_lg_u32 s{S_NONCE}, 0
s_cbranch_scc1 {dn}
v_mov_b32 v0, 0
s_mov_b32 s62, 0x40000""")
    a.label(lp)
    a(f"""buffer_load_dword v1, v0, {q4(SRD_DBG)}, 0 offen sc0 sc1
s_waitcnt vmcnt(0)
v_readfirstlane_b32 s{S_NONCE}, v1
s_cmp_lg_u32 s{S_NONCE}, 0
s_cbranch_scc1 {dn}
s_sleep 8
s_sub_u32 s62, s62, 1
s_cmp_lg_u32 s62, 0
s_cbranch_scc1 {lp}""")
    a.label(dn)

def flag_set(a, off_sgpr):
    a(f"""v_mov_b32 v0, 0
v_mov_b32 v1, s{S_NONCE}
s_mov_b64 exec, 1
buffer_store_dword v1, v0, {q4(SRD_WS)}, {off_sgpr} offen sc0 sc1
s_mov_b64 exec, -1""")

def flag_wait(a, off_sgpr, nwords, sleep=10):
    lp, dn = a.newlabel("fw"), a.newlabel("fwd")
    if nwords <= 64:
        a(f"v_min_u32 v0, {nwords-1}, v{VL}\nv_lshlrev_b32 v0, 2, v0")
    a("s_mov_b32 s62, 0x40000")
    a.label(lp)
    if nwords <= 64:
        a(f"""buffer_load_dword v1, v0, {q4(SRD_WS)}, {off_sgpr} offen sc0 sc1
s_waitcnt vmcnt(0)
v_cmp_ne_u32 vcc, s{S_NONCE}, v1""")
    else:
        a(f"""buffer_load_dwordx4 v[36:39], v{L16}, {q4(SRD_WS)}, {off_sgpr} offen sc0 sc1
s_waitcnt vmcnt(0)
v_xor_b32 v36, s{S_NONCE}, v36
v_xor_b32 v37, s{S_NONCE}, v37
v_xor_b32 v38, s{S_NONCE}, v38
v_xor_b32 v39, s{S_NONCE}, v39
v_or3_b32 v36, v36, v37, v38
v_or_b32 v36, v36, v39
v_cmp_ne_u32 vcc, 0, v36""")
    a(f"""s_nop 3
s_cmp_eq_u64 vcc, 0
s_cbranch_scc1 {dn}
s_sleep {sleep}
s_sub_u32 s62, s62, 1
s_cmp_lg_u32 s62, 0
s_cbranch_scc1 {lp}""")
    a.label(dn)

def wb_flag_set(a):
    nonce_get(a)
    a(f"""s_lshl_b32 s60, s{S_P}, 5
s_add_u32 s60, s60, s{S_BLK}
s_lshl_b32 s60, s60, 2
s_add_u32 s60, s60, {FL_WB}""")
    flag_set(a, "s60")
def wb_flag_wait(a):
    nonce_get(a)
    a(f"""s_lshl_b32 s60, s{S_NT}, 7
s_add_u32 s60, s60, {FL_WB}""")
    flag_wait(a, "s60", 20)

VM = []
def vm_after(tag):
    idx = max(i for i, t in enumerate(VM) if t == tag)
    return len(VM) - 1 - idx

def dma_piece(a, st, i):
    slot = st % NS
    if i < 2:
        if st >= 10: return
        a(f"""s_add_u32 m0, s{S_LB}, {slot*32768 + 1024*i}
s_lshl_b32 s{S_XO}, s{S_KR}, 7
buffer_load_dwordx4 v{XG0+i}, {q4(SRD_X)}, s{S_XO} offen lds""")
    elif st < 10:
        a(f"s_add_u32 m0, s{S_LB}, {slot*32768 + 16384 + 1024*(i-2)}")
        a(f"s_mul_i32 s{S_WO}, s{S_KR}, {64*3840}" if i == 2 else f"s_add_u32 s{S_WO}, s{S_WO}, {4*3840}")
        a(f"buffer_load_dwordx4 v{WG}, {q4(SRD_WA)}, s{S_WO} offen lds")
    else:
        if i == 2: a(f"s_lshl_b32 s{S_WO}, s{S_KR}, 14")
        a(f"s_add_u32 m0, s{S_LB}, {slot*32768 + 16384 + 1024*(i-2)}")
        a(f"s_add_u32 s{S_WO}, s{S_WO}, s{S_WBB}" if i == 2 else f"s_add_u32 s{S_WO}, s{S_WO}, 1024")
        a(f"buffer_load_dwordx4 v{L16}, {q4(SRD_WS)}, s{S_WO} offen lds")
    if i == 3:
        a(f"""s_add_u32 s{S_KR}, s{S_KR}, 1
s_cmp_eq_u32 s{S_KR}, 10
s_cselect_b32 s{S_KR}, 0, s{S_KR}""")
    VM.append(("dma", st))
def dma(a, st):
    for i in range(4): dma_piece(a, st, i)

def reads(a, g):
    st, ks, wf = g >> 2, g & 3, WFB[g % 3]
    slot = st % NS
    hi = slot >= 2
    so = (slot & 1) * 32768
    if st < 10:
        a(f"ds_read_b128 {vr(XR+4*g,4)}, v{XA+4*hi+ks} offset:{so}")
        for ft in range(2):
            for aa in range(2):
                a(f"ds_read_b64_tr_b16 {vr(wf+4*ft+2*aa,2)}, v{WA+2*hi+ft} offset:{so + (16*ks+4*aa)*256}")
    elif st < 20:
        for ft in range(2):
            a(f"ds_read_b128 {vr(wf+4*ft,4)}, v{WB+hi} offset:{so + ks*4096 + ft*1024}")
def nreads(g):
    return 5 if g < 40 else 2 if g < 80 else 0

def enter_stage(a, st):
    n = vm_after(("dma", st))
    if st < 2:
        l1, l2 = a.newlabel("es"), a.newlabel("es")
        a(f"""s_cmp_eq_u32 s{S_PREP}, 0
s_cbranch_scc1 {l1}
s_waitcnt vmcnt({n+8})
s_branch {l2}""")
        a.label(l1)
        a(f"s_waitcnt vmcnt({n})")
        a.label(l2)
    else:
        a(f"s_waitcnt vmcnt({n})")
    if st == 0: stamp(a, 6)
    a("s_barrier")

def steps(a, g0, g1, swapped, hooks):
    for g in range(g0, g1):
        wf = WFB[g % 3]
        nst = (g + LA) >> 2
        if (g + LA) & 3 == 0 and nst < 20:
            enter_stage(a, nst)
        reads(a, g + LA)
        if (g + LA) & 3 == 0 and nst in hooks: hooks[nst]()
        a(f"s_waitcnt lgkmcnt({sum(nreads(g+i) for i in range(1, LA+1))})")
        for ft in range(2):
            A, B = vr(wf+4*ft,4), vr(XR+4*(g%40),4)
            if swapped: A, B = B, A
            c = "0" if g % 40 == 0 else vr(ACC+16*ft,16)
            a(f"v_mfma_f32_32x32x16_bf16 {vr(ACC+16*ft,16)}, {A}, {B}, {c}")
        ds, pc = ((g + LA) >> 2) + DIST - 1, (g + LA) & 3
        if ds < 20:
            dma_piece(a, ds, pc)

def swap23(a, dst, src, tmp):
    a(f"""v_and_b32 v{dst}, 0x13, v{src}
v_bfe_u32 v{tmp}, v{src}, 2, 1
v_lshl_or_b32 v{dst}, v{tmp}, 3, v{dst}
v_bfe_u32 v{tmp}, v{src}, 3, 1
v_lshl_or_b32 v{dst}, v{tmp}, 2, v{dst}""")

AF, GT, PM, PL, IA, IB, D = 96, 132, 140, 152, 164, 176, 188
S_U, S_P, S_BLK = 51, 52, 53
def prep_issue(a):
    a(f"""
s_mul_i32 s{S_P}, s{S_U}, 3277
s_lshr_b32 s{S_P}, s{S_P}, 16
s_mul_i32 s{S_BLK}, s{S_P}, 20
s_sub_u32 s{S_BLK}, s{S_U}, s{S_BLK}
s_mul_i32 s54, s{S_P}, 1600
s_lshl_b32 s55, s{S_W}, 11
s_add_u32 s55, s55, {TOP}
v_cmp_gt_u32 vcc, 36, v{VL}
v_mov_b32 v37, {OOB}
s_mov_b32 m0, s55
v_cndmask_b32 v36, v37, v{L16}, vcc
buffer_load_dwordx4 v{L16}, {q4(SRD_PHI)}, s54 offen lds
buffer_load_dwordx4 v36, {q4(SRD_PHI)}, s54 offen offset:1024 lds
""")
    swap23(a, 36, VN, 38)
    a(f"""
v_mul_u32_u24 v36, 3840, v36
v_lshl_add_u32 v36, v{VH}, 4, v36
v_cmp_eq_u32 vcc, 0, v{VH}
s_mul_i32 s54, s{S_BLK}, {32*3840}
s_mul_i32 s56, s{S_P}, 80
s_add_u32 s54, s54, s56
v_cndmask_b32 v37, v37, v36, vcc
v_lshlrev_b32 v38, 4, v{VH}
s_lshl_b32 s56, s{S_BLK}, 6
""")
    for seg in range(3):
        for u in range(3):
            a(f"buffer_load_dwordx4 {vr(AF+4*(3*seg+u),4)}, v{37 if u==2 else 36}, {q4(SRD_WB)}, s54 offen offset:{1280*seg+32*u}")
    a(f"""buffer_load_dwordx4 {vr(GT,4)}, v38, {q4(SRD_GATE)}, s56 offen
buffer_load_dwordx4 {vr(GT+4,4)}, v38, {q4(SRD_GATE)}, s56 offen offset:32""")

def prep_compute(a, nyounger):
    a(f"""
v_bfe_u32 v36, v{VL}, 2, 2
v_lshl_add_u32 v36, v{VH}, 3, v36
v_and_b32 v37, 1, v{VL}
v_mul_u32_u24 v37, 20, v37
v_sub_u32 v38, v36, v37
v_bfe_u32 v39, v{VL}, 1, 1
v_bfe_u32 v1, v{VL}, 4, 1
v_lshl_add_u32 v39, v1, 1, v39
v_mul_u32_u24 v36, 40, v36
v_add_u32 v36, s55, v36
v_lshl_add_u32 v0, v39, 3, v36
v_cmp_eq_u32 s[58:59], 0, v39
s_add_u32 s57, s55, 1600
v_mov_b32 v37, s57
s_waitcnt vmcnt({nyounger + 11})
""")
    for u in range(3):
        for aa in range(2):
            k0 = 16*u + 4*aa
            a(f"""v_add_u32 v1, {k0}, v38
v_cmp_gt_u32 vcc, 20, v1
v_add_u32 v1, {k0*40}, v0
v_add_u32 v39, {k0*40 + 32}, v36
v_cndmask_b32 v1, v37, v1, vcc
s_and_b64 vcc, vcc, s[58:59]
ds_read_b64_tr_b16 {vr(PM+4*u+2*aa,2)}, v1
v_cndmask_b32 v39, v37, v39, vcc
ds_read_b64_tr_b16 {vr(PL+4*u+2*aa,2)}, v39""")
    a(f"""
v_and_b32 v0, 3, v{VN}
v_lshlrev_b32 v0, 4, v0
v_mov_b32 v36, 0x3f80
v_mov_b32 v37, 0
v_lshlrev_b64 v[36:37], v0, v[36:37]
v_bfe_u32 v0, v{VN}, 2, 1
v_mul_u32_u24 v0, 5, v0
v_lshrrev_b32 v1, 3, v{VN}
v_add_u32 v0, v0, v1
v_lshlrev_b32 v38, 1, v{VH}
v_sub_u32 v0, v0, v38
v_cmp_eq_u32 vcc, 0, v1
v_mov_b32 v38, 99
v_mov_b32 v39, {f32hex(LOG2E)}
v_cndmask_b32 v0, v0, v38, vcc
v_cndmask_b32 v39, 1.0, v39, vcc
v_cmp_eq_u32 s[58:59], 3, v1
""")
    for u in range(3):
        for aa in range(2):
            kq = 4*u + aa
            a(f"""v_cmp_eq_u32 vcc, {kq+1}, v0
s_nop 1
v_cndmask_b32 v{IA+4*u+2*aa}, 0, v36, vcc
v_cndmask_b32 v{IA+4*u+2*aa+1}, 0, v37, vcc
v_cmp_eq_u32 vcc, {kq-2}, v0
s_nop 1
v_cndmask_b32 v{IB+4*u+2*aa}, 0, v36, vcc
v_cndmask_b32 v{IB+4*u+2*aa+1}, 0, v37, vcc""")
    a(f"""
s_mul_i32 s54, s{S_P}, {40*4096}
s_lshl_b32 s56, s{S_BLK}, 13
s_add_u32 s54, s54, s56
s_add_u32 s54, s54, {WBF}
s_add_u32 s56, s54, 4096
s_mov_b32 s57, {f32hex(LOG2E)}
s_waitcnt vmcnt({nyounger}) lgkmcnt(0)
""")
    if os.environ.get("PSTAMP"): stamp(a, 5)
    plan = [[(0, PM)], [(0, PL), (2, IA)], [(1, PM)], [(1, PL), (2, IB)]]
    def mm(t):
        d = D + 16*(t & 1)
        first = True
        for seg, fr in plan[t]:
            for u in range(3):
                a(f"v_mfma_f32_32x32x16_bf16 {vr(d,16)}, {vr(AF+4*(3*seg+u),4)}, {vr(fr+4*u,4)}, {'0' if first else vr(d,16)}")
                first = False
    def fin(t):
        d = D + 16*(t & 1)
        for e in range(16):
            a(f"v_mul_f32 v{d+e}, {'s57' if t % 2 == 0 else 'v39'}, v{d+e}")
        for g in range(2):
            r = d + 8*g
            for e in range(4):
                a(f"v_cvt_pk_bf16_f32 v{r+e}, v{r+2*e}, v{r+2*e+1}")
            if t == 3:
                for e in range(4):
                    a(f"v_cndmask_b32 v{r+e}, v{r+e}, v{GT+4*g+e}, s[58:59]")
        a(f"""buffer_store_dwordx4 {vr(d,4)}, v{L16}, {q4(SRD_WS)}, s54 offen offset:{t*1024} sc1
buffer_store_dwordx4 {vr(d+8,4)}, v{L16}, {q4(SRD_WS)}, s56 offen offset:{t*1024} sc1""")
    mm(0); mm(1); a("s_nop 7"); fin(0); a("s_nop 1"); mm(2); fin(1); a("s_nop 1"); mm(3); fin(2); a("s_nop 3"); fin(3)
    lb = a.newlabel("nz")
    a(f"""
s_cmp_lg_u32 s{S_BLK}, 0
s_cbranch_scc1 {lb}
s_lshl_b32 s54, s{S_P}, 13
s_add_u32 s54, s54, {KVACC}
s_add_u32 s56, s54, 4096
v_mov_b32 v{AF}, 0
v_mov_b32 v{AF+1}, 0
v_mov_b32 v{AF+2}, 0
v_mov_b32 v{AF+3}, 0
""")
    for i in range(4):
        a(f"""buffer_store_dwordx4 {vr(AF,4)}, v{L16}, {q4(SRD_WS)}, s54 offen offset:{i*1024} sc1
buffer_store_dwordx4 {vr(AF,4)}, v{L16}, {q4(SRD_WS)}, s56 offen offset:{i*1024} sc1""")
    a.label(lb)

def phi(a, u, dst, EP, T):
    mx, mn, sp, sn = T, T+1, T+2, T+4
    a(f"v_max3_f32 v{mx}, v{u}, v{u+1}, v{u+2}\nv_min3_f32 v{mn}, v{u}, v{u+1}, v{u+2}")
    for e in range(3, 19, 2):
        a(f"v_max3_f32 v{mx}, v{u+e}, v{u+e+1}, v{mx}\nv_min3_f32 v{mn}, v{u+e}, v{u+e+1}, v{mn}")
    a(f"v_max_f32 v{mx}, v{u+19}, v{mx}\nv_min_f32 v{mn}, v{u+19}, v{mn}")
    for e in range(0, 20, 2):
        a(f"v_pk_add_f32 {vr(EP+e,2)}, {vr(mx,2)}, {vr(u+e,2)} op_sel:[1,0] op_sel_hi:[1,1] neg_lo:[0,1] neg_hi:[0,1]")
        a(f"v_pk_add_f32 {vr(u+e,2)}, {vr(u+e,2)}, {vr(mx,2)} op_sel:[0,0] op_sel_hi:[1,0] neg_lo:[0,1] neg_hi:[0,1]")
    for e in range(20):
        a(f"v_exp_f32 v{EP+e}, v{EP+e}\nv_exp_f32 v{u+e}, v{u+e}")
    a(f"v_pk_add_f32 {vr(sp,2)}, {vr(u,2)}, {vr(u+2,2)}\nv_pk_add_f32 {vr(sn,2)}, {vr(EP,2)}, {vr(EP+2,2)}")
    for e in range(4, 20, 2):
        a(f"v_pk_add_f32 {vr(sp,2)}, {vr(sp,2)}, {vr(u+e,2)}\nv_pk_add_f32 {vr(sn,2)}, {vr(sn,2)}, {vr(EP+e,2)}")
    a(f"""v_add_f32 v{sp}, v{sp}, v{sp+1}
v_add_f32 v{sp+1}, v{sn}, v{sn+1}
v_rcp_f32 v{sp}, v{sp}
v_rcp_f32 v{sp+1}, v{sp+1}
s_nop 0""")
    for e in range(0, 20, 2):
        a(f"v_pk_mul_f32 {vr(u+e,2)}, {vr(u+e,2)}, {vr(sp,2)} op_sel:[0,0] op_sel_hi:[1,0]")
        a(f"v_pk_mul_f32 {vr(EP+e,2)}, {vr(EP+e,2)}, {vr(sp,2)} op_sel:[0,1] op_sel_hi:[1,1]")
    for e in range(10):
        a(f"v_cvt_pk_bf16_f32 v{dst+e}, v{u+2*e}, v{u+2*e+1}\nv_cvt_pk_bf16_f32 v{dst+10+e}, v{EP+2*e}, v{EP+2*e+1}")

def gen_p12(a, after_gemm=None, pre_attn=None):
    nonce_publish(a)
    a(f"""
s_mul_i32 s{S_U}, s{S_MT}, 15
s_add_u32 s{S_U}, s{S_U}, s{S_NT}
s_cmp_eq_u32 s{S_W}, 0
s_cselect_b32 s{S_PREP}, 1, 0
s_cmp_lg_u32 s{S_NT}, 15
s_cbranch_scc1 L_p_sel
s_mul_i32 s{S_U}, s{S_MT}, 5
s_add_u32 s{S_U}, s{S_U}, s{S_W}
s_add_u32 s{S_U}, s{S_U}, 240
s_cmp_lt_u32 s{S_W}, 5
s_cselect_b32 s{S_PREP}, 1, 0
L_p_sel:
s_cmp_eq_u32 s{S_PREP}, 0
s_cbranch_scc1 L_p_noissue
""")
    prep_issue(a)
    a.label("L_p_noissue")
    a(f"""
s_lshr_b32 s54, s{S_J}, 3
s_mul_i32 s54, s54, 5
s_add_u32 s54, s54, 1
s_lshr_b32 s54, s54, 1
s_and_b32 s56, s{S_J}, 7
s_add_u32 s{S_KR}, s54, s56
s_sub_u32 s54, s{S_KR}, 10
s_cmp_ge_u32 s{S_KR}, 10
s_cselect_b32 s{S_KR}, s54, s{S_KR}
{f"s_mov_b32 s{S_KR}, 0" if os.environ.get("NOROT") else ""}
v_lshrrev_b32 v36, 3, v{VL}
s_lshl_b32 s54, s{S_MT}, 7
s_lshl_b32 s56, s{S_W}, 4
s_add_u32 s54, s54, s56
v_add_u32 v36, s54, v36
v_mul_u32_u24 v36, 1280, v36
v_lshrrev_b32 v37, 4, v{VL}
v_and_b32 v38, 7, v{VL}
v_xor_b32 v38, v38, v37
v_lshlrev_b32 v38, 4, v38
v_add_u32 v{XG0}, v36, v38
v_xor_b32 v38, 64, v38
v_add_u32 v{XG1}, v36, v38
v_add_u32 v{XG1}, {8*1280}, v{XG1}
s_lshl_b32 s54, s{S_W}, 3
v_add_u32 v36, s54, v37
v_mul_u32_u24 v36, 3840, v36
v_and_b32 v38, 15, v{VL}
v_lshlrev_b32 v37, 2, v37
v_xor_b32 v38, v38, v37
v_lshlrev_b32 v38, 4, v38
v_add_u32 v36, v36, v38
s_lshl_b32 s54, s{S_NT}, 8
s_cmp_eq_u32 s{S_NT}, 15
s_cselect_b32 s54, 0x70000000, s54
v_add_u32 v{WG}, s54, v36
s_lshl_b32 s{S_LB}, s{S_W}, 11
s_mul_i32 s{S_WBB}, s{S_NT}, {40*4096}
s_add_u32 s{S_WBB}, s{S_WBB}, s{S_LB}
s_add_u32 s{S_WBB}, s{S_WBB}, {WBF}
""")
    VM.clear()
    a("s_barrier")
    dma(a, 0)
    a("s_barrier")
    dma(a, 1)
    a(f"""
s_lshl_b32 s54, s{S_TT}, 12
v_lshlrev_b32 v36, 7, v{VN}
v_add_u32 v36, s54, v36
v_bfe_u32 v37, v{VN}, 1, 3
v_xor_b32 v37, v37, v{VH}
""")
    for ks in range(4):
        a(f"""v_xor_b32 v38, {2*ks}, v37
v_lshl_add_u32 v{XA+ks}, v38, 4, v36
v_add_u32 v{XA+4+ks}, 0x10000, v{XA+ks}""")
    a(f"""
v_bfe_u32 v36, v{VL}, 2, 2
v_lshl_add_u32 v37, v{VH}, 3, v36
v_lshlrev_b32 v37, 8, v37
v_add_u32 v37, 16384, v37
v_and_b32 v38, 1, v{VL}
v_bfe_u32 v1, v{VL}, 1, 1
s_cmp_ge_u32 s{S_NT}, 10
s_cselect_b64 vcc, -1, 0
v_cndmask_b32 v0, v1, v38, vcc
v_cndmask_b32 v1, v38, v1, vcc
v_lshl_add_u32 v37, v0, 3, v37
v_bfe_u32 v38, v{VL}, 4, 1
v_lshl_add_u32 v38, v38, 1, v1
s_lshl_b32 s54, s{S_FH}, 3
v_add_u32 v38, s54, v38
v_lshlrev_b32 v36, 2, v36
v_xor_b32 v38, v38, v36
v_lshl_add_u32 v{WA}, v38, 4, v37
v_xor_b32 v38, 4, v38
v_lshl_add_u32 v{WA+1}, v38, 4, v37
v_add_u32 v{WA+2}, 0x10000, v{WA}
v_add_u32 v{WA+3}, 0x10000, v{WA+1}
s_lshl_b32 s54, s{S_FH}, 11
s_add_u32 s54, s54, 16384
v_add_u32 v{WB}, s54, v{L16}
v_add_u32 v{WB+1}, 0x10000, v{WB}
s_lshl_b32 s{S_T}, s{S_MT}, 2
s_add_u32 s{S_T}, s{S_T}, s{S_TT}
s_cmp_eq_u32 s{S_PREP}, 0
s_cbranch_scc1 L_p_nocomp
""")
    prep_compute(a, 8)
    a.label("L_p_nocomp")
    a(f"v_mov_b32 v0, 0\nbuffer_load_dword v35, v0, {q4(SRD_DBG)}, 0 offen sc0 sc1")
    VM.append("nonce")
    for i in range(LA): dma_piece(a, 2, i)
    VM0 = list(VM)
    a(f"""
s_cmp_ge_u32 s{S_NT}, 10
s_cbranch_scc1 L_p1_v
""")
    def h_pub():
        lb = a.newlabel("pa")
        a(f"v_readfirstlane_b32 s{S_NONCE}, v35")
        a(f"s_cmp_eq_u32 s{S_PREP}, 0\ns_cbranch_scc1 {lb}")
        wb_flag_set(a)
        a.label(lb)
    def h_wb():
        lb = a.newlabel("pw")
        a(f"s_cmp_lg_u32 s{S_W}, 7\ns_cbranch_scc1 {lb}")
        wb_flag_wait(a)
        a.label(lb)
    hooks1 = {2: h_pub, 3: lambda: stamp(a, 2), 7: h_wb, 9: lambda: stamp(a, 3)}
    def p1(swapped):
        VM[:] = VM0
        enter_stage(a, 0)
        stamp(a, 1)
        for i in range(LA): reads(a, i)
        steps(a, 0, 40, swapped, hooks1)
    a(f"""
s_cmp_ge_u32 s{S_NT}, 5
s_cselect_b32 s54, 5, 0
s_sub_u32 s54, s{S_NT}, s54
s_lshl_b32 s54, s54, 4
s_lshl_b32 s56, s{S_FH}, 3
s_add_u32 s54, s54, s56
s_cmp_ge_u32 s{S_NT}, 5
s_mov_b32 s56, {64*1280}
s_cselect_b32 s58, {64*2560}, s56
s_mov_b32 s56, 1280
s_cselect_b32 s59, 2560, s56
s_mov_b32 s56, {QIMG}
s_cselect_b32 s63, {KVIMG}, s56
s_mov_b32 s56, {f32hex(QSCALE)}
s_cselect_b32 s64, 1.0, s56
s_cselect_b64 vcc, -1, 0
s_mul_i32 s59, s59, s{S_T}
s_add_u32 s63, s63, s59
s_lshl_b32 s59, s58, 1
s_sub_u32 s65, s58, 1536
""")
    swap23(a, 36, VN, 37)
    a(f"""
v_cndmask_b32 v36, v{VN}, v36, vcc
v_add_u32 v38, s54, v{VH}
v_mov_b32 v39, {OOB}
""")
    for j in range(4):
        a(f"""v_add_u32 v0, {2*j}, v38
v_mul_u32_u24 v1, 205, v0
v_lshrrev_b32 v1, 10, v1
v_mul_u32_u24 v37, 5, v1
v_sub_u32 v0, v0, v37
v_mul_lo_u32 v1, v1, s59
v_add_u32 v1, s63, v1
v_cmp_lt_u32 vcc, 2, v0
v_lshl_add_u32 v37, v0, 9, v1
v_lshl_add_u32 v37, v36, 4, v37
v_add_u32 v{EA+j}, s65, v37
v_cndmask_b32 v37, v37, v{EA+j}, vcc
v_cmp_eq_u32 vcc, 2, v0
v_lshl_add_u32 v1, v36, 3, v1
s_nop 0
v_cndmask_b32 v{EA+j}, v37, v39, vcc
v_cndmask_b32 v{EA+4+j}, v39, v1, vcc""")
    p1(False)
    a("s_nop 7\ns_nop 3")
    for j in range(4):
        r = ACC + 8*j
        for e in range(0, 8, 2):
            a(f"v_pk_mul_f32 {vr(r+e,2)}, {vr(r+e,2)}, s[64:65] op_sel_hi:[1,0]")
        for e in range(4):
            a(f"v_cvt_pk_bf16_f32 v{r+e}, v{r+2*e}, v{r+2*e+1}")
        a(f"""buffer_store_dwordx4 {vr(r,4)}, v{EA+j}, {q4(SRD_WS)}, 0 offen sc1
buffer_store_dwordx2 {vr(r,2)}, v{EA+4+j}, {q4(SRD_WS)}, 0 offen offset:1024 sc1
buffer_store_dwordx2 {vr(r+2,2)}, v{EA+4+j}, {q4(SRD_WS)}, s58 offen offset:1024 sc1""")
    a("s_branch L_p2")
    a.label("L_p1_v")
    a(f"""
s_sub_u32 s54, s{S_NT}, 10
s_lshl_b32 s54, s54, 7
s_lshl_b32 s56, s{S_FH}, 6
s_add_u32 s54, s54, s56
s_mul_i32 s63, s{S_T}, 2560
s_add_u32 s63, s63, {KVIMG + 1280}
s_mov_b32 s58, {64*2560}
s_cmp_eq_u32 s{S_NT}, 15
s_cselect_b32 s59, {OOB}, 0
v_mul_u32_u24 v36, 320, v{VH}
v_add_u32 v36, s63, v36
v_add_u32 v38, s54, v{VN}
""")
    for ft in range(2):
        a(f"""v_add_u32 v0, {32*ft}, v38
v_mul_u32_u24 v1, 3277, v0
v_lshrrev_b32 v1, 16, v1
v_mul_u32_u24 v37, 20, v1
v_sub_u32 v0, v0, v37
v_mul_lo_u32 v1, v1, s58
v_lshl_add_u32 v1, v0, 4, v1
v_add_u32 v{EA+ft}, v1, v36
v_max_u32 v{EA+ft}, s59, v{EA+ft}""")
    p1(True)
    a("s_nop 7\ns_nop 7")
    for ft in range(2):
        for g in range(2):
            r = ACC + 16*ft + 8*g
            for e in range(4):
                a(f"v_cvt_pk_bf16_f32 v{r+e}, v{r+2*e}, v{r+2*e+1}")
            a(f"buffer_store_dwordx4 {vr(r,4)}, v{EA+ft}, {q4(SRD_WS)}, 0 offen offset:{640*g} sc1")
    VM.extend(["epi"] * 4)
    a.label("L_p2")
    QST = 12
    def h_qkv():
        lb = a.newlabel("qa")
        assert vm_after("epi") >= vm_after(("dma", QST))
        a(f"s_cmp_lg_u32 s{S_W}, 7\ns_cbranch_scc1 {lb}")
        a(f"s_lshl_b32 s60, s2, 2\ns_add_u32 s60, s60, {FL_QKV}")
        flag_set(a, "s60")
        a.label(lb)
    stamp(a, 4)
    hooks2 = {QST: h_qkv}
    if pre_attn: hooks2[19] = pre_attn
    steps(a, 40, 80, False, hooks2)
    if not os.environ.get("PSTAMP"): stamp(a, 5)
    a("s_barrier")
    if after_gemm: after_gemm()
    else: a("s_nop 7\ns_nop 3")
    phi(a, ACC, PHQ_R, 168, 188)
    a(f"""
s_lshl_b32 s54, s{S_TT}, 5
v_add_u32 v36, s54, v{VN}
v_mul_u32_u24 v36, {BROW}, v36
v_add_u32 v36, {STG}, v36
v_mul_u32_u24 v37, 80, v{VH}
v_add_u32 v37, v37, v36
v_mul_u32_u24 v38, 48, v{VH}
v_add_u32 v38, v38, v36
""")
    for e in range(6):
        a(f"v_cvt_pk_bf16_f32 v{168+e}, v{ACC+20+2*e}, v{ACC+21+2*e}")
    a(f"""
s_cmp_eq_u32 s{S_FH}, 0
s_cbranch_scc0 L_b_k
ds_write_b128 v38, v[168:171] offset:160
ds_write_b64 v38, v[172:173] offset:176
v_mov_b32 v{PHQ_R+20}, 0
v_mov_b32 v{PHQ_R+21}, 0
v_mov_b32 v{PHQ_R+22}, 0
v_mov_b32 v{PHQ_R+23}, 0
s_nop 1
""")
    for g in range(3):
        for e in range(4):
            a(f"v_permlane32_swap_b32 v{PHQ_R+8*g+e}, v{PHQ_R+8*g+4+e}")
    a(f"""
s_waitcnt lgkmcnt(0)
s_barrier
ds_read_b32 v{OMG}, v36 offset:256
s_waitcnt lgkmcnt(0)
s_branch L_b_done
L_b_k:
v_mul_f32 v{ACC+28}, {f32hex(-LOG2E)}, v{ACC+28}
v_exp_f32 v{ACC+28}, v{ACC+28}
v_mov_b32 v172, 0x3f80
v_add_f32 v{ACC+28}, 1.0, v{ACC+28}
v_rcp_f32 v{ACC+28}, v{ACC+28}
v_mov_b32 v173, 0
ds_write_b64 v38, v[168:169] offset:184
ds_write_b128 v38, v[170:173] offset:192
v_sub_f32 v39, 1.0, v{ACC+28}
""")
    for i in range(5):
        a(f"ds_write_b128 v37, {vr(PHQ_R+4*i,4)} offset:{16*i}")
    a(f"""
ds_write_b32 v36, v39 offset:256
s_lshl_b32 s54, s{S_T}, 7
s_add_u32 s54, s54, {GATE}
v_lshlrev_b32 v0, 2, v{VN}
s_cmp_eq_u32 s{S_NT}, 0
s_cselect_b32 s56, 32, 0
v_cmp_gt_u32 vcc, s56, v{VL}
v_mov_b32 v39, {OOB}
s_and_b32 s57, s{S_W}, 1
v_cndmask_b32 v0, v39, v0, vcc
buffer_store_dword v{ACC+28}, v0, {q4(SRD_WS)}, s54 offen sc1
s_bfe_u32 s58, s{S_W}, 0x10001
v_bfe_u32 v36, v{VL}, 2, 2
v_lshl_add_u32 v36, v{VH}, 3, v36
v_mul_u32_u24 v36, {BROW}, v36
v_bfe_u32 v37, v{VL}, 4, 1
v_lshl_add_u32 v36, v37, 5, v36
v_and_b32 v37, 3, v{VL}
v_lshl_add_u32 v36, v37, 3, v36
s_mul_i32 s54, s57, 48
s_add_u32 s54, s54, {160 + STG}
v_add_u32 v37, s54, v36
s_mul_i32 s54, s57, 80
s_lshl_b32 s56, s58, 6
s_add_u32 s54, s54, s56
s_add_u32 s54, s54, {STG}
v_add_u32 v38, s54, v36
s_waitcnt lgkmcnt(0)
s_barrier
""")
    KD, FR = 96, 176
    def kvreads(ks):
        b = FR + 8*(ks % 3)
        for aa in range(2):
            a(f"ds_read_b64_tr_b16 {vr(b+2*aa,2)}, v37 offset:{(16*ks+4*aa)*BROW}")
            a(f"ds_read_b64_tr_b16 {vr(b+4+2*aa,2)}, v38 offset:{(16*ks+4*aa)*BROW}")
    kvreads(0); kvreads(1)
    for ks in range(8):
        b = FR + 8*(ks % 3)
        if ks + 2 < 8: kvreads(ks + 2)
        a(f"s_waitcnt lgkmcnt({4*min(2, 7-ks)})")
        a(f"v_mfma_f32_32x32x16_bf16 {vr(KD,16)}, {vr(b,4)}, {vr(b+4,4)}, {'0' if ks == 0 else vr(KD,16)}")
    a(f"""
s_lshl_b32 s54, s{S_NT}, 1
s_add_u32 s54, s54, s57
s_lshl_b32 s54, s54, 12
s_add_u32 s54, s54, {KVACC}
s_lshl_b32 s56, s58, 5
v_add_u32 v36, s56, v{VN}
v_cmp_gt_u32 vcc, 40, v36
v_lshlrev_b32 v36, 2, v36
v_mul_u32_u24 v37, 640, v{VH}
v_add_u32 v36, v36, v37
v_cndmask_b32 v36, v39, v36, vcc
v_cmp_gt_u32 vcc, 32, v{VL}
s_nop 1
v_cndmask_b32 v37, v39, v36, vcc
s_nop 3
""")
    for r in range(12):
        ad = 37 if r > 8 else 36
        a(f"buffer_atomic_add_f32 v{KD+r}, v{ad}, {q4(SRD_WS)}, s54 offen offset:{(8*(r//4) + r%4)*160}")
    a.label("L_b_done")
```

```python
from asmlib import *
from layout import *
from f1 import VL, L16, VN, VH, PHQ_R, OMG, swap23, flag_set, flag_wait, nonce_get, S_T
SLOT = 10304
HALF = 6 * SLOT
FLG = 159232
import f3
S = [16, 32, 48, 64]; O = [80, 96]
Q1 = [112, 116]; Q2 = [120, 122]
K1 = [124, 128]; K2 = [132, 134]
V = [[136, 140], [144, 148]]
VA = 152; KA1 = 160; KA2 = 161; IDX = 162; DG = 163; L8 = 164; MX = [166, 167]
OA4, OA2, ROWM = 224, 225, 226
RAW = 168
S_HEAD, S_QT, S_MODE, S_WIN, S_M0, S_KVB, S_IT, S_DLT = 66, 67, 68, 69, 70, 71, 72, 73
S_QP, S_KH = S_TT, S_FH

def kv_dma(a, pos):
    a(f"""s_add_u32 m0, s{S_M0}, {pos*2*SLOT}
s_add_u32 s54, s{S_WIN}, 4096
buffer_load_dwordx4 v{DG}, {q4(SRD_WS)}, s{S_WIN} offen lds
buffer_load_dwordx4 v{DG}, {q4(SRD_WS)}, s{S_WIN} offen offset:1024 lds
buffer_load_dwordx4 v{DG}, {q4(SRD_WS)}, s{S_WIN} offen offset:2048 lds
buffer_load_dwordx4 v{DG}, {q4(SRD_WS)}, s{S_WIN} offen offset:3072 lds
s_add_u32 m0, s{S_M0}, {pos*2*SLOT + 4096}
s_add_u32 s{S_WIN}, s{S_WIN}, 20480
buffer_load_dwordx4 v{DG}, {q4(SRD_WS)}, s54 offen lds""")

def attn_issue(a, first):
    if first:
        a(f"""
s_lshr_b32 s54, s{S_J}, 3
s_lshl_b32 s{S_HEAD}, s{S_XCD}, 2
s_add_u32 s{S_HEAD}, s{S_HEAD}, s54
s_and_b32 s54, s{S_J}, 7
s_lshl_b32 s54, s54, 3
s_lshl_b32 s{S_QT}, s{S_QP}, 1
s_add_u32 s{S_QT}, s{S_QT}, s54
s_mul_i32 s{S_KVB}, s{S_HEAD}, {64*2560}
s_add_u32 s{S_KVB}, s{S_KVB}, {KVIMG}
v_lshlrev_b32 v{L8}, 3, v{VN}
v_lshl_add_u32 v{L8}, v{VH}, 2, v{L8}
s_mul_i32 s54, s{S_QP}, 5120
v_add_u32 v{DG}, s54, v{L16}
s_lshr_b32 s{S_M0}, s{S_QP}, 1
s_mul_i32 s{S_M0}, s{S_M0}, {SLOT - 10240}
s_add_u32 s{S_M0}, s{S_M0}, s54
s_mul_i32 s54, s{S_KH}, {HALF}
s_add_u32 s{S_M0}, s{S_M0}, s54
s_mov_b32 s{S_MODE}, 0
""")
        q_issue(a)
    a(f"""
s_mul_i32 s{S_WIN}, s{S_KH}, {32*2560}
s_add_u32 s{S_WIN}, s{S_WIN}, s{S_KVB}
buffer_load_dwordx4 {vr(K1[0],4)}, v{L16}, {q4(SRD_WS)}, s{S_KVB} offen
buffer_load_dword v{K2[0]}, v{L8}, {q4(SRD_WS)}, s{S_KVB} offen offset:1024
buffer_load_dwordx4 {vr(K1[1],4)}, v{L16}, {q4(SRD_WS)}, s{S_WIN} offen
buffer_load_dword v{K2[1]}, v{L8}, {q4(SRD_WS)}, s{S_WIN} offen offset:1024
s_add_u32 s{S_WIN}, s{S_WIN}, 1280
""")
    for pos in range(3):
        kv_dma(a, pos)

def q_issue(a):
    a(f"""
s_mul_i32 s54, s{S_QT}, 1280
s_mul_i32 s55, s{S_HEAD}, {64*1280}
s_add_u32 s54, s54, s55
s_add_u32 s54, s54, {QIMG}
buffer_load_dwordx4 {vr(Q1[0],4)}, v{L16}, {q4(SRD_WS)}, s54 offen
buffer_load_dword v{Q2[0]}, v{L8}, {q4(SRD_WS)}, s54 offen offset:1024
buffer_load_dwordx4 {vr(Q1[1],4)}, v{L16}, {q4(SRD_WS)}, s54 offen offset:1280
buffer_load_dword v{Q2[1]}, v{L8}, {q4(SRD_WS)}, s54 offen offset:2304
""")

def rowmap(a, dst, odd_sgpr_or_const, t1):
    a(f"""v_add_u32 v{t1}, {odd_sgpr_or_const}, v{ROWM}
v_subrev_u32 v{dst}, 20, v{t1}
v_min_u32 v{dst}, v{dst}, v{t1}
v_cmp_gt_u32 vcc, 20, v{ROWM}
s_nop 1
v_cndmask_b32 v{dst}, v{ROWM}, v{dst}, vcc""")

def out_store(a, o, scale, head_s, tile_s, base):
    for i in range(0, 12, 2):
        a(f"v_pk_mul_f32 {vr(o+i,2)}, {vr(o+i,2)}, {vr(scale,2)} op_sel_hi:[1,0]")
    for i in range(6):
        a(f"v_cvt_pk_bf16_f32 v{o+i}, v{o+2*i}, v{o+2*i+1}")
    a(f"""
s_mul_i32 s54, {tile_s}, 40960
s_add_u32 s54, s54, {base}
s_mul_i32 s55, {head_s}, 5
s_add_u32 s56, s55, 1
s_lshr_b32 s56, s56, 1
s_lshl_b32 s56, s56, 8
s_add_u32 s56, s56, s54
s_and_b32 s57, {head_s}, 1
s_mul_i32 s57, s57, {-760 & 0xffffffff}
s_add_u32 s57, s57, 512
s_add_u32 s57, s57, s56
buffer_store_dwordx4 {vr(o,4)}, v{OA4}, {q4(SRD_WS)}, s56 offen sc1
buffer_store_dwordx2 {vr(o+4,2)}, v{OA2}, {q4(SRD_WS)}, s57 offen sc1
""")

def p4_issue(a, fused):
    if fused:
        nonce_get(a)
        a(f"s_lshl_b32 s60, s{S_NT}, 8\ns_add_u32 s60, s60, {FL_KV}")
        flag_wait(a, "s60", 64)
    a(f"""
s_lshl_b32 s54, s{S_NT}, 13
s_add_u32 s54, s54, {KVACC}
s_add_u32 s55, s54, 4096
v_mov_b32 v8, {OOB}
""")
    for hh in range(2):
        rowmap(a, 6, 4*hh, 7)
        a(f"""v_cmp_ge_u32 vcc, 20, v6
v_mul_u32_u24 v6, 160, v6
v_lshl_add_u32 v6, v{VH}, 5, v6
v_cndmask_b32 v6, v8, v6, vcc
v_cmp_gt_u32 vcc, 32, v{VL}
s_nop 1
v_cndmask_b32 v7, v8, v6, vcc""")
        for u in range(3):
            for hf in range(2):
                a(f"buffer_load_dwordx4 {vr(RAW+24*hh+8*u+4*hf,4)}, v{7 if u == 2 else 6}, {q4(SRD_WS)}, s{54+hh} offen offset:{64*u + 16*hf} sc0 sc1")

def p4_compute(a):
    for f in range(6):
        for e in range(4):
            a(f"v_cvt_pk_bf16_f32 v{RAW+4*f+e}, v{RAW+8*f+2*e}, v{RAW+8*f+2*e+1}")
    a("s_nop 1")
    D = [192, 208]
    for hh in range(2):
        for u in range(3):
            a(f"v_mfma_f32_32x32x16_bf16 {vr(D[hh],16)}, {vr(RAW+12*hh+4*u,4)}, {vr(PHQ_R+8*u+4*hh,4)}, {'0' if u == 0 else vr(D[hh],16)}")
    a(f"s_lshl_b32 s58, s{S_NT}, 1\ns_nop 7")
    for hh in range(2):
        a(f"""v_add_f32 v6, {f32hex(1e-6)}, v{D[hh]+12}
v_rcp_f32 v6, v6
s_nop 0
v_mul_f32 v6, v6, v{OMG}""")
        out_store(a, D[hh], 6, "s58", f"s{S_T}", OBF)
        if hh == 0: a("s_add_u32 s58, s58, 1")

def gen_attn(a, fused):
    E = os.environ.get
    swap23(a, ROWM, VN, 6)
    a(f"""
v_cmp_gt_u32 vcc, 16, v{VN}
v_and_b32 v6, 27, v{VN}
v_mov_b32 v7, 31
v_cndmask_b32 v{ROWM}, v{VN}, v{ROWM}, vcc
v_cmp_gt_u32 vcc, 20, v{VN}
s_nop 1
v_cndmask_b32 v{ROWM}, v7, v{ROWM}, vcc
v_cmp_eq_u32 vcc, 24, v6
v_bfe_u32 v6, v{VL}, 4, 1
v_mul_u32_u24 v6, 20480, v6
v_cndmask_b32 v{ROWM}, v{ROWM}, 20, vcc
v_and_b32 v7, 15, v{VL}
v_lshl_add_u32 v6, v7, 4, v6
v_lshl_add_u32 v{OA4}, v{VH}, 8, v6
v_cmp_gt_u32 vcc, 32, v{VL}
v_mov_b32 v7, {OOB}
v_mov_b32 v{IDX}, 0xdddddddd
v_cndmask_b32 v{OA2}, v7, v6, vcc
""")
    a.label("L_at_restart")
    a(f"""
s_and_b32 s54, s{S_HEAD}, 1
s_lshl_b32 s54, s54, 2
""")
    rowmap(a, 6, "s54", 7)
    a(f"""
s_mul_i32 s55, s{S_KH}, {HALF}
v_add_u32 v{KA1}, s55, v{L16}
v_add_u32 v{KA2}, s55, v{L8}
v_mul_u32_u24 v7, 320, v{VH}
v_lshl_add_u32 v7, v6, 4, v7
v_add_u32 v7, s55, v7
s_add_u32 s55, s55, 10240
v_cmp_eq_u32 vcc, 20, v6
v_mov_b32 v8, s55
v_add_u32 v9, 16, v8
v_cndmask_b32 v9, v9, v8, vcc
v_cmp_gt_u32 vcc, 20, v6
v_mov_b32 v12, 0x3f803f80
v_mov_b32 v13, 0x3f803f80
v_mov_b32 v14, 0x3f803f80
v_mov_b32 v15, 0x3f803f80
""")
    for j in range(4):
        for g in range(2):
            a(f"""v_add_u32 v10, {j*2560 + g*640}, v7
v_cndmask_b32 v{VA+2*j+g}, v9, v10, vcc""")
    for i in range(32):
        a(f"v_mov_b32 v{O[0]+i}, 0")
    for sl in range(6):
        a(f"""ds_write_b128 v8, v[12:15] offset:{sl*SLOT}
ds_write_b128 v8, {vr(O[0],4)} offset:{sl*SLOT+16}""")
    a(f"""
v_mov_b32 v{K2[0]+1}, 0x3f803f80
v_mov_b32 v{K2[1]+1}, 0x3f803f80
v_mov_b32 v{Q2[0]+1}, 0
v_mov_b32 v{Q2[1]+1}, 0
v_mov_b32 v{MX[0]}, 0xff800000
v_mov_b32 v{MX[1]}, 0xff800000
s_mov_b32 s56, s{S_KVB}
s_cmp_eq_u32 s{S_MODE}, 0
s_cselect_b32 s57, 1, 64
s_waitcnt vmcnt(15)
""")
    stamp(a, 1)
    a.label("L_at_max")
    for q in range(2):
        a(f"""v_mfma_f32_32x32x16_bf16 {vr(S[q],16)}, {vr(K1[0],4)}, {vr(Q1[q],4)}, 0
v_mfma_f32_32x32x8_bf16 {vr(S[q],16)}, {vr(K2[0],2)}, {vr(Q2[q],2)}, {vr(S[q],16)}""")
    a("s_nop 7\ns_nop 3")
    for q in range(2):
        for e in range(8):
            a(f"v_max3_f32 v{MX[q]}, v{S[q]+2*e}, v{S[q]+2*e+1}, v{MX[q]}")
    a(f"""
s_sub_u32 s57, s57, 1
s_cmp_eq_u32 s57, 0
s_cbranch_scc1 L_at_maxdone
s_add_u32 s56, s56, 2560
buffer_load_dwordx4 {vr(K1[0],4)}, v{L16}, {q4(SRD_WS)}, s56 offen
buffer_load_dword v{K2[0]}, v{L8}, {q4(SRD_WS)}, s56 offen offset:1024
s_waitcnt vmcnt(0)
s_branch L_at_max
""")
    a.label("L_at_maxdone")
    a(f"v_cmp_gt_u32 vcc, 32, v{VL}")
    for q in range(2):
        m = MX[q]
        a(f"""
v_mov_b32 v6, v{m}
s_nop 1
v_permlane32_swap_b32 v6, v{m}
s_nop 1
v_max_f32 v6, v6, v{m}
v_xor_b32 v6, 0x80000000, v6
v_and_b32 v7, 0xffff0000, v6
v_sub_f32 v6, v6, v7
v_and_b32 v8, 0xffff0000, v6
v_sub_f32 v6, v6, v8
v_lshrrev_b32 v7, 16, v7
v_or_b32 v7, v7, v8
v_lshrrev_b32 v6, 16, v6
v_cndmask_b32 v{Q2[q]+1}, v6, v7, vcc
""")
    for i in range(8):
        a(f"v_mov_b32 v{S[3]+8+i}, 0")
    for i in range(4):
        a(f"v_mov_b32 v{V[1][1]+i}, 0")
    for q in range(2):
        a(f"""v_mfma_f32_32x32x16_bf16 {vr(S[q],16)}, {vr(K1[1],4)}, {vr(Q1[q],4)}, 0
v_mfma_f32_32x32x8_bf16 {vr(S[q],16)}, {vr(K2[1],2)}, {vr(Q2[q],2)}, {vr(S[q],16)}""")
    def G(rec):
        slot, j = (rec >> 2) & 1, rec & 3
        p = rec & 1
        so = slot * SLOT
        a(f"""ds_read_b128 {vr(K1[p],4)}, v{KA1} offset:{so + j*2560 + 1280}
ds_read_b32 v{K2[p]}, v{KA2} offset:{so + j*2560 + 2304}
ds_read_b128 {vr(V[p][0],4)}, v{VA+2*j} offset:{so}
ds_read_b128 {vr(V[p][1],4)}, v{VA+2*j+1} offset:{so}""")
    a("s_waitcnt vmcnt(10) lgkmcnt(0)\ns_barrier")
    G(0)
    a(f"s_mov_b32 s{S_IT}, 0\ns_setprio 3\ns_nop 2\ns_waitcnt lgkmcnt(0)")
    stamp(a, 2)
    a.raw(".p2align 6")
    a.label("L_at_loop")
    for t in range(8):
        for q in range(2):
            i = (2*t + q) & 3
            X, W, Y = S[i], S[(i-1) & 3], S[(i+2) & 3]
            p = t & 1
            pw, qw = (p, 0) if q == 1 else (1 - p, 1)
            ex = [f"v_exp_f32 v{X+e}, v{X+e}" for e in range(16)]
            a("\n".join(ex[0:2]))
            a(f"v_smfmac_f32_32x32x32_bf16 {vr(O[qw],16)}, {vr(V[pw][1],4)}, {vr(W+8,8)}, v{IDX}")
            if q == 0:
                rec = t + 1
                if rec == 8:
                    l1, l2, l3 = a.newlabel("ati"), a.newlabel("ati"), a.newlabel("ati")
                    a(f"""s_cmp_eq_u32 s{S_IT}, 2
s_cselect_b32 s{S_DLT}, {-4*SLOT & 0xffffffff}, s{S_DLT}""")
                    for r in range(10):
                        a(f"v_add_u32 v{VA+r}, s{S_DLT}, v{VA+r}")
                    a(f"""s_cbranch_scc1 {l2}
s_cmp_eq_u32 s{S_IT}, 0
s_cbranch_scc0 {l1}
s_waitcnt vmcnt(0)
s_barrier""")
                    kv_dma(a, 0)
                    if fused: f3.p5_pf_woa(a)
                    a(f"s_cmp_lg_u32 s{S_KH}, 0\ns_cbranch_scc1 {l3}")
                    p4_issue(a, fused)
                    a(f"s_branch {l3}")
                    a.label(l1)
                    a(f"s_cmp_lg_u32 s{S_IT}, 1\ns_cbranch_scc1 {l3}\ns_cmp_lg_u32 s{S_KH}, 0\ns_cbranch_scc1 {l3}")
                    a("s_waitcnt vmcnt(0)")
                    p4_compute(a)
                    a(f"s_branch {l3}")
                    a.label(l2)
                    a("s_waitcnt vmcnt(0)\ns_barrier")
                    if fused:
                        lb = a.newlabel("oba")
                        a(f"s_cmp_lg_u32 s{S_W}, 5\ns_cbranch_scc1 {lb}\ns_cmp_lg_u32 s{S_MODE}, 0\ns_cbranch_scc1 {lb}")
                        a(f"s_lshl_b32 s60, s{S_MT}, 5\ns_add_u32 s60, s60, s{S_NT}\ns_lshl_b32 s60, s60, 2\ns_add_u32 s60, s60, {FL_OB}")
                        flag_set(a, "s60")
                        a.label(lb)
                        f3.p5_batch1(a)
                    a.label(l3)
                if rec == 5:
                    a(f"s_mov_b32 s{S_DLT}, {2*SLOT}")
                    if fused:
                        lb = a.newlabel("kva")
                        a(f"s_add_u32 s54, s{S_IT}, s{S_MODE}\ns_cmp_ge_u32 s54, s{S_KH}\ns_cbranch_scc1 {lb}\ns_waitcnt vmcnt(0)")
                        nonce_get(a)
                        a(f"s_lshl_b32 s60, s{S_NT}, 6\ns_add_u32 s60, s60, s{S_T}\ns_lshl_b32 s60, s60, 2\ns_add_u32 s60, s60, {FL_KV}")
                        flag_set(a, "s60")
                        a.label(lb)
                        lb = a.newlabel("obi")
                        a(f"s_cmp_lg_u32 s{S_IT}, 3\ns_cbranch_scc1 {lb}")
                        f3.p5_ob_issue(a)
                        a.label(lb)
                PR = {8: 3, 3: 2, 5: 1, 7: 0}
                if rec in PR and not E("NOPRIO"): a(f"s_setprio {PR[rec]}")
                G(rec & 7)
            a("\n".join(ex[2:6]))
            a(f"v_mfma_f32_32x32x16_bf16 {vr(Y,16)}, {vr(K1[p],4)}, {vr(Q1[q],4)}, 0")
            a("\n".join(ex[6:10]))
            a(f"v_smfmac_f32_32x32x32_bf16 {vr(O[q],16)}, {vr(V[p][0],4)}, {vr(X,8)}, v{IDX}")
            a("\n".join(ex[10:14]))
            a(f"v_mfma_f32_32x32x8_bf16 {vr(Y,16)}, {vr(K2[p],2)}, {vr(Q2[q],2)}, {vr(Y,16)}")
            a("\n".join(ex[14:16]))
            if q == 1:
                a("s_waitcnt lgkmcnt(0)")
    a(f"""
s_add_u32 s{S_IT}, s{S_IT}, 1
s_cmp_lt_u32 s{S_IT}, 4
s_cbranch_scc1 L_at_loop
""")
    stamp(a, 3)
    a(f"""
v_smfmac_f32_32x32x32_bf16 {vr(O[1],16)}, {vr(V[1][1],4)}, {vr(S[3]+8,8)}, v{IDX}
s_setprio 0
s_lshl_b32 s54, s{S_QP}, 12
s_mul_i32 s55, s{S_KH}, {HALF}
s_add_u32 s56, s54, s55
s_sub_u32 s55, {HALF}, s55
s_add_u32 s55, s55, s54
v_add_u32 v6, s56, v{L16}
v_add_u32 v7, s55, v{L16}
s_waitcnt vmcnt(0)
s_barrier
s_nop 2
s_cmp_eq_u32 s{S_KH}, 0
s_cbranch_scc1 L_at_m0
""")
    def send(o):
        for i in range(4):
            a(f"ds_write_b128 v6, {vr(o+4*i,4)} offset:{i*1024}")
    send(O[0])
    a("s_waitcnt lgkmcnt(0)")
    for i in range(13):
        a(f"v_mov_b32 v{O[0]+i}, v{O[1]+i}")
    a("s_branch L_at_m1")
    a.label("L_at_m0")
    send(O[1])
    a.label("L_at_m1")
    a("s_waitcnt lgkmcnt(0)\ns_barrier")
    for i in range(4):
        a(f"ds_read_b128 {vr(S[0]+4*i,4)}, v7 offset:{i*1024}")
    a("s_waitcnt lgkmcnt(0)")
    o = O[0]
    for i in range(13):
        a(f"v_add_f32 v{o+i}, v{o+i}, v{S[0]+i}")
    a(f"v_mul_f32 v8, 0, v{o}")
    for i in range(1, 12):
        a(f"v_fmac_f32 v8, 0, v{o+i}")
    a(f"""
v_add_f32 v8, v8, v{o+12}
v_mov_b32 v9, 0x4b800000
v_cmp_nle_f32 vcc, v8, v9
s_lshl_b32 s55, s{S_W}, 2
v_mov_b32 v9, s55
v_rcp_f32 v6, v{o+12}
s_nop 1
s_cmp_lg_u64 vcc, 0
s_cselect_b32 s54, 1, 0
v_mov_b32 v8, s54
v_add_u32 v9, {FLG}, v9
ds_write_b32 v9, v8
v_mov_b32 v9, {FLG}
s_waitcnt lgkmcnt(0)
s_barrier
ds_read_b128 v[12:15], v9
ds_read_b128 v[8:11], v9 offset:16
s_waitcnt lgkmcnt(0)
v_or3_b32 v8, v8, v9, v10
v_or3_b32 v8, v8, v11, v12
v_or3_b32 v8, v8, v13, v14
v_or_b32 v8, v8, v15
s_nop 0
v_readfirstlane_b32 s54, v8
s_andn2_b32 s54, s54, s{S_MODE}
s_cmp_eq_u32 s54, 0
s_cbranch_scc1 L_at_fin
s_mov_b32 s{S_MODE}, 1
""")
    attn_issue(a, False)
    a("s_waitcnt vmcnt(0)\ns_branch L_at_restart")
    a.label("L_at_fin")
    stamp(a, 4)
    a(f"s_add_u32 s58, s{S_QT}, s{S_KH}")
    out_store(a, o, 6, f"s{S_HEAD}", "s58", OAF)
```

```python
from asmlib import *
from layout import *
from f1 import VL, L16, VN, VH, flag_set, flag_wait, nonce_get
SRD_WOA, SRD_WOB, SRD_OUT = SRD_X, SRD_WA, SRD_WB
S_MB, S_CT, S_T16 = 74, 75, 76
WGA = 216
GV = 221
OFB = 168
R1, R2, Z0, Z1 = 20608, 82432, 0, 61824
def lds_b(b): return R1 + 5120*b if b < 8 else R2 + 5120*(b-8)
def lds_a(b):
    if b < 2: return R2 + 5120*(12+b)
    if b < 6: return Z0 + 5120*(b-2)
    if b < 10: return Z1 + 5120*(b-6)
    if b < 18: return R1 + 5120*(b-10)
    return R2 + 5120*(b-18)

def p5_setup(a):
    a(f"""
s_load_dwordx2 s[54:55], s[0:1], 16
s_load_dwordx2 s[56:57], s[0:1], 48
s_load_dwordx2 s[58:59], s[0:1], 64
s_and_b32 s{S_MB}, s{S_XCD}, 3
s_lshl_b32 s{S_MB}, s{S_MB}, 3
s_and_b32 s60, s{S_J}, 7
s_add_u32 s{S_MB}, s{S_MB}, s60
s_lshr_b32 s{S_CT}, s{S_XCD}, 2
s_lshl_b32 s{S_CT}, s{S_CT}, 2
s_lshr_b32 s60, s{S_J}, 3
s_add_u32 s{S_CT}, s{S_CT}, s60
s_lshl_b32 s{S_T16}, s{S_MB}, 2
s_add_u32 s{S_T16}, s{S_T16}, s{S_TT}
s_waitcnt lgkmcnt(0)
""")
    srd(a, SRD_WOA, 54, WO_BYTES); srd(a, SRD_WOB, 56, WO_BYTES); srd(a, SRD_OUT, 58, OUT_BYTES)

def p5_pf_woa(a):
    lb = a.newlabel("pfa")
    a(f"""s_sub_u32 s54, s{S_W}, 4
s_cmp_ge_u32 s54, 2
s_cbranch_scc1 {lb}
s_lshl_b32 s54, s54, 6
v_add_u32 v6, s54, v{VL}
v_min_u32 v6, 99, v6
v_mul_u32_u24 v7, 205, v6
v_lshrrev_b32 v7, 10, v7
v_mul_u32_u24 v7, 640, v7
v_lshl_add_u32 v6, v6, 7, v7
s_mul_i32 s54, s{S_J}, {20*1280}
s_lshr_b32 s55, s{S_XCD}, 2
s_mul_i32 s55, s55, 640
s_add_u32 s54, s54, s55
buffer_load_dword v8, v6, {q4(SRD_WOA)}, s54 offen""")
    a.label(lb)

def blk_dma(a, srd_, s_lds, s_glob):
    for i in range(5):
        a(f"""s_add_u32 m0, {s_lds}, {i*1024}
s_nop 0
buffer_load_dwordx4 v{WGA+i}, {q4(srd_)}, {s_glob} offen lds""")

def p5_batch1(a):
    a(f"s_mul_i32 s54, s{S_CT}, 160")
    for i in range(5):
        a(f"""v_add_u32 v6, {64*i}, v{VL}
v_mul_u32_u24 v7, 6554, v6
v_lshrrev_b32 v7, 16, v7
v_mul_u32_u24 v8, 10, v7
v_sub_u32 v6, v6, v8
v_bfe_u32 v8, v7, 2, 2
v_lshlrev_b32 v8, 3, v8
v_lshrrev_b32 v9, 4, v7
v_lshl_add_u32 v8, v9, 2, v8
v_and_b32 v9, 3, v7
v_add_u32 v8, v8, v9
v_mul_u32_u24 v8, 1280, v8
v_lshl_add_u32 v8, v6, 4, v8
v_add_u32 v{WGA+i}, s54, v8""")
    a(f"""s_mul_i32 s54, s{S_W}, 5120
s_mul_i32 s55, s{S_W}, 40960
s_add_u32 s56, s54, {R1}""")
    blk_dma(a, SRD_WOB, "s56", "s55")
    a(f"s_add_u32 s56, s54, {R2}\ns_add_u32 s55, s55, {8*40960}")
    blk_dma(a, SRD_WOB, "s56", "s55")
    l1, l2 = a.newlabel("b1"), a.newlabel("b1")
    a(f"""s_add_u32 s56, s56, {8*5120}
s_add_u32 s55, s55, {8*40960}
s_cmp_ge_u32 s{S_W}, 4
s_cbranch_scc1 {l1}""")
    blk_dma(a, SRD_WOB, "s56", "s55")
    a(f"s_branch {l2}")
    a.label(l1)
    a(f"s_cmp_ge_u32 s{S_W}, 6\ns_cbranch_scc1 {l2}\ns_sub_u32 s55, s55, {20*40960}")
    blk_dma(a, SRD_WOA, "s56", "s55")
    a.label(l2)

def o_loads(a, base, dst):
    a(f"""s_mul_i32 s54, s{S_T16}, 20480
s_lshl_b32 s55, s{S_FH}, 10
s_add_u32 s54, s54, s55
s_add_u32 s54, s54, {base}""")
    for i in range(10):
        a(f"buffer_load_dwordx4 {vr(dst+4*i,4)}, v{L16}, {q4(SRD_WS)}, s54 offen offset:{(i&1)*2048} sc1")
        if i & 1 and i < 9: a("s_add_u32 s54, s54, 4096")

def p5_ob_issue(a):
    nonce_get(a)
    a(f"s_lshr_b32 s60, s{S_MB}, 1\ns_lshl_b32 s60, s60, 7\ns_add_u32 s60, s60, {FL_OB}")
    flag_wait(a, "s60", 16)
    o_loads(a, OBF, OFB)
    a(f"""s_lshl_b32 s54, s{S_T16}, 6
s_add_u32 s54, s54, {GATE}
v_and_b32 v6, 15, v{VL}
v_lshlrev_b32 v6, 2, v6
buffer_load_dword v{GV}, v6, {q4(SRD_WS)}, s54 offen sc1""")

def gen_p5(a, s_qb_head_flag):
    RB = 6
    ACA, ACB = 16, 36
    WF = [56, 76]
    OFA = 96
    a(f"""s_mul_i32 s56, s{S_TT}, 5120
s_mul_i32 s57, s{S_FH}, {Z1}
s_add_u32 s56, s56, s57
s_add_u32 s55, s{S_W}, 2
s_mul_i32 s55, s55, 40960""")
    blk_dma(a, SRD_WOA, "s56", "s55")
    a(f"""
v_lshrrev_b32 v9, 2, v{VL}
v_mul_u32_u24 v9, 160, v9
v_and_b32 v10, 3, v{VL}
v_mul_u32_u24 v10, 40, v10
s_mul_i32 s56, s{S_FH}, 5120
v_add3_u32 v{RB}, v9, v10, s56
v_add_u32 v{RB+1}, 57344, v{RB}
v_add_u32 v{RB+2}, 114688, v{RB}
""")
    def reads(addr, b):
        k = addr // 57344
        for t in range(5):
            for aa in range(2):
                a(f"ds_read_b64_tr_b16 {vr(WF[b]+4*t+2*aa,2)}, v{RB+k} offset:{addr - k*57344 + aa*2560 + t*8}")
    def part(ldsf, acc, of, i0, i1, pre=None):
        reads(ldsf(2*i0), i0 & 1)
        for i in range(i0, i1):
            if i + 1 < i1:
                reads(ldsf(2*i+2), (i+1) & 1)
                a("s_waitcnt lgkmcnt(10)")
            else:
                a("s_waitcnt lgkmcnt(0)")
            if pre: pre(i)
            for t in range(5):
                c = "0" if i == 0 else vr(acc+4*t,4)
                a(f"v_mfma_f32_16x16x32_bf16 {vr(acc+4*t,4)}, {vr(WF[i&1]+4*t,4)}, {vr(of+4*i,4)}, {c}")
    part(lds_b, ACB, OFB, 0, 5)
    a("s_waitcnt vmcnt(5)\ns_barrier")
    lb = a.newlabel("oaf")
    a(f"s_cmp_lg_u32 s{S_W}, 7\ns_cbranch_scc1 {lb}")
    flag_set(a, s_qb_head_flag)
    a.label(lb)
    stamp(a, 5)
    a(f"""s_mul_i32 s56, s{S_W}, 5120
s_add_u32 s56, s56, {R1}
s_add_u32 s55, s55, {8*40960}""")
    blk_dma(a, SRD_WOA, "s56", "s55")
    lb = a.newlabel("b3")
    a(f"""s_cmp_ge_u32 s{S_W}, 2
s_cbranch_scc1 {lb}
s_add_u32 s56, s56, {R2 - R1}
s_add_u32 s55, s55, {8*40960}""")
    blk_dma(a, SRD_WOA, "s56", "s55")
    a.label(lb)
    part(lds_b, ACB, OFB, 5, 10)
    lb = a.newlabel("oaw")
    a(f"s_cmp_lg_u32 s{S_W}, 7\ns_cbranch_scc1 {lb}")
    a(f"s_lshr_b32 s60, s{S_MB}, 2\ns_lshl_b32 s60, s60, 7\ns_add_u32 s60, s60, {FL_OA}")
    flag_wait(a, "s60", 32, sleep=2)
    a.label(lb)
    a("s_waitcnt vmcnt(0)\ns_barrier")
    stamp(a, 6)
    o_loads(a, OAF, OFA)
    part(lds_a, ACA, OFA, 0, 10, pre=lambda i: a(f"s_waitcnt vmcnt({9-i})"))
    a(f"""
s_lshl_b32 s54, s{S_TT}, 12
s_mul_i32 s54, s{S_TT}, 5120
s_add_u32 s54, s54, {R2 + 2*5120}
v_add_u32 v9, s54, v{L16}
v_and_b32 v10, 15, v{VL}
s_lshl_b32 s54, s{S_T16}, 4
v_add_u32 v10, s54, v10
v_mul_u32_u24 v10, 1280, v10
v_lshrrev_b32 v11, 4, v{VL}
v_mul_u32_u24 v11, 40, v11
s_mul_i32 s54, s{S_CT}, 160
v_add3_u32 v10, v10, v11, s54
""")
    for i in range(20):
        a(f"v_fmac_f32 v{ACB+i}, v{ACA+i}, v{GV}")
    a(f"s_cmp_eq_u32 s{S_FH}, 0\ns_cbranch_scc1 L_p5_lo")
    for i in range(5):
        a(f"ds_write_b128 v9, {vr(ACB+4*i,4)} offset:{i*1024}")
    a("s_waitcnt lgkmcnt(0)\ns_barrier\ns_branch L_p5_end")
    a.label("L_p5_lo")
    a("s_barrier")
    for i in range(5):
        a(f"ds_read_b128 {vr(ACA+4*i,4)}, v9 offset:{i*1024}")
    a("s_waitcnt lgkmcnt(0)")
    for i in range(0, 20, 2):
        a(f"v_pk_add_f32 {vr(ACB+i,2)}, {vr(ACB+i,2)}, {vr(ACA+i,2)}")
    for e in range(10):
        a(f"v_cvt_pk_bf16_f32 v{ACA+e}, v{ACB+2*e}, v{ACB+2*e+1}")
    a(f"""
buffer_store_dwordx4 {vr(ACA,4)}, v10, {q4(SRD_OUT)}, 0 offen
buffer_store_dwordx4 {vr(ACA+4,4)}, v10, {q4(SRD_OUT)}, 0 offen offset:16
buffer_store_dwordx2 {vr(ACA+8,2)}, v10, {q4(SRD_OUT)}, 0 offen offset:32
""")
    a.label("L_p5_end")
```

```python
from asmlib import *
from layout import *

K3_NS = 7
K3_LDS = K3_NS * 20480
K3_VGPR = 200

def gen_k3(a, name):
    kernel_begin(a, name)
    VL = 2
    NS = K3_NS
    WGA = 8
    RB = 13
    L16 = 3; GV = 4; OA = 5
    ACC = 16
    WF = 40
    OF = 80
    a(f"""
s_cmp_ge_u32 s2, 256
s_cbranch_scc1 L_k3_end
""")
    stamp_init(a); stamp(a, 0)
    a(f"""
s_load_dwordx2 s[4:5], s[0:1], 16
s_load_dwordx2 s[6:7], s[0:1], 48
s_load_dwordx2 s[24:25], s[0:1], 64
s_load_dwordx2 s[22:23], s[0:1], 80
v_lshrrev_b32 v1, 6, v0
v_and_b32 v2, 63, v0
v_readfirstlane_b32 s32, v1
s_and_b32 s36, s2, 7
s_lshr_b32 s37, s2, 3
s_and_b32 s30, s36, 3
s_lshl_b32 s30, s30, 3
s_and_b32 s38, s37, 7
s_add_u32 s30, s30, s38
s_lshr_b32 s31, s36, 2
s_lshl_b32 s31, s31, 2
s_lshr_b32 s38, s37, 3
s_add_u32 s31, s31, s38
v_lshlrev_b32 v{L16}, 4, v{VL}
s_lshl_b32 s44, s30, 2
s_add_u32 s44, s44, s32
s_mul_i32 s40, s44, 20480
s_add_u32 s40, s40, {OAF}
s_mul_i32 s41, s32, {32*1280}
s_mul_i32 s42, s32, 5120
s_mul_i32 s39, s31, 160
""")
    for i in range(5):
        a(f"""v_add_u32 v6, {64*i}, v{VL}
v_mul_u32_u24 v7, 6554, v6
v_lshrrev_b32 v7, 16, v7
v_mul_u32_u24 v36, 10, v7
v_sub_u32 v6, v6, v36
v_bfe_u32 v36, v7, 2, 2
v_lshlrev_b32 v36, 3, v36
v_lshrrev_b32 v37, 4, v7
v_lshl_add_u32 v36, v37, 2, v36
v_and_b32 v37, 3, v7
v_add_u32 v36, v36, v37
v_mul_u32_u24 v36, 1280, v36
v_lshl_add_u32 v36, v6, 4, v36
v_add_u32 v{WGA+i}, s39, v36""")
    a("s_waitcnt lgkmcnt(0)")
    srd(a, 8, 4, WO_BYTES); srd(a, 12, 6, WO_BYTES); srd(a, 16, 22, WS_BYTES); srd(a, 48, 24, OUT_BYTES)
    def loads(st):
        slot = st % NS
        srdw = "s[8:11]" if st < 5 else "s[12:15]"
        a(f"s_add_u32 s43, s41, {(st%5)*128*1280}")
        for i in range(5):
            a(f"""s_add_u32 m0, s42, {slot*20480 + i*1024}
s_nop 0
buffer_load_dwordx4 v{WGA+i}, {srdw}, s43 offen lds""")
        a(f"s_add_u32 s43, s40, {(st%5)*4096 + (0 if st < 5 else OBF - OAF)}")
        for i in range(4):
            a(f"buffer_load_dwordx4 {vr(OF+16*slot+4*i,4)}, v{L16}, s[16:19], s43 offen offset:{i*1024}")
    a(f"""
s_lshl_b32 s38, s44, 6
s_add_u32 s38, s38, {GATE}
v_and_b32 v6, 15, v{VL}
v_lshlrev_b32 v7, 2, v6
buffer_load_dword v{GV}, v7, s[16:19], s38 offen
""")
    for st in range(NS - 1):
        loads(st)
    a(f"""
v_lshrrev_b32 v7, 2, v{VL}
v_mul_u32_u24 v7, 160, v7
v_and_b32 v36, 3, v{VL}
v_mul_u32_u24 v36, 40, v36
v_add_u32 v{RB}, v7, v36
v_add_u32 v{RB+1}, 61440, v{RB}
v_add_u32 v{RB+2}, 122880, v{RB}
s_lshl_b32 s38, s44, 4
v_add_u32 v6, s38, v6
v_mul_u32_u24 v6, 1280, v6
v_lshrrev_b32 v7, 4, v{VL}
v_mul_u32_u24 v7, 40, v7
v_add3_u32 v{OA}, v6, v7, s39
""")
    for i in range(20):
        a(f"v_mov_b32 v{ACC+i}, 0")
    def reads(st, ks, b):
        slot = st % NS
        for t in range(5):
            for aa in range(2):
                a(f"ds_read_b64_tr_b16 {vr(WF+20*b+4*t+2*aa,2)}, v{RB+slot//3} offset:{(slot%3)*20480 + ks*5120 + aa*2560 + t*8}")
    for st in range(10):
        rem = min(NS - 2, 9 - st)
        a(f"s_waitcnt vmcnt({9*rem})")
        a("s_barrier")
        if st in (0, 1, 3, 5, 9): stamp(a, 1 + (0, 1, 3, 5, 9).index(st))
        reads(st, 0, 0)
        if st + NS - 1 < 10:
            loads(st + NS - 1)
        if st == 5:
            for i in range(20):
                a(f"v_mul_f32 v{ACC+i}, v{ACC+i}, v{GV}")
        for ks in range(4):
            b = ks & 1
            if ks < 3:
                reads(st, ks + 1, 1 - b)
                a("s_waitcnt lgkmcnt(10)")
            else:
                a("s_waitcnt lgkmcnt(0)")
            for t in range(5):
                a(f"v_mfma_f32_16x16x32_bf16 {vr(ACC+4*t,4)}, {vr(WF+20*b+4*t,4)}, {vr(OF+16*(st%NS)+4*ks,4)}, {vr(ACC+4*t,4)}")
    a("s_nop 7")
    for e in range(10):
        a(f"v_cvt_pk_bf16_f32 v{WF+e}, v{ACC+2*e}, v{ACC+2*e+1}")
    a(f"""
buffer_store_dwordx4 {vr(WF,4)}, v{OA}, s[48:51], 0 offen
buffer_store_dwordx4 {vr(WF+4,4)}, v{OA}, s[48:51], 0 offen offset:16
buffer_store_dwordx2 {vr(WF+8,2)}, v{OA}, s[48:51], 0 offen offset:32
""")
    stamp_flush(a, 2, 32, 4)
    a.label("L_k3_end")
    a("s_endpgm")
```

```python
QIMG   = 0x0000000
KVIMG  = 0x0280000
WBF    = 0x0790000
KVACC  = 0x0A10000
GATE   = 0x0A30000
FLAGS  = 0x0A34000
OAF    = 0x0A40000
OBF    = 0x0CC0000
PHQ    = 0x0F40000
WS_BYTES = 0x1A00000
STAMP_BASE = 0x1800000
X_BYTES = 2048*640*2
WQKV_BYTES = 640*1920*2
WO_BYTES = 640*640*2
WPHI_BYTES = 32*20*20*2
GATEW_BYTES = 640*2
OUT_BYTES = 2048*640*2
FL_WB  = FLAGS + 0x0000
FL_QKV = FLAGS + 0x1000
FL_KV  = FLAGS + 0x2000
FL_OB  = FLAGS + 0x3000
FL_OA  = FLAGS + 0x4000
OOB = 0x7ffffff0
import math, struct
def f32hex(x):
    return hex(struct.unpack("<I", struct.pack("<f", x))[0])
LOG2E = math.log2(math.e)
QSCALE = LOG2E / math.sqrt(20.0)
SRD_X, SRD_WA, SRD_WS, SRD_DBG, SRD_WB, SRD_PHI, SRD_GATE = 8, 12, 16, 20, 24, 28, 32
S_XCD, S_J, S_W, S_MT, S_NT, S_TT, S_FH = 36, 37, 38, 39, 40, 41, 42
def q4(b): return f"s[{b}:{b+3}]"
S_NONCE = 43
```

```python
import sys
from asmlib import *
from layout import *
import f1, f2, f3, k3
NAME = "gated_mix__mha_block__linear_kernel_hedgehog__prompt"
def load_srds(a, which):
    a("""s_load_dwordx4 s[4:7], s[0:1], 0
s_load_dwordx4 s[56:59], s[0:1], 72
s_load_dwordx4 s[60:63], s[0:1], 32
s_load_dwordx2 s[64:65], s[0:1], 56""")
    f1.common_init(a)
    a("s_waitcnt lgkmcnt(0)")
    srd(a, SRD_X, 4, X_BYTES); srd(a, SRD_WA, 6, WQKV_BYTES); srd(a, SRD_WS, 58, WS_BYTES); srd(a, SRD_DBG, 56, 256)
    srd(a, SRD_WB, 60, WQKV_BYTES); srd(a, SRD_PHI, 62, WPHI_BYTES); srd(a, SRD_GATE, 64, GATEW_BYTES)
def park(a, store):
    lb = a.newlabel("park")
    a(f"""s_cmp_lg_u32 s{S_FH}, 0
s_cbranch_scc1 {lb}
s_lshl_b32 s54, s2, 2
s_add_u32 s54, s54, s{S_W}
s_mul_i32 s54, s54, 7168
s_add_u32 s54, s54, {PHQ}
s_add_u32 s55, s54, 4096""")
    op = "store" if store else "load"
    for i in range(7):
        a(f"buffer_{op}_dwordx4 {vr(f1.PHQ_R+4*i,4)}, v{f1.L16}, {q4(SRD_WS)}, s{54 + i//4} offen offset:{(i%4)*1024}")
    a.label(lb)
def build(mode):
    ref = open(f"cdna_kernels/{NAME}.s.ref").read().split("\n")
    head = [l for l in ref if l.startswith(";") and "@launch" not in l and "Override launch" not in l and "grid=ceil" not in l]
    a = Asm()
    for l in head: a.raw(l)
    kernels = []
    if mode == "cut":
        a.raw(f"; @launch kernel=qkv_kernel grid=(256,1,1) block=(512,1,1) lds=163840")
        a.raw(f"; @launch kernel=attn_kernel grid=(256,1,1) block=(512,1,1) lds=163840")
        a.raw(f"; @launch kernel=proj_kernel grid=(256,1,1) block=(256,1,1) lds={k3.K3_LDS}")
    else:
        a.raw(f"; @launch grid=(256,1,1) block=(512,1,1) lds=163840")
    a.raw('.amdgcn_target "amdgcn-amd-amdhsa--gfx950"\n.text')
    if mode == "cut":
        kernel_begin(a, "qkv_kernel")
        a("s_cmp_ge_u32 s2, 256\ns_cbranch_scc1 L_end1")
        stamp_init(a); stamp(a, 0)
        load_srds(a, 0)
        f1.gen_p12(a)
        park(a, True)
        stamp_flush(a, 0, S_W, 8)
        a.label("L_end1"); a("s_endpgm")
        kernel_begin(a, "attn_kernel")
        a("s_cmp_ge_u32 s2, 256\ns_cbranch_scc1 L_end2")
        stamp_init(a); stamp(a, 0)
        load_srds(a, 1)
        a(f"s_lshl_b32 s{f1.S_T}, s{S_MT}, 2\ns_add_u32 s{f1.S_T}, s{f1.S_T}, s{S_TT}")
        park(a, False)
        f2.attn_issue(a, True)
        f2.gen_attn(a, False)
        stamp_flush(a, 1, S_W, 8)
        a.label("L_end2"); a("s_endpgm")
        kernels = [("qkv_kernel", 256), ("attn_kernel", 256)]
        k3.gen_k3(a, "proj_kernel")
        kernels.append(("proj_kernel", k3.K3_VGPR))
    else:
        kn = NAME + "_kernel"
        kernel_begin(a, kn)
        a("s_cmp_ge_u32 s2, 256\ns_cbranch_scc1 L_end1")
        stamp_init(a); stamp(a, 0)
        load_srds(a, 0)
        def pre_attn():
            lb = a.newlabel("qw")
            a(f"s_cmp_lg_u32 s{S_W}, 7\ns_cbranch_scc1 {lb}\ns_mov_b32 s60, {FL_QKV}")
            f1.flag_wait(a, "s60", 256, sleep=4)
            a.label(lb)
        f1.gen_p12(a, after_gemm=lambda: f2.attn_issue(a, True), pre_attn=pre_attn)
        if DIAG:
            stamp_flush(a, 0, S_W, 8, keep=True); stamp_init(a); stamp(a, 0)
        f3.p5_setup(a)
        f2.gen_attn(a, True)
        a(f"s_and_b32 s77, s{S_J}, 7\ns_lshl_b32 s77, s77, 5\ns_add_u32 s77, s77, s{f2.S_HEAD}\ns_lshl_b32 s77, s77, 2\ns_add_u32 s77, s77, {FL_OA}")
        f3.gen_p5(a, "s77")
        stamp_flush(a, 1, S_W, 8)
        a.label("L_end1"); a("s_endpgm")
        kernels = [(kn, 256)]
    a.raw('.section .rodata,"a"')
    for n, v in kernels:
        a.raw(kernel_desc(n, v, 100 if DIAG else 80))
    return a.text()
if __name__ == "__main__":
    out = sys.argv[2] if len(sys.argv) > 2 else f"cdna_kernels/{NAME}.s"
    open(out, "w").write(build(sys.argv[1]))
```

```python
class Asm:
    def __init__(self):
        self.lines = []
        self.nlabel = 0
    def __call__(self, s):
        for ln in s.strip("\n").split("\n"):
            self.lines.append("    " + ln.strip() if not ln.strip().endswith(":") else ln.strip())
    def raw(self, s):
        self.lines.append(s)
    def label(self, name):
        self.lines.append(name + ":")
    def newlabel(self, base):
        self.nlabel += 1
        return f"L_{base}_{self.nlabel}"
    def text(self):
        return "\n".join(self.lines) + "\n"

def vr(b, n=1):
    return f"v{b}" if n == 1 else f"v[{b}:{b+n-1}]"
def sr(b, n=1):
    return f"s{b}" if n == 1 else f"s[{b}:{b+n-1}]"

def srd(a, d, base, nbytes):
    a(f"""s_mov_b32 s{d}, s{base}
s_mov_b32 s{d+1}, s{base+1}
s_mov_b32 s{d+2}, {hex(nbytes)}
s_mov_b32 s{d+3}, 0x20000""")

def kernel_begin(a, name):
    a.raw(f".globl {name}\n.p2align 8\n.type {name},@function\n{name}:")

def kernel_desc(name, vgpr, sgpr=102):
    acc = (vgpr + 3) // 4 * 4
    return f""".p2align 6
.amdhsa_kernel {name}
  .amdhsa_next_free_vgpr {vgpr}
  .amdhsa_next_free_sgpr {sgpr}
  .amdhsa_accum_offset {acc}
  .amdhsa_group_segment_fixed_size 0
  .amdhsa_kernarg_size 88
  .amdhsa_user_sgpr_count 2
  .amdhsa_user_sgpr_kernarg_segment_ptr 1
  .amdhsa_system_sgpr_workgroup_id_x 1
  .amdhsa_float_denorm_mode_32 3
  .amdhsa_float_denorm_mode_16_64 3
.end_amdhsa_kernel
"""

import os
DIAG = bool(os.environ.get("DIAG"))
from layout import STAMP_BASE
def stamp(a, i):
    if DIAG:
        a(f"s_memrealtime s[{80+2*i}:{81+2*i}]")
def cstamp(a, i):
    if DIAG:
        a(f"s_memtime s[{80+2*i}:{81+2*i}]")
def stamp_init(a):
    if DIAG:
        for i in range(8):
            a(f"s_mov_b64 s[{80+2*i}:{81+2*i}], 0")
def stamp_flush(a, kidx, wave_sgpr, nw, srd_ws=16, keep=False):
    if not DIAG: return
    if os.environ.get("TODBG"):
        lb = a.newlabel("dbg")
        if not keep: a("s_waitcnt vmcnt(0)")
        a(f"""s_memrealtime s[94:95]
s_memtime s[98:99]
s_waitcnt lgkmcnt(0)
s_cmp_lg_u32 s2, 9
s_cbranch_scc1 {lb}
s_cmp_lg_u32 s{wave_sgpr}, 0
s_cbranch_scc1 {lb}
s_mov_b64 exec, 1
v_mov_b32 v6, 0""")
        if kidx == 0: a("s_mov_b32 s97, s80\ns_mov_b32 s96, s98")
        else: a("s_sub_u32 s80, s98, s96\ns_add_u32 s80, s80, s97")
        for i in range(0 if kidx else 1, 8):
            a(f"s_sub_u32 s{80+2*i}, s{80+2*i}, s97\nv_mov_b32 v8, s{80+2*i}\nbuffer_store_dword v8, v6, s[20:23], 0 offen offset:{32*kidx+4*i}")
        a("s_mov_b64 exec, -1")
        a.label(lb)
        return
    if not keep: a("s_waitcnt vmcnt(0)")
    a(f"""s_memrealtime s[94:95]
s_waitcnt lgkmcnt(0)
s_mul_i32 s96, s2, {nw}
s_add_u32 s96, s96, s{wave_sgpr}
s_lshl_b32 s96, s96, 5
s_add_u32 s96, s96, {STAMP_BASE + kidx*0x40000}
s_mov_b64 exec, 1
v_mov_b32 v6, 0""")
    for i in range(8):
        a(f"v_mov_b32 v{8+i}, s{80+2*i}")
    a(f"""buffer_store_dwordx4 v[8:11], v6, s[{srd_ws}:{srd_ws+3}], s96 offen
buffer_store_dwordx4 v[12:15], v6, s[{srd_ws}:{srd_ws+3}], s96 offen offset:16
s_mov_b64 exec, -1
s_nop 1""")
```

```python
import re, sys
NAME = "gated_mix__mha_block__linear_kernel_hedgehog__prompt"
src = open(f"cdna_kernels/{NAME}.s").read()
main = f"; @launch kernel={NAME}_kernel grid=(256,1,1) block=(512,1,1) lds=163840"
def mk(pre_launch, pre_code, out):
    s = src.replace("; @launch grid=(256,1,1) block=(512,1,1) lds=163840", pre_launch + "\n" + main)
    if pre_code:
        s = s.replace('.section .rodata,"a"', pre_code + '\n.section .rodata,"a"\n' + """.p2align 6
.amdhsa_kernel pre_kernel
  .amdhsa_next_free_vgpr 32
  .amdhsa_next_free_sgpr 48
  .amdhsa_accum_offset 32
  .amdhsa_group_segment_fixed_size 0
  .amdhsa_kernarg_size 88
  .amdhsa_user_sgpr_count 2
  .amdhsa_user_sgpr_kernarg_segment_ptr 1
  .amdhsa_system_sgpr_workgroup_id_x 1
.end_amdhsa_kernel
""")
    open(out, "w").write(s)
H = ".globl pre_kernel\n.p2align 8\n.type pre_kernel,@function\npre_kernel:\n"
pl = "; @launch kernel=pre_kernel grid=(256,1,1) block=(256,1,1) lds=0"
mk(pl, H + "s_endpgm\n", "va.s")
code = f"""
s_getpc_b64 s[4:5]
L_pc:
s_sub_u32 s4, s4, L_pc-{NAME}_kernel
s_subb_u32 s5, s5, 0
v_lshlrev_b32 v1, 7, v0
v_min_u32 v1, L_pc-{NAME}_kernel, v1
global_load_dword v2, v1, s[4:5]
"""
mk(pl, H + code + "s_waitcnt vmcnt(0)\ns_endpgm\n", "vb.s")
tlb = """
s_load_dwordx4 s[8:11], s[0:1], 0
s_load_dwordx2 s[12:13], s[0:1], 16
s_load_dwordx4 s[16:19], s[0:1], 32
s_load_dwordx4 s[20:23], s[0:1], 48
s_load_dwordx4 s[24:27], s[0:1], 64
s_load_dwordx2 s[28:29], s[0:1], 80
v_and_b32 v3, 1, v0
v_lshlrev_b32 v3, 21, v3
v_mov_b32 v4, 0
v_and_b32 v5, 7, v0
v_lshlrev_b32 v5, 21, v5
s_waitcnt lgkmcnt(0)
global_load_dword v6, v3, s[8:9]
global_load_dword v7, v3, s[10:11]
global_load_dword v8, v4, s[12:13]
global_load_dword v9, v3, s[16:17]
global_load_dword v10, v4, s[18:19]
global_load_dword v11, v4, s[20:21]
global_load_dword v12, v4, s[22:23]
global_load_dword v13, v3, s[24:25]
global_load_dword v14, v4, s[26:27]
global_load_dword v15, v5, s[28:29]
"""
mk(pl, H + code + tlb + "s_waitcnt vmcnt(0)\ns_endpgm\n", "vc.s")
mk(main, None, "vd.s")
```

```python
class Asm:
    def __init__(self):
        self.lines = []
        self.nlabel = 0
    def __call__(self, s):
        for ln in s.strip("\n").split("\n"):
            self.lines.append("    " + ln.strip() if not ln.strip().endswith(":") else ln.strip())
    def raw(self, s):
        self.lines.append(s)
    def label(self, name):
        self.lines.append(name + ":")
    def newlabel(self, base):
        self.nlabel += 1
        return f"L_{base}_{self.nlabel}"
    def text(self):
        return "\n".join(self.lines) + "\n"

def vr(b, n=1):
    return f"v{b}" if n == 1 else f"v[{b}:{b+n-1}]"
def sr(b, n=1):
    return f"s{b}" if n == 1 else f"s[{b}:{b+n-1}]"

def srd(a, d, base, nbytes):
    a(f"""s_mov_b32 s{d}, s{base}
s_mov_b32 s{d+1}, s{base+1}
s_mov_b32 s{d+2}, {hex(nbytes)}
s_mov_b32 s{d+3}, 0x20000""")

def kernel_begin(a, name):
    a.raw(f".globl {name}\n.p2align 8\n.type {name},@function\n{name}:")

def kernel_desc(name, vgpr, sgpr=102):
    acc = (vgpr + 3) // 4 * 4
    return f""".p2align 6
.amdhsa_kernel {name}
  .amdhsa_next_free_vgpr {vgpr}
  .amdhsa_next_free_sgpr {sgpr}
  .amdhsa_accum_offset {acc}
  .amdhsa_group_segment_fixed_size 0
  .amdhsa_kernarg_size 88
  .amdhsa_user_sgpr_count 2
  .amdhsa_user_sgpr_kernarg_segment_ptr 1
  .amdhsa_system_sgpr_workgroup_id_x 1
  .amdhsa_float_denorm_mode_32 3
  .amdhsa_float_denorm_mode_16_64 3
.end_amdhsa_kernel
"""

import os
DIAG = bool(os.environ.get("DIAG"))
from layout import STAMP_BASE
def stamp(a, i):
    if DIAG:
        a(f"{'s_memtime' if os.environ.get('CYC') else 's_memrealtime'} s[{80+2*i}:{81+2*i}]")
def cstamp(a, i):
    if DIAG:
        a(f"s_memtime s[{80+2*i}:{81+2*i}]")
def stamp_init(a):
    if DIAG:
        for i in range(8):
            a(f"s_mov_b64 s[{80+2*i}:{81+2*i}], 0")
def stamp_flush(a, kidx, wave_sgpr, nw, srd_ws=16, keep=False):
    if not DIAG: return
    if os.environ.get("TODBG"):
        lb = a.newlabel("dbg")
        if not keep: a("s_waitcnt vmcnt(0)")
        a(f"""s_memrealtime s[94:95]
s_memtime s[98:99]
s_waitcnt lgkmcnt(0)
s_cmp_lg_u32 s2, 9
s_cbranch_scc1 {lb}
s_cmp_lg_u32 s{wave_sgpr}, 0
s_cbranch_scc1 {lb}
s_mov_b64 exec, 1
v_mov_b32 v6, 0""")
        if kidx == 0: a("s_mov_b32 s97, s80\ns_mov_b32 s96, s98")
        else: a("s_sub_u32 s80, s98, s96\ns_add_u32 s80, s80, s97")
        for i in range(0 if kidx else 1, 8):
            a(f"s_sub_u32 s{80+2*i}, s{80+2*i}, s97\nv_mov_b32 v8, s{80+2*i}\nbuffer_store_dword v8, v6, s[20:23], 0 offen offset:{32*kidx+4*i}")
        a("s_mov_b64 exec, -1")
        a.label(lb)
        return
    if not keep: a("s_waitcnt vmcnt(0)")
    a(f"""{'s_memtime' if os.environ.get('CYC') else 's_memrealtime'} s[94:95]
s_waitcnt lgkmcnt(0)
s_mul_i32 s96, s2, {nw}
s_add_u32 s96, s96, s{wave_sgpr}
s_lshl_b32 s96, s96, 5
s_add_u32 s96, s96, {STAMP_BASE + kidx*0x40000}
s_mov_b64 exec, 1
v_mov_b32 v208, 0""")
    for i in range(8):
        a(f"v_mov_b32 v{200+i}, s{80+2*i}")
    a(f"""buffer_store_dwordx4 v[200:203], v208, s[{srd_ws}:{srd_ws+3}], s96 offen
buffer_store_dwordx4 v[204:207], v208, s[{srd_ws}:{srd_ws+3}], s96 offen offset:16
s_mov_b64 exec, -1
s_nop 1""")
```

```python
from asmlib import *
from layout import *

NS = 4
TOP = NS * 32768
BROW = 272
STG = 126976
VL, L16, VN, VH = 2, 3, 4, 5
XG0, XG1, WG = 6, 7, 8
XA = 10
WA = 18
WB = 22
EA = 24
WFB = [40, 48, 248]
LA = 2
ACC = 56
XR = 88
DIST = 3
PREBAR = {}
FILL = {}
QST = int(os.environ.get('QST', '16'))
STG_STAMP = eval(os.environ.get('STG_STAMP', '{}'))
stamp2 = stamp
if STG_STAMP:
    def stamp(a, i): pass
HOLD = [8, 12, 16, 32]
SPM = [4, 6, 74, 76]
STORE_AT = eval(os.environ.get('STORE_AT', '[40,44,48,52]'))
PHQ_R = 228
OMG = 252
S_XO, S_WO, S_KR, S_LB, S_T, S_PREP, S_WBB = 44, 45, 46, 47, 48, 49, 50

def common_init(a):
    a(f"""
s_and_b32 s{S_XCD}, s2, 7
s_lshr_b32 s{S_J}, s2, 3
v_lshrrev_b32 v1, 6, v0
v_and_b32 v{VL}, 63, v0
v_readfirstlane_b32 s{S_W}, v1
s_and_b32 s{S_MT}, s{S_XCD}, 1
s_lshl_b32 s{S_MT}, s{S_MT}, 3
s_and_b32 s52, s{S_J}, 7
s_add_u32 s{S_MT}, s{S_MT}, s52
s_lshr_b32 s{S_NT}, s{S_XCD}, 1
s_lshl_b32 s{S_NT}, s{S_NT}, 2
s_lshr_b32 s52, s{S_J}, 3
s_add_u32 s{S_NT}, s{S_NT}, s52
s_and_b32 s{S_TT}, s{S_W}, 3
s_lshr_b32 s{S_FH}, s{S_W}, 2
v_lshlrev_b32 v{L16}, 4, v{VL}
v_and_b32 v{VN}, 31, v{VL}
v_lshrrev_b32 v{VH}, 5, v{VL}
""")

def nonce_publish(a):
    lb = a.newlabel("np")
    a(f"""s_mov_b32 s{S_NONCE}, 0
s_xor_b32 s60, s{S_W}, 7
s_or_b32 s60, s2, s60
s_cmp_lg_u32 s60, 0
s_cbranch_scc1 {lb}
s_memrealtime s[60:61]
v_mov_b32 v9, 0
s_waitcnt lgkmcnt(0)
s_or_b32 s60, s60, 1
v_mov_b32 v1, s60
s_mov_b64 exec, 1
buffer_store_dword v1, v9, {q4(SRD_DBG)}, 0 offen sc0 sc1
s_mov_b64 exec, -1""")
    a.label(lb)

def nonce_get(a):
    lp, dn = a.newlabel("ng"), a.newlabel("ngd")
    a(f"""s_cmp_lg_u32 s{S_NONCE}, 0
s_cbranch_scc1 {dn}
v_mov_b32 v0, 0
s_mov_b32 s62, 0x40000""")
    a.label(lp)
    a(f"""buffer_load_dword v1, v0, {q4(SRD_DBG)}, 0 offen sc0 sc1
s_waitcnt vmcnt(0)
v_readfirstlane_b32 s{S_NONCE}, v1
s_cmp_lg_u32 s{S_NONCE}, 0
s_cbranch_scc1 {dn}
s_sleep 8
s_sub_u32 s62, s62, 1
s_cmp_lg_u32 s62, 0
s_cbranch_scc1 {lp}""")
    a.label(dn)

def flag_set(a, off_sgpr):
    a(f"""v_mov_b32 v0, 0
v_mov_b32 v1, s{S_NONCE}
s_mov_b64 exec, 1
buffer_store_dword v1, v0, {q4(SRD_WS)}, {off_sgpr} offen sc0 sc1
s_mov_b64 exec, -1""")

def flag_wait(a, off_sgpr, nwords, sleep=10):
    lp, dn = a.newlabel("fw"), a.newlabel("fwd")
    if nwords <= 64:
        a(f"v_min_u32 v0, {nwords-1}, v{VL}\nv_lshlrev_b32 v0, 4, v0")
    a("s_mov_b32 s62, 0x40000")
    a.label(lp)
    if nwords <= 64:
        a(f"""buffer_load_dword v1, v0, {q4(SRD_WS)}, {off_sgpr} offen sc0 sc1
s_waitcnt vmcnt(0)
v_cmp_ne_u32 vcc, s{S_NONCE}, v1""")
    else:
        a(f"""buffer_load_dwordx4 v[36:39], v{L16}, {q4(SRD_WS)}, {off_sgpr} offen sc0 sc1
s_waitcnt vmcnt(0)
v_xor_b32 v36, s{S_NONCE}, v36
v_xor_b32 v37, s{S_NONCE}, v37
v_xor_b32 v38, s{S_NONCE}, v38
v_xor_b32 v39, s{S_NONCE}, v39
v_or3_b32 v36, v36, v37, v38
v_or_b32 v36, v36, v39
v_cmp_ne_u32 vcc, 0, v36""")
    a(f"""s_nop 3
s_cmp_eq_u64 vcc, 0
s_cbranch_scc1 {dn}
s_sleep {sleep}
s_sub_u32 s62, s62, 1
s_cmp_lg_u32 s62, 0
s_cbranch_scc1 {lp}""")
    a.label(dn)

def flag_wait2(a, off_sgpr, sleep=4):
    lp, dn = a.newlabel("fw"), a.newlabel("fwd")
    a("s_mov_b32 s62, 0x40000")
    a.label(lp)
    a(f"""buffer_load_dword v36, v0, {q4(SRD_WS)}, {off_sgpr} offen sc0 sc1
buffer_load_dword v37, v0, {q4(SRD_WS)}, {off_sgpr} offen offset:128 sc0 sc1
s_waitcnt vmcnt(0)
v_xor_b32 v36, s{S_NONCE}, v36
v_xor_b32 v37, s{S_NONCE}, v37
v_or_b32 v36, v36, v37
v_cmp_ne_u32 vcc, 0, v36
s_nop 3
s_cmp_eq_u64 vcc, 0
s_cbranch_scc1 {dn}
s_sleep {sleep}
s_sub_u32 s62, s62, 1
s_cmp_lg_u32 s62, 0
s_cbranch_scc1 {lp}""")
    a.label(dn)

def wb_flag_set(a):
    nonce_get(a)
    a(f"""s_lshl_b32 s60, s{S_P}, 5
s_add_u32 s60, s60, s{S_BLK}
s_lshl_b32 s60, s60, 4
s_add_u32 s60, s60, {FL_WB}""")
    flag_set(a, "s60")
def wb_flag_wait(a):
    nonce_get(a)
    a(f"""s_lshl_b32 s60, s{S_NT}, 9
s_add_u32 s60, s60, {FL_WB}""")
    flag_wait(a, "s60", 20)

VM = []
def vm_after(tag, prep=False):
    idx = max(i for i, t in enumerate(VM) if t == tag)
    return len([t for t in VM[idx+1:] if prep or not (isinstance(t, str) and t.startswith("p:"))])
P2SLOT = [131072, 147456, 65536, 82432, 98816, 0, 20608, 36992, 82432, 98816]
WBR = [20, 22, 23]
P2BAR = {10: 12, 11: None, 13: 15, 16: 17, 18: 19}

def dma_piece(a, st, i):
    slot = st % NS
    last = 3 if st < 10 else 1
    if st >= 10:
        if i == 0: a(f"s_lshl_b32 s{S_WO}, s{S_KR}, 14")
        a(f"s_add_u32 m0, s{S_LB}, {P2SLOT[st-10] + 1024*i}")
        a(f"s_add_u32 s{S_WO}, s{S_WO}, s{S_WBB}" if i == 0 else f"s_add_u32 s{S_WO}, s{S_WO}, 1024")
        a(f"buffer_load_dwordx4 v{L16}, {q4(SRD_WS)}, s{S_WO} offen lds")
    elif i < 2:
        a(f"""s_add_u32 m0, s{S_LB}, {slot*32768 + 1024*i}
s_lshl_b32 s{S_XO}, s{S_KR}, 7
buffer_load_dwordx4 v{XG0+i}, {q4(SRD_X)}, s{S_XO} offen lds""")
    else:
        a(f"s_add_u32 m0, s{S_LB}, {slot*32768 + 16384 + 1024*(i-2)}")
        a(f"s_mul_i32 s{S_WO}, s{S_KR}, {64*3840}" if i == 2 else f"s_add_u32 s{S_WO}, s{S_WO}, {4*3840}")
        a(f"buffer_load_dwordx4 v{WG}, {q4(SRD_WA)}, s{S_WO} offen lds")
    if i == last:
        a(f"""s_add_u32 s{S_KR}, s{S_KR}, 1
s_cmp_eq_u32 s{S_KR}, 10
s_cselect_b32 s{S_KR}, 0, s{S_KR}""")
    VM.append(("dma", st))
def dma_sched(ds, pc):
    if ds < 10: return [(ds, pc)]
    if ds == 10: return [(10 + pc, 0), (10 + pc, 1)] if pc < 3 else []
    if ds == 11: return [(13 + (pc >> 1), pc & 1)]
    if ds == 12: return [(15, pc)] if pc < 2 else []
    if ds == 13: return [(16 + (pc >> 1), pc & 1)]
    if ds == 18: return [(18 + pc, 0), (18 + pc, 1)] if pc < 2 else []
    return []
def dma(a, st):
    for i in range(4): dma_piece(a, st, i)

def reads(a, g, xonly=False):
    st, ks, wf = g >> 2, g & 3, WFB[g % 3]
    slot = st % NS
    hi = slot >= 2
    so = (slot & 1) * 32768
    if st < 10:
        a(f"ds_read_b128 {vr(XR+4*g,4)}, v{XA+4*hi+ks} offset:{so}")
        for ft in range(0 if xonly else 2):
            for aa in range(2):
                a(f"ds_read_b64_tr_b16 {vr(wf+4*ft+2*aa,2)}, v{WA+2*hi+ft} offset:{so + (16*ks+4*aa)*256}")
    elif st < 20:
        for ft in range(2):
            a(f"ds_read_b128 {vr(wf+4*ft,4)}, v{WBR[P2SLOT[st-10] >> 16]} offset:{(P2SLOT[st-10] & 65535) + ks*4096 + ft*1024}")
def nreads(g):
    return 5 if g < 40 else 2 if g < 80 else 0

def enter_stage(a, st):
    if st >= 10:
        if st == QST and st not in P2BAR:
            a(f"s_waitcnt vmcnt({vm_after('epi')})\ns_barrier")
            return
        if st not in P2BAR: return
    cov = P2BAR.get(st, st)
    if cov is None:
        a("s_barrier")
        return
    n, n2 = vm_after(("dma", cov)), vm_after(("dma", cov), True)
    if st == QST: n = n2 = min(n, vm_after("epi"))
    if n2 != n:
        l1, l2 = a.newlabel("es"), a.newlabel("es")
        a(f"""s_cmp_eq_u32 s{S_PREP}, 0
s_cbranch_scc1 {l1}
s_waitcnt vmcnt({n2})
s_branch {l2}""")
        a.label(l1)
        a(f"s_waitcnt vmcnt({n})")
        a.label(l2)
    else:
        a(f"s_waitcnt vmcnt({n})")
    if st in PREBAR: PREBAR[st]()
    a("s_barrier")
    if st in STG_STAMP: stamp2(a, STG_STAMP[st])

def steps(a, g0, g1, swapped, hooks):
    for g in range(g0, g1):
        wf = WFB[g % 3]
        nst = (g + LA) >> 2
        if (g + LA) & 3 == 0 and nst < 20:
            enter_stage(a, nst)
        xonly = swapped == "x"
        reads(a, g + LA, xonly)
        if (g + LA) & 3 == 0 and nst in hooks: hooks[nst]()
        a(f"s_waitcnt lgkmcnt({LA if xonly else sum(nreads(g+i) for i in range(1, LA+1))})")
        for ft in range(0 if xonly else 2):
            A, B = vr(wf+4*ft,4), vr(XR+4*(g%40),4)
            if swapped: A, B = B, A
            c = "0" if g % 40 == 0 else vr(ACC+16*ft,16)
            a(f"v_mfma_f32_32x32x16_bf16 {vr(ACC+16*ft,16)}, {A}, {B}, {c}")
            for ln in FILL.get((g, ft), []): a.raw(ln)
        ds, pc = ((g + LA) >> 2) + DIST - 1, (g + LA) & 3
        for x in dma_sched(ds, pc): dma_piece(a, *x)
        for j in [j for j in range(4) if int(STORE_AT[j]) == g]:
            a(f"buffer_store_dwordx4 {vr(HOLD[j],4)}, v{EA+j}, {q4(SRD_WS)}, 0 offen sc1")
            VM.append("epi")

def set_fill(fn, g0, g1):
    t = Asm(); fn(t)
    lines = [l for l in t.lines if l.strip() and not l.strip().startswith(";")]
    slots = [(g, ft) for g in range(g0, g1) for ft in range(2)]
    per = -(-len(lines) // len(slots))
    for i, sl in enumerate(slots):
        FILL.setdefault(sl, []).extend(lines[i*per:(i+1)*per])

def set_block(fn, g):
    t = Asm(); fn(t)
    FILL.setdefault((g, 1), []).extend(t.lines)

def swap23(a, dst, src, tmp):
    a(f"""v_and_b32 v{dst}, 0x13, v{src}
v_bfe_u32 v{tmp}, v{src}, 2, 1
v_lshl_or_b32 v{dst}, v{tmp}, 3, v{dst}
v_bfe_u32 v{tmp}, v{src}, 3, 1
v_lshl_or_b32 v{dst}, v{tmp}, 2, v{dst}""")

AF, GT, PM, PL, IA, IB, D = 124, 160, 168, 180, 192, 204, 216
S_U, S_P, S_BLK = 51, 52, 53
def prep_issue(a):
    a(f"""
s_mul_i32 s54, s{S_P}, 1600
s_lshl_b32 s55, s{S_W}, 11
s_add_u32 s55, s55, {TOP}
v_cmp_gt_u32 vcc, 36, v{VL}
v_mov_b32 v37, {OOB}
s_mov_b32 m0, s55
v_cndmask_b32 v36, v37, v{L16}, vcc
buffer_load_dwordx4 v{L16}, {q4(SRD_PHI)}, s54 offen lds
buffer_load_dwordx4 v36, {q4(SRD_PHI)}, s54 offen offset:1024 lds
""")
    swap23(a, 36, VN, 38)
    a(f"""
v_mul_u32_u24 v36, 3840, v36
v_lshl_add_u32 v36, v{VH}, 4, v36
v_cmp_eq_u32 vcc, 0, v{VH}
s_mul_i32 s54, s{S_BLK}, {32*3840}
s_mul_i32 s56, s{S_P}, 80
s_add_u32 s54, s54, s56
v_cndmask_b32 v37, v37, v36, vcc
v_lshlrev_b32 v38, 4, v{VH}
s_lshl_b32 s56, s{S_BLK}, 6
""")
    for seg in range(3):
        for u in range(3):
            a(f"buffer_load_dwordx4 {vr(AF+4*(3*seg+u),4)}, v{37 if u==2 else 36}, {q4(SRD_WB)}, s54 offen offset:{1280*seg+32*u}")
    a(f"""buffer_load_dwordx4 {vr(GT,4)}, v38, {q4(SRD_GATE)}, s56 offen
buffer_load_dwordx4 {vr(GT+4,4)}, v38, {q4(SRD_GATE)}, s56 offen offset:32""")
    VM.extend(["p:phi"] * 2 + ["p:ld"] * 11)

def prep_compute(a):
    nyounger = vm_after('p:ld', True)
    a(f"""
v_bfe_u32 v36, v{VL}, 2, 2
v_lshl_add_u32 v36, v{VH}, 3, v36
v_and_b32 v37, 1, v{VL}
v_mul_u32_u24 v37, 20, v37
v_sub_u32 v38, v36, v37
v_bfe_u32 v39, v{VL}, 1, 1
v_bfe_u32 v1, v{VL}, 4, 1
v_lshl_add_u32 v39, v1, 1, v39
v_mul_u32_u24 v36, 40, v36
v_add_u32 v36, s55, v36
v_lshl_add_u32 v0, v39, 3, v36
v_cmp_eq_u32 s[58:59], 0, v39
s_add_u32 s57, s55, 1600
v_mov_b32 v37, s57
s_waitcnt vmcnt({nyounger + 11})
""")
    for u in range(3):
        for aa in range(2):
            k0 = 16*u + 4*aa
            a(f"""v_add_u32 v1, {k0}, v38
v_cmp_gt_u32 vcc, 20, v1
v_add_u32 v1, {k0*40}, v0
v_add_u32 v39, {k0*40 + 32}, v36
v_cndmask_b32 v1, v37, v1, vcc
s_and_b64 vcc, vcc, s[58:59]
ds_read_b64_tr_b16 {vr(PM+4*u+2*aa,2)}, v1
v_cndmask_b32 v39, v37, v39, vcc
ds_read_b64_tr_b16 {vr(PL+4*u+2*aa,2)}, v39""")
    a(f"""
v_and_b32 v0, 3, v{VN}
v_lshlrev_b32 v0, 4, v0
v_mov_b32 v36, 0x3f80
v_mov_b32 v37, 0
v_lshlrev_b64 v[36:37], v0, v[36:37]
v_bfe_u32 v0, v{VN}, 2, 1
v_mul_u32_u24 v0, 5, v0
v_lshrrev_b32 v1, 3, v{VN}
v_add_u32 v0, v0, v1
v_lshlrev_b32 v38, 1, v{VH}
v_sub_u32 v0, v0, v38
v_cmp_eq_u32 vcc, 0, v1
v_mov_b32 v38, 99
v_mov_b32 v39, {f32hex(LOG2E)}
v_cndmask_b32 v0, v0, v38, vcc
v_cndmask_b32 v39, 1.0, v39, vcc
v_cmp_eq_u32 s[58:59], 3, v1
""")
    for u in range(3):
        for aa in range(2):
            kq = 4*u + aa
            a(f"""v_cmp_eq_u32 vcc, {kq+1}, v0
s_nop 1
v_cndmask_b32 v{IA+4*u+2*aa}, 0, v36, vcc
v_cndmask_b32 v{IA+4*u+2*aa+1}, 0, v37, vcc
v_cmp_eq_u32 vcc, {kq-2}, v0
s_nop 1
v_cndmask_b32 v{IB+4*u+2*aa}, 0, v36, vcc
v_cndmask_b32 v{IB+4*u+2*aa+1}, 0, v37, vcc""")
    a(f"""
s_mul_i32 s54, s{S_P}, {40*4096}
s_lshl_b32 s56, s{S_BLK}, 13
s_add_u32 s54, s54, s56
s_add_u32 s54, s54, {WBF}
s_add_u32 s56, s54, 4096
s_mov_b32 s57, {f32hex(LOG2E)}
s_waitcnt vmcnt({nyounger}) lgkmcnt(0)
""")

    plan = [[(0, PM)], [(0, PL), (2, IA)], [(1, PM)], [(1, PL), (2, IB)]]
    def mm(t):
        d = D + 16*(t & 1)
        first = True
        for seg, fr in plan[t]:
            for u in range(3):
                a(f"v_mfma_f32_32x32x16_bf16 {vr(d,16)}, {vr(AF+4*(3*seg+u),4)}, {vr(fr+4*u,4)}, {'0' if first else vr(d,16)}")
                first = False
    def fin(t):
        d = D + 16*(t & 1)
        for e in range(16):
            a(f"v_mul_f32 v{d+e}, {'s57' if t % 2 == 0 else 'v39'}, v{d+e}")
        for g in range(2):
            r = d + 8*g
            for e in range(4):
                a(f"v_cvt_pk_bf16_f32 v{r+e}, v{r+2*e}, v{r+2*e+1}")
            if t == 3:
                for e in range(4):
                    a(f"v_cndmask_b32 v{r+e}, v{r+e}, v{GT+4*g+e}, s[58:59]")
        a(f"""buffer_store_dwordx4 {vr(d,4)}, v{L16}, {q4(SRD_WS)}, s54 offen offset:{t*1024} sc1
buffer_store_dwordx4 {vr(d+8,4)}, v{L16}, {q4(SRD_WS)}, s56 offen offset:{t*1024} sc1""")
    mm(0); mm(1); a("s_nop 7"); fin(0); a("s_nop 1"); mm(2); fin(1); a("s_nop 1"); mm(3); fin(2); a("s_nop 3"); fin(3)
    VM.extend(["p:st"] * 8)
    lb = a.newlabel("nz")
    a(f"""
s_cmp_lg_u32 s{S_BLK}, 0
s_cbranch_scc1 {lb}
s_lshl_b32 s54, s{S_P}, 13
s_add_u32 s54, s54, {KVACC}
s_add_u32 s56, s54, 4096
v_mov_b32 v{AF}, 0
v_mov_b32 v{AF+1}, 0
v_mov_b32 v{AF+2}, 0
v_mov_b32 v{AF+3}, 0
""")
    for i in range(4):
        a(f"""buffer_store_dwordx4 {vr(AF,4)}, v{L16}, {q4(SRD_WS)}, s54 offen offset:{i*1024} sc1
buffer_store_dwordx4 {vr(AF,4)}, v{L16}, {q4(SRD_WS)}, s56 offen offset:{i*1024} sc1""")
    a.label(lb)

def phi(a, u, dst, EP, T):
    mx, mn, sp, sn = T, T+1, T+2, T+4
    a(f"v_max3_f32 v{mx}, v{u}, v{u+1}, v{u+2}\nv_min3_f32 v{mn}, v{u}, v{u+1}, v{u+2}")
    for e in range(3, 19, 2):
        a(f"v_max3_f32 v{mx}, v{u+e}, v{u+e+1}, v{mx}\nv_min3_f32 v{mn}, v{u+e}, v{u+e+1}, v{mn}")
    a(f"v_max_f32 v{mx}, v{u+19}, v{mx}\nv_min_f32 v{mn}, v{u+19}, v{mn}")
    for e in range(0, 20, 2):
        a(f"v_pk_add_f32 {vr(EP+e,2)}, {vr(mx,2)}, {vr(u+e,2)} op_sel:[1,0] op_sel_hi:[1,1] neg_lo:[0,1] neg_hi:[0,1]")
        a(f"v_pk_add_f32 {vr(u+e,2)}, {vr(u+e,2)}, {vr(mx,2)} op_sel:[0,0] op_sel_hi:[1,0] neg_lo:[0,1] neg_hi:[0,1]")
    for e in range(20):
        a(f"v_exp_f32 v{EP+e}, v{EP+e}\nv_exp_f32 v{u+e}, v{u+e}")
    a(f"v_pk_add_f32 {vr(sp,2)}, {vr(u,2)}, {vr(u+2,2)}\nv_pk_add_f32 {vr(sn,2)}, {vr(EP,2)}, {vr(EP+2,2)}")
    for e in range(4, 20, 2):
        a(f"v_pk_add_f32 {vr(sp,2)}, {vr(sp,2)}, {vr(u+e,2)}\nv_pk_add_f32 {vr(sn,2)}, {vr(sn,2)}, {vr(EP+e,2)}")
    a(f"""v_add_f32 v{sp}, v{sp}, v{sp+1}
v_add_f32 v{sp+1}, v{sn}, v{sn+1}
v_rcp_f32 v{sp}, v{sp}
v_rcp_f32 v{sp+1}, v{sp+1}
s_nop 0""")
    for e in range(0, 20, 2):
        a(f"v_pk_mul_f32 {vr(u+e,2)}, {vr(u+e,2)}, {vr(sp,2)} op_sel:[0,0] op_sel_hi:[1,0]")
        a(f"v_pk_mul_f32 {vr(EP+e,2)}, {vr(EP+e,2)}, {vr(sp,2)} op_sel:[0,1] op_sel_hi:[1,1]")
    for e in range(10):
        a(f"v_cvt_pk_bf16_f32 v{dst+e}, v{u+2*e}, v{u+2*e+1}\nv_cvt_pk_bf16_f32 v{dst+10+e}, v{EP+2*e}, v{EP+2*e+1}")

def gen_p12(a, p2hooks):
    nonce_publish(a)
    a(f"""
s_mov_b32 s{S_P}, s{S_NT}
s_mov_b32 s{S_BLK}, s{S_MT}
s_cmp_eq_u32 s{S_W}, 0
s_cselect_b32 s{S_PREP}, 1, 0
s_cbranch_scc1 L_p_sel
s_cmp_lg_u32 s{S_NT}, 15
s_cbranch_scc1 L_p_sel
s_and_b32 s{S_P}, s{S_MT}, 3
s_lshl_b32 s{S_P}, s{S_P}, 2
s_add_u32 s{S_P}, s{S_P}, s{S_W}
s_sub_u32 s{S_P}, s{S_P}, 1
s_lshr_b32 s{S_BLK}, s{S_MT}, 2
s_add_u32 s{S_BLK}, s{S_BLK}, 16
s_cmp_lt_u32 s{S_W}, 5
s_cselect_b32 s{S_PREP}, 1, 0
L_p_sel:
""")
    VM.clear()
    E = os.environ.get
    LATE = int(E("PREPLATE", "0"))
    def do_prep(fn):
        lb = a.newlabel("pp")
        a(f"s_cmp_eq_u32 s{S_PREP}, 0\ns_cbranch_scc1 {lb}")
        fn(a)
        a.label(lb)
    if not LATE: do_prep(prep_issue)
    def early(a):
        lb = a.newlabel("pe")
        a(f"s_cmp_lg_u32 s{S_NT}, 15\ns_cbranch_scc1 {lb}")
        sv = list(VM)
        prep_compute(a)
        VM[:] = sv
        a("s_waitcnt vmcnt(0)")
        wb_flag_set(a)
        a(f"s_mov_b32 s{S_PREP}, 0")
        a.label(lb)
    do_prep(early)
    ROT = E("ROT", "4")
    if ROT == "full":
        a(f"""s_lshr_b32 s54, s{S_J}, 3
s_mul_i32 s54, s54, 5
s_add_u32 s54, s54, 1
s_lshr_b32 s54, s54, 1
s_and_b32 s56, s{S_J}, 7
s_add_u32 s{S_KR}, s54, s56
s_sub_u32 s54, s{S_KR}, 10
s_cmp_ge_u32 s{S_KR}, 10
s_cselect_b32 s{S_KR}, s54, s{S_KR}""")
    elif ROT == "4":
        a(f"""s_lshr_b32 s54, s{S_J}, 3
s_add_u32 s54, s54, s{S_J}
s_and_b32 s54, s54, 3
s_mul_i32 s54, s54, 5
s_add_u32 s54, s54, 1
s_lshr_b32 s{S_KR}, s54, 1""")
    elif ROT == "2":
        a(f"""s_lshr_b32 s54, s{S_J}, 3
s_add_u32 s54, s54, s{S_J}
s_and_b32 s54, s54, 1
s_mul_i32 s{S_KR}, s54, 5""")
    else:
        a(f"s_mov_b32 s{S_KR}, 0")
    a(f"""
v_lshrrev_b32 v36, 3, v{VL}
s_lshl_b32 s54, s{S_MT}, 7
s_lshl_b32 s56, s{S_W}, 4
s_add_u32 s54, s54, s56
v_add_u32 v36, s54, v36
v_mul_u32_u24 v36, 1280, v36
v_lshrrev_b32 v37, 4, v{VL}
v_and_b32 v38, 7, v{VL}
v_xor_b32 v38, v38, v37
v_lshlrev_b32 v38, 4, v38
v_add_u32 v{XG0}, v36, v38
v_xor_b32 v38, 64, v38
v_add_u32 v{XG1}, v36, v38
v_add_u32 v{XG1}, {8*1280}, v{XG1}
s_lshl_b32 s54, s{S_W}, 3
v_add_u32 v36, s54, v37
v_mul_u32_u24 v36, 3840, v36
v_and_b32 v38, 15, v{VL}
v_lshlrev_b32 v37, 2, v37
v_xor_b32 v38, v38, v37
v_lshlrev_b32 v38, 4, v38
v_add_u32 v36, v36, v38
s_lshl_b32 s54, s{S_NT}, 8
s_cmp_eq_u32 s{S_NT}, 15
s_cselect_b32 s54, 0x70000000, s54
v_add_u32 v{WG}, s54, v36
s_lshl_b32 s{S_LB}, s{S_W}, 11
s_mul_i32 s{S_WBB}, s{S_NT}, {40*4096}
s_add_u32 s{S_WBB}, s{S_WBB}, s{S_LB}
s_add_u32 s{S_WBB}, s{S_WBB}, {WBF}
""")
    if not LATE: a("s_barrier")
    dma(a, 0)
    a("s_barrier")
    if LATE == 1: do_prep(prep_issue)
    dma(a, 1)
    if LATE == 2:
        a("s_barrier")
        do_prep(prep_issue)
    a(f"""
s_lshl_b32 s54, s{S_TT}, 12
v_lshlrev_b32 v36, 7, v{VN}
v_add_u32 v36, s54, v36
v_bfe_u32 v37, v{VN}, 1, 3
v_xor_b32 v37, v37, v{VH}
""")
    for ks in range(4):
        a(f"""v_xor_b32 v38, {2*ks}, v37
v_lshl_add_u32 v{XA+ks}, v38, 4, v36
v_add_u32 v{XA+4+ks}, 0x10000, v{XA+ks}""")
    a(f"""
v_bfe_u32 v36, v{VL}, 2, 2
v_lshl_add_u32 v37, v{VH}, 3, v36
v_lshlrev_b32 v37, 8, v37
v_add_u32 v37, 16384, v37
v_and_b32 v38, 1, v{VL}
v_bfe_u32 v1, v{VL}, 1, 1
s_cmp_ge_u32 s{S_NT}, 10
s_cselect_b64 vcc, -1, 0
v_cndmask_b32 v0, v1, v38, vcc
v_cndmask_b32 v1, v38, v1, vcc
v_lshl_add_u32 v37, v0, 3, v37
v_bfe_u32 v38, v{VL}, 4, 1
v_lshl_add_u32 v38, v38, 1, v1
s_lshl_b32 s54, s{S_FH}, 3
v_add_u32 v38, s54, v38
v_lshlrev_b32 v36, 2, v36
v_xor_b32 v38, v38, v36
v_lshl_add_u32 v{WA}, v38, 4, v37
v_xor_b32 v38, 4, v38
v_lshl_add_u32 v{WA+1}, v38, 4, v37
v_add_u32 v{WA+2}, 0x10000, v{WA}
v_add_u32 v{WA+3}, 0x10000, v{WA+1}
s_lshl_b32 s54, s{S_FH}, 11
s_add_u32 s54, s54, 65536
v_add_u32 v{WB}, s54, v{L16}
v_add_u32 v{WB+1}, 0x10000, v{WB}
s_lshl_b32 s{S_T}, s{S_MT}, 2
s_add_u32 s{S_T}, s{S_T}, s{S_TT}
""")
    if not LATE: do_prep(prep_compute)
    a(f"v_mov_b32 v0, 0\nbuffer_load_dword v35, v0, {q4(SRD_DBG)}, 0 offen sc0 sc1")
    VM.append("nonce")
    for i in range(LA): dma_piece(a, 2, i)
    VM0 = list(VM)
    a(f"""
s_cmp_ge_u32 s{S_NT}, 10
s_cbranch_scc1 L_p1_v
""")
    def h_pub():
        lb = a.newlabel("pa")
        a(f"s_cmp_eq_u32 s{S_PREP}, 0\ns_cbranch_scc1 {lb}")
        a(f"s_waitcnt vmcnt({vm_after('nonce', True)})\nv_readfirstlane_b32 s{S_NONCE}, v35")
        wb_flag_set(a)
        a.label(lb)
    def h_wb_issue():
        lb = a.newlabel("pw")
        a(f"""s_cmp_lg_u32 s{S_W}, 7
s_cbranch_scc1 {lb}
s_lshl_b32 s60, s{S_NT}, 9
s_add_u32 s60, s60, {FL_WB}
v_min_u32 v0, 19, v{VL}
v_lshlrev_b32 v0, 4, v0
buffer_load_dword v34, v0, {q4(SRD_WS)}, s60 offen sc0 sc1""")
        a.label(lb)
    def h_wb_check():
        lb = a.newlabel("pw")
        a(f"""s_cmp_lg_u32 s{S_W}, 7
s_cbranch_scc1 {lb}
v_cmp_ne_u32 vcc, s{S_NONCE}, v34
s_cmp_eq_u32 s{S_NONCE}, 0
s_cselect_b32 s60, 1, 0
s_nop 2
s_or_b32 s60, s60, vcc_lo
s_or_b32 s60, s60, vcc_hi
s_cbranch_scc0 {lb}""")
        wb_flag_wait(a)
        a.label(lb)
    PREBAR[8] = h_wb_check
    hooks1 = {1: h_pub, 2: lambda: a(f"v_readfirstlane_b32 s60, v35\ns_max_u32 s{S_NONCE}, s{S_NONCE}, s60"), 3: lambda: stamp(a, 2), 6: h_wb_issue, 9: lambda: stamp(a, 3)}
    def p1(swapped):
        VM[:] = VM0
        enter_stage(a, 0)
        stamp(a, 1)
        for i in range(LA): reads(a, i, swapped == 'x')
        steps(a, 0, 40, swapped, hooks1)
    a(f"""
s_cmp_ge_u32 s{S_NT}, 5
s_cselect_b32 s54, 5, 0
s_sub_u32 s54, s{S_NT}, s54
s_lshl_b32 s54, s54, 4
s_lshl_b32 s56, s{S_FH}, 3
s_add_u32 s54, s54, s56
s_cmp_ge_u32 s{S_NT}, 5
s_mov_b32 s56, {64*1280}
s_cselect_b32 s58, {64*2560}, s56
s_mov_b32 s56, 1280
s_cselect_b32 s59, 2560, s56
s_mov_b32 s56, {QIMG}
s_cselect_b32 s63, {KVIMG}, s56
s_mov_b32 s56, {f32hex(QSCALE)}
s_cselect_b32 s64, 1.0, s56
s_mul_i32 s59, s59, s{S_T}
s_add_u32 s63, s63, s59
s_lshl_b32 s59, s58, 1
s_sub_u32 s65, s58, 1536
""")
    a(f"""
v_mov_b32 v36, v{VN}
v_add_u32 v38, s54, v{VH}
v_bfe_u32 v0, v{VN}, 2, 1
v_mul_u32_u24 v1, 3, v0
v_xor_b32 v1, v1, v{VN}
v_and_b32 v1, 3, v1
v_lshlrev_b32 v1, 4, v1
v_lshrrev_b32 v39, 3, v{VN}
v_lshl_add_u32 v39, v39, 6, v1
v_mul_lo_u32 v0, v0, s58
v_add_u32 v39, v39, v0
v_add_u32 v39, 1024, v39
""")
    for j in range(4):
        a(f"""v_add_u32 v0, {2*j}, v38
v_mul_u32_u24 v1, 205, v0
v_lshrrev_b32 v1, 10, v1
v_mul_u32_u24 v37, 5, v1
v_sub_u32 v0, v0, v37
v_mul_lo_u32 v1, v1, s59
v_add_u32 v1, s63, v1
v_cmp_lt_u32 vcc, 2, v0
v_lshl_add_u32 v37, v0, 9, v1
v_lshl_add_u32 v37, v36, 4, v37
v_add_u32 v{EA+j}, s65, v37
v_cndmask_b32 v37, v37, v{EA+j}, vcc
v_cmp_eq_u32 s[{SPM[j]}:{SPM[j]+1}], 2, v0
v_add_u32 v1, v1, v39
s_nop 0
v_cndmask_b32 v{EA+j}, v37, v1, s[{SPM[j]}:{SPM[j]+1}]""")
    p1(False)
    a("s_nop 7\ns_nop 3")
    for j in range(4):
        r = ACC + 8*j
        for e in range(0, 8, 2):
            a(f"v_pk_mul_f32 {vr(r+e,2)}, {vr(r+e,2)}, s[64:65] op_sel_hi:[1,0]")
        for e in range(4):
            a(f"v_cvt_pk_bf16_f32 v{HOLD[j]+e}, v{r+2*e}, v{r+2*e+1}")
    for j in range(4):
        h = HOLD[j]
        lb = a.newlabel("sp")
        a(f"""s_cmp_eq_u64 s[{SPM[j]}:{SPM[j]+1}], 0
s_cbranch_scc1 {lb}
s_mov_b64 exec, s[{SPM[j]}:{SPM[j]+1}]
v_mov_b64 v[0:1], {vr(h+2,2)}
v_mov_b32_dpp v{h+2}, v{h} row_half_mirror row_mask:0xf bank_mask:0x5
v_mov_b32_dpp v{h+3}, v{h+1} row_half_mirror row_mask:0xf bank_mask:0x5
v_mov_b32_dpp v{h}, v0 row_half_mirror row_mask:0xf bank_mask:0xa
v_mov_b32_dpp v{h+1}, v1 row_half_mirror row_mask:0xf bank_mask:0xa
s_mov_b64 exec, -1""")
        a.label(lb)
    a("s_branch L_p2")
    a.label("L_p1_x")
    p1("x")
    for i in range(4):
        a(f"v_mov_b32 v{EA+i}, {OOB}")
    a("s_branch L_p2")
    a.label("L_p1_v")
    a(f"""
s_cmp_eq_u32 s{S_NT}, 15
s_cbranch_scc1 L_p1_x
s_sub_u32 s54, s{S_NT}, 10
s_lshl_b32 s54, s54, 7
s_lshl_b32 s56, s{S_FH}, 6
s_add_u32 s54, s54, s56
s_mul_i32 s63, s{S_T}, 2560
s_add_u32 s63, s63, {KVIMG + 1280}
s_mov_b32 s58, {64*2560}
v_mul_u32_u24 v36, 320, v{VH}
v_add_u32 v36, s63, v36
v_add_u32 v38, s54, v{VN}
""")
    for ft in range(2):
        a(f"""v_add_u32 v0, {32*ft}, v38
v_mul_u32_u24 v1, 3277, v0
v_lshrrev_b32 v1, 16, v1
v_mul_u32_u24 v37, 20, v1
v_sub_u32 v0, v0, v37
v_mul_lo_u32 v1, v1, s58
v_lshl_add_u32 v1, v0, 4, v1
v_add_u32 v{EA+2*ft}, v1, v36
v_add_u32 v{EA+2*ft+1}, 640, v{EA+2*ft}""")
    p1(True)
    a("s_nop 7\ns_nop 7")
    for j in range(4):
        for e in range(4):
            a(f"v_cvt_pk_bf16_f32 v{HOLD[j]+e}, v{ACC+8*j+2*e}, v{ACC+8*j+2*e+1}")
    a.label("L_p2")
    a(f"v_add_u32 v{WBR[0]}, 0xffff0000, v{WB}")
    def h_qkv():
        lb = a.newlabel("qa")
        a(f"s_cmp_lg_u32 s{S_W}, 7\ns_cbranch_scc1 {lb}")
        a(f"s_lshl_b32 s60, s{S_NT}, 4\ns_add_u32 s60, s60, s{S_MT}\ns_lshl_b32 s60, s60, 4\ns_add_u32 s60, s60, {FL_QKV}")
        flag_set(a, "s60")
        a.label(lb)
    stamp(a, 4)
    hooks2 = dict(p2hooks)
    hooks2[QST] = h_qkv
    steps(a, 40, 80, False, hooks2)
    stamp(a, 5)

T0, T1, T2, T3, T4, T5, T6, T7 = 194, 195, 196, 197, 198, 199, 216, 217
S_KVA = 79
def b_addr(a):
    a(f"""
s_lshl_b32 s54, s{S_TT}, 5
v_add_u32 v{T0}, s54, v{VN}
v_mul_u32_u24 v{T0}, {BROW}, v{T0}
v_add_u32 v{T0}, {STG}, v{T0}
v_mul_u32_u24 v{T2}, 48, v{VH}
v_add_u32 v{T2}, v{T2}, v{T0}
v_mul_u32_u24 v{T1}, 80, v{VH}
v_add_u32 v{T1}, v{T1}, v{T0}
s_and_b32 s57, s{S_W}, 1
s_bfe_u32 s58, s{S_W}, 0x10001
v_bfe_u32 v6, v{VL}, 2, 2
v_lshl_add_u32 v6, v{VH}, 3, v6
v_mul_u32_u24 v6, {BROW}, v6
v_bfe_u32 v7, v{VL}, 4, 1
v_lshl_add_u32 v6, v7, 5, v6
v_and_b32 v7, 3, v{VL}
v_lshl_add_u32 v6, v7, 3, v6
s_mul_i32 s54, s57, 48
s_add_u32 s54, s54, {160 + STG}
v_add_u32 v{T3}, s54, v6
s_mul_i32 s54, s57, 80
s_lshl_b32 s56, s58, 6
s_add_u32 s54, s54, s56
s_add_u32 s54, s54, {STG}
v_add_u32 v{T4}, s54, v6
s_lshl_b32 s{S_KVA}, s{S_NT}, 1
s_add_u32 s{S_KVA}, s{S_KVA}, s57
s_lshl_b32 s{S_KVA}, s{S_KVA}, 12
s_add_u32 s{S_KVA}, s{S_KVA}, {KVACC}
s_lshl_b32 s56, s58, 5
v_add_u32 v6, s56, v{VN}
v_cmp_gt_u32 vcc, 40, v6
v_lshlrev_b32 v6, 2, v6
v_mul_u32_u24 v7, 640, v{VH}
v_add_u32 v6, v6, v7
v_mov_b32 v7, {OOB}
v_cndmask_b32 v{T5}, v7, v6, vcc
v_cmp_gt_u32 vcc, 32, v{VL}
s_nop 1
v_cndmask_b32 v{T6}, v7, v{T5}, vcc
""")

def b_stage(a):
    for e in range(6):
        a(f"v_cvt_pk_bf16_f32 v{168+e}, v{ACC+20+2*e}, v{ACC+21+2*e}")
    a(f"""
s_cmp_eq_u32 s{S_FH}, 0
s_cbranch_scc0 L_b_k
ds_write_b128 v{T2}, v[168:171] offset:160
ds_write_b64 v{T2}, v[172:173] offset:176
v_mov_b64 {vr(PHQ_R+20,2)}, 0
v_mov_b64 {vr(PHQ_R+22,2)}, 0
""")
    for g in range(3):
        for e in range(4):
            a(f"v_permlane32_swap_b32 v{PHQ_R+8*g+e}, v{PHQ_R+8*g+4+e}")
    a(f"""
s_branch L_b_staged
L_b_k:
v_mul_f32 v{ACC+28}, {f32hex(-LOG2E)}, v{ACC+28}
v_exp_f32 v{ACC+28}, v{ACC+28}
v_mov_b32 v172, 0x3f80
v_add_f32 v{ACC+28}, 1.0, v{ACC+28}
v_rcp_f32 v174, v{ACC+28}
v_mov_b32 v173, 0
ds_write_b64 v{T2}, v[168:169] offset:184
ds_write_b128 v{T2}, v[170:173] offset:192
v_sub_f32 v175, 1.0, v174
""")
    for i in range(5):
        a(f"ds_write_b128 v{T1}, {vr(PHQ_R+4*i,4)} offset:{16*i}")
    a(f"""
ds_write_b32 v{T0}, v175 offset:256
s_cmp_lg_u32 s{S_NT}, 0
s_cbranch_scc1 L_b_staged
s_lshl_b32 s54, s{S_T}, 7
s_add_u32 s54, s54, {GATE}
v_lshlrev_b32 v0, 2, v{VN}
buffer_store_dword v174, v0, {q4(SRD_WS)}, s54 offen sc1
L_b_staged:
""")

def b_kv(a):
    a(f"""
s_cmp_eq_u32 s{S_FH}, 0
s_cbranch_scc0 L_b_k2
ds_read_b32 v{OMG}, v{T0} offset:256
s_branch L_b_done
L_b_k2:
""")
    KD, FR = 200, 168
    def kvreads(ks):
        b = FR + 8*(ks % 3)
        for aa in range(2):
            a(f"ds_read_b64_tr_b16 {vr(b+2*aa,2)}, v{T3} offset:{(16*ks+4*aa)*BROW}")
            a(f"ds_read_b64_tr_b16 {vr(b+4+2*aa,2)}, v{T4} offset:{(16*ks+4*aa)*BROW}")
    kvreads(0); kvreads(1)
    for ks in range(8):
        b = FR + 8*(ks % 3)
        if ks + 2 < 8: kvreads(ks + 2)
        a(f"s_waitcnt lgkmcnt({4*min(2, 7-ks)})")
        a(f"v_mfma_f32_32x32x16_bf16 {vr(KD,16)}, {vr(b,4)}, {vr(b+4,4)}, {'0' if ks == 0 else vr(KD,16)}")
    a.label("L_b_done")
def b_atomics(a):
    for r in range(12):
        ad = T6 if r > 8 else T5
        a(f"buffer_atomic_add_f32 v{200+r}, v{ad}, {q4(SRD_WS)}, s{S_KVA} offen offset:{(8*(r//4) + r%4)*160}")
```

```python
from asmlib import *
from layout import *
import f1
from f1 import VL, L16, VN, VH, PHQ_R, OMG, swap23, flag_set, flag_wait, flag_wait2, nonce_get, S_T, VM, vm_after
SLOT = 10304
HALF = 6 * SLOT
FLG = 159232
import f3
S = [16, 32, 48, 64]; O = [80, 96]
Q1 = [112, 116]; Q2 = [120, 122]
K1 = [124, 128]; K2 = [132, 134]
V = [[136, 140], [144, 148]]
VA = 152; KA1 = 160; KA2 = 161; IDX = 162; DG = 163; K16 = 164; K8 = 165; MX = [166, 167]
QA8, OA4, OA2, ROWM = 12, 13, 14, 15
ONEA = f1.T7
RAW = 168
S_HEAD, S_QT, S_MODE, S_WIN, S_M0, S_KVB, S_IT, S_DLT = 66, 67, 68, 69, 70, 71, 72, 73
S_QP, S_KH = S_TT, S_FH

def kv_dma(a, pos):
    a(f"""s_add_u32 m0, s{S_M0}, {pos*2*SLOT}
s_add_u32 s54, s{S_WIN}, 4096
buffer_load_dwordx4 v{DG}, {q4(SRD_WS)}, s{S_WIN} offen lds
buffer_load_dwordx4 v{DG}, {q4(SRD_WS)}, s{S_WIN} offen offset:1024 lds
buffer_load_dwordx4 v{DG}, {q4(SRD_WS)}, s{S_WIN} offen offset:2048 lds
buffer_load_dwordx4 v{DG}, {q4(SRD_WS)}, s{S_WIN} offen offset:3072 lds
s_add_u32 m0, s{S_M0}, {pos*2*SLOT + 4096}
s_add_u32 s{S_WIN}, s{S_WIN}, 20480
buffer_load_dwordx4 v{DG}, {q4(SRD_WS)}, s54 offen lds""")
    VM.extend([("kv", pos)] * 5)

def attn_scalars(a):
    a(f"""
s_lshr_b32 s54, s{S_J}, 3
s_lshl_b32 s{S_HEAD}, s{S_XCD}, 2
s_add_u32 s{S_HEAD}, s{S_HEAD}, s54
s_and_b32 s54, s{S_J}, 7
s_lshl_b32 s54, s54, 3
s_lshl_b32 s{S_QT}, s{S_QP}, 1
s_add_u32 s{S_QT}, s{S_QT}, s54
s_mul_i32 s{S_KVB}, s{S_HEAD}, {64*2560}
s_add_u32 s{S_KVB}, s{S_KVB}, {KVIMG}
s_mul_i32 s54, s{S_QP}, 5120
s_lshr_b32 s{S_M0}, s{S_QP}, 1
s_mul_i32 s{S_M0}, s{S_M0}, {SLOT - 10240}
s_add_u32 s{S_M0}, s{S_M0}, s54
s_mul_i32 s54, s{S_KH}, {HALF}
s_add_u32 s{S_M0}, s{S_M0}, s54
s_mov_b32 s{S_MODE}, 0
""")

S_QF = 78
QGO = 163832
def qkv_addr(a):
    a(f"""s_mul_i32 s54, s{S_HEAD}, 20
s_lshr_b32 s55, s54, 7
s_add_u32 s54, s54, 19
s_lshr_b32 s54, s54, 7
s_sub_u32 s54, s54, s55
s_lshl_b32 s54, s54, 8
s_lshl_b32 s{S_QF}, s55, 8
s_add_u32 s{S_QF}, s{S_QF}, {FL_QKV}
v_min_u32 v6, 47, v{VL}
v_lshrrev_b32 v38, 4, v6
v_mul_u32_u24 v38, 1280, v38
v_bfe_u32 v7, v6, 3, 1
v_mul_u32_u24 v7, s54, v7
v_and_b32 v6, 7, v6
v_lshlrev_b32 v6, 4, v6
v_add3_u32 v38, v38, v7, v6
v_mov_b32 v39, {QGO}
v_mov_b32 v6, 0
ds_write_b32 v39, v6""")
def qkv_peek(a):
    a(f"""s_cmp_lg_u32 s{S_W}, 0
s_cbranch_scc1 L_pk1
buffer_load_dword v36, v38, {q4(SRD_WS)}, s{S_QF} offen sc0 sc1
buffer_load_dword v37, v38, {q4(SRD_WS)}, s{S_QF} offen offset:128 sc0 sc1
L_pk1:""")
def qkv_peek2(a):
    a(f"""s_mov_b32 s61, 1
s_cmp_lg_u32 s{S_W}, 0
s_cbranch_scc1 L_pk2
s_waitcnt vmcnt(0)
v_xor_b32 v36, s{S_NONCE}, v36
v_xor_b32 v37, s{S_NONCE}, v37
v_or_b32 v36, v36, v37
v_cmp_ne_u32 s[60:61], 0, v36
v_mov_b32 v36, s{S_NONCE}
s_nop 3
s_or_b32 s61, s60, s61
s_cselect_b32 s61, 0, 1
s_cbranch_scc1 L_pk2
ds_write_b32 v39, v36
L_pk2:""")

def attn_issue(a, first):
    if first:
        a(f"""
s_mul_i32 s54, s{S_QT}, 1280
s_mul_i32 s55, s{S_HEAD}, {64*1280}
s_add_u32 s54, s54, s55
s_add_u32 s54, s54, {QIMG}
buffer_load_dwordx4 {vr(Q1[0],4)}, v{L16}, {q4(SRD_WS)}, s54 offen
buffer_load_dword v{Q2[0]}, v{QA8}, {q4(SRD_WS)}, s54 offen offset:1024
buffer_load_dwordx4 {vr(Q1[1],4)}, v{L16}, {q4(SRD_WS)}, s54 offen offset:1280
buffer_load_dword v{Q2[1]}, v{QA8}, {q4(SRD_WS)}, s54 offen offset:2304
""")
        VM.extend(["qk"] * 4)
    a(f"""
s_mul_i32 s{S_WIN}, s{S_KH}, {32*2560}
s_add_u32 s{S_WIN}, s{S_WIN}, s{S_KVB}
buffer_load_dwordx4 {vr(K1[0],4)}, v{K16}, {q4(SRD_WS)}, s{S_KVB} offen
buffer_load_dword v{K2[0]}, v{K8}, {q4(SRD_WS)}, s{S_KVB} offen offset:1024
buffer_load_dwordx4 {vr(K1[1],4)}, v{K16}, {q4(SRD_WS)}, s{S_WIN} offen
buffer_load_dword v{K2[1]}, v{K8}, {q4(SRD_WS)}, s{S_WIN} offen offset:1024
s_add_u32 s{S_WIN}, s{S_WIN}, 1280
""")
    VM.extend(["qk"] * 4)
    kv_dma(a, 0)

def out_store(a, o, scale, head_s, tile_s, base):
    for i in range(0, 12, 2):
        a(f"v_pk_mul_f32 {vr(o+i,2)}, {vr(o+i,2)}, {vr(scale,2)} op_sel_hi:[1,0]")
    for i in range(6):
        a(f"v_cvt_pk_bf16_f32 v{o+i}, v{o+2*i}, v{o+2*i+1}")
    a(f"""
s_mul_i32 s54, {tile_s}, 40960
s_add_u32 s54, s54, {base}
s_lshl_b32 s56, {head_s}, 9
s_add_u32 s56, s56, s54
s_lshl_b32 s57, {head_s}, 7
s_add_u32 s57, s57, s54
buffer_store_dwordx4 {vr(o,4)}, v{OA4}, {q4(SRD_WS)}, s56 offen sc1
buffer_store_dwordx2 {vr(o+4,2)}, v{OA2}, {q4(SRD_WS)}, s57 offen sc1
""")

def p4_issue(a):
    if True:
        nonce_get(a)
        a(f"s_lshl_b32 s60, s{S_NT}, 10\ns_add_u32 s60, s60, {FL_KV}")
        flag_wait(a, "s60", 64)
    a(f"""
s_lshl_b32 s54, s{S_NT}, 13
s_add_u32 s54, s54, {KVACC}
s_add_u32 s55, s54, 4096
v_mov_b32 v8, {OOB}
""")
    a(f"""v_cmp_ge_u32 vcc, 20, v{ROWM}
v_mul_u32_u24 v6, 160, v{ROWM}
v_lshl_add_u32 v6, v{VH}, 5, v6
v_cndmask_b32 v6, v8, v6, vcc
v_cmp_gt_u32 vcc, 32, v{VL}
s_nop 1
v_cndmask_b32 v7, v8, v6, vcc""")
    for hh in range(2):
        for u in range(3):
            for hf in range(2):
                a(f"buffer_load_dwordx4 {vr(RAW+24*hh+8*u+4*hf,4)}, v{7 if u == 2 else 6}, {q4(SRD_WS)}, s{54+hh} offen offset:{64*u + 16*hf} sc0 sc1")

def p4_compute(a):
    for f in range(6):
        for e in range(4):
            a(f"v_cvt_pk_bf16_f32 v{RAW+4*f+e}, v{RAW+8*f+2*e}, v{RAW+8*f+2*e+1}")
    a("s_nop 1")
    D = [192, 208]
    for hh in range(2):
        for u in range(3):
            a(f"v_mfma_f32_32x32x16_bf16 {vr(D[hh],16)}, {vr(RAW+12*hh+4*u,4)}, {vr(PHQ_R+8*u+4*hh,4)}, {'0' if u == 0 else vr(D[hh],16)}")
    a(f"s_lshl_b32 s58, s{S_NT}, 1\ns_nop 7")
    for hh in range(2):
        a(f"""v_add_f32 v6, {f32hex(1e-6)}, v{D[hh]+12}
v_rcp_f32 v6, v6
s_nop 0
v_mul_f32 v6, v6, v{OMG}""")
        out_store(a, D[hh], 6, "s58", f"s{S_T}", OBF)
        if hh == 0: a("s_add_u32 s58, s58, 1")

def max_init(a):
    a(f"""
v_mov_b32 v{K2[0]+1}, 0x3f803f80
v_mov_b32 v{K2[1]+1}, 0x3f803f80
v_mov_b32 v{Q2[0]+1}, 0
v_mov_b32 v{Q2[1]+1}, 0
v_mov_b32 v{MX[0]}, 0xff800000
v_mov_b32 v{MX[1]}, 0xff800000
v_mov_b64 {vr(V[1][1],2)}, 0
v_mov_b64 {vr(V[1][1]+2,2)}, 0
""")
def qk(a, kb):
    for q in range(2):
        a(f"""v_mfma_f32_32x32x16_bf16 {vr(S[q],16)}, {vr(K1[kb],4)}, {vr(Q1[q],4)}, 0
v_mfma_f32_32x32x8_bf16 {vr(S[q],16)}, {vr(K2[kb],2)}, {vr(Q2[q],2)}, {vr(S[q],16)}""")
def max_acc(a):
    for q in range(2):
        for e in range(8):
            a(f"v_max3_f32 v{MX[q]}, v{S[q]+2*e}, v{S[q]+2*e+1}, v{MX[q]}")
def max_fin(a):
    a(f"v_cmp_gt_u32 vcc, 32, v{VL}\nv_mov_b32 v176, v{MX[0]}\nv_mov_b32 v179, v{MX[1]}\ns_nop 0")
    a(f"v_permlane32_swap_b32 v176, v{MX[0]}\nv_permlane32_swap_b32 v179, v{MX[1]}\ns_nop 0")
    for q in range(2):
        t = 176 + 3*q
        a(f"""v_max_f32 v{t}, v{t}, v{MX[q]}
v_xor_b32 v{t}, 0x80000000, v{t}
v_and_b32 v{t+1}, 0xffff0000, v{t}
v_sub_f32 v{t}, v{t}, v{t+1}
v_and_b32 v{t+2}, 0xffff0000, v{t}
v_sub_f32 v{t}, v{t}, v{t+2}
v_lshrrev_b32 v{t+1}, 16, v{t+1}
v_or_b32 v{t+1}, v{t+1}, v{t+2}
v_lshrrev_b32 v{t}, 16, v{t}
v_cndmask_b32 v{Q2[q]+1}, v{t}, v{t+1}, vcc""")
    a("s_nop 1")
def static_setup(a):
    swap23(a, ROWM, VN, 6)
    for dst, src in ((QA8, VN), (K8, ROWM)):
        a(f"""v_bfe_u32 v6, v{src}, 2, 1
v_mul_u32_u24 v6, 7, v6
v_lshlrev_b32 v7, 1, v{src}
v_and_b32 v7, 6, v7
v_xor_b32 v6, v6, v7
v_and_b32 v7, 24, v{src}
v_add_u32 v6, v6, v7
v_lshlrev_b32 v6, 3, v6
v_lshl_add_u32 v{dst}, v{VH}, 2, v6""")
    a(f"""
v_lshlrev_b32 v{K16}, 4, v{ROWM}
v_lshl_add_u32 v{K16}, v{VH}, 9, v{K16}
s_mul_i32 s54, s{S_QP}, 5120
v_add_u32 v{DG}, s54, v{L16}
v_cmp_gt_u32 vcc, 20, v{VN}
v_and_b32 v6, 27, v{VN}
v_mov_b32 v7, 31
v_cndmask_b32 v{ROWM}, v7, v{ROWM}, vcc
v_cmp_eq_u32 vcc, 24, v6
v_bfe_u32 v6, v{VL}, 4, 1
v_mul_u32_u24 v6, 20480, v6
v_cndmask_b32 v{ROWM}, v{ROWM}, 20, vcc
v_and_b32 v7, 15, v{VL}
v_lshl_add_u32 v{OA4}, v7, 4, v6
v_lshl_add_u32 v{OA4}, v{VH}, 8, v{OA4}
v_lshl_add_u32 v6, v7, 3, v6
v_add_u32 v6, 16384, v6
v_cmp_gt_u32 vcc, 32, v{VL}
v_mov_b32 v7, {OOB}
v_mov_b32 v{IDX}, 0xdddddddd
v_cndmask_b32 v{OA2}, v7, v6, vcc
s_mul_i32 s55, s{S_KH}, {HALF}
v_add_u32 v{KA1}, s55, v{K16}
v_add_u32 v{KA2}, s55, v{K8}
v_mul_u32_u24 v7, 320, v{VH}
v_lshl_add_u32 v7, v{ROWM}, 4, v7
v_cmp_eq_u32 vcc, 20, v{ROWM}
v_mov_b32 v8, 10240
v_mov_b32 v9, 10256
v_cndmask_b32 v9, v9, v8, vcc
v_cmp_gt_u32 vcc, 20, v{ROWM}
v_mov_b32 v8, 640
v_mov_b32 v10, 1920
v_cndmask_b32 v7, v9, v7, vcc
v_cndmask_b32 v8, 0, v8, vcc
v_cndmask_b32 v10, 0, v10, vcc
v_add_u32 v{VA}, s55, v7
""")
    for i in range(1, 8):
        a(f"v_add_u32 v{VA+i}, v{VA+i-1}, v{8 if i & 1 else 10}")
    max_init(a)
def ones_addr(a):
    a(f"""
v_min_u32 v6, 11, v{VL}
v_lshrrev_b32 v7, 1, v6
v_mul_u32_u24 v7, {SLOT}, v7
v_and_b32 v6, 1, v6
v_lshl_add_u32 v7, v6, 4, v7
s_mul_i32 s55, s{S_KH}, {HALF}
s_add_u32 s55, s55, 10240
v_add_u32 v{ONEA}, s55, v7
v_add_u32 v6, -1, v6
v_and_b32 v8, 0x3f803f80, v6
v_mov_b32 v9, v8
v_mov_b32 v10, v8
v_mov_b32 v11, v8
""")
def ones_write(a, mask):
    a(f"s_mov_b64 exec, {mask}\nds_write_b128 v{ONEA}, v[8:11]\ns_mov_b64 exec, -1")
def o_zero(a):
    for q in range(2):
        a(f"v_mfma_f32_32x32x16_bf16 {vr(O[q],16)}, {vr(V[1][1],4)}, {vr(V[1][1],4)}, 0")
def G(a, rec):
    pos = (0, 1, 2, 0, 1)[rec >> 3]
    slot, j, p = (rec >> 2) & 1, rec & 3, rec & 1
    so = (2*pos + slot) * SLOT
    a(f"""ds_read_b128 {vr(K1[p],4)}, v{KA1} offset:{so + j*2560 + 1280}
ds_read_b32 v{K2[p]}, v{KA2} offset:{so + j*2560 + 2304}
ds_read_b128 {vr(V[p][0],4)}, v{VA+2*j} offset:{so}
ds_read_b128 {vr(V[p][1],4)}, v{VA+2*j+1} offset:{so}""")

def cond(a, test, fn):
    lb = a.newlabel("c")
    a(test + f"\ns_cbranch_scc1 {lb}")
    fn()
    a.label(lb)

def gen_attn(a):
    E = os.environ.get
    nonce_get(a)
    a(f"s_cmp_lg_u32 s61, 0\ns_cbranch_scc1 L_q_other\nv_mov_b32 v0, v38")
    flag_wait2(a, f"s{S_QF}", sleep=2)
    a(f"v_mov_b32 v36, s{S_NONCE}\nds_write_b32 v39, v36")
    a.label("L_q_other")
    a("ds_read_b32 v36, v39")
    ones_write(a, 15)
    a(f"""s_waitcnt lgkmcnt(0)
v_readfirstlane_b32 s63, v36
s_nop 3
s_sub_u32 s63, s63, s{S_NONCE}
s_cmp_lg_u32 s63, 0
s_cbranch_scc1 L_q_notyet""")
    attn_issue(a, True)
    a.label("L_q_notyet")
    f1.phi(a, f1.ACC, PHQ_R, 168, 188)
    a(f"""s_cmp_eq_u32 s63, 0
s_cbranch_scc1 L_q_done
s_mov_b32 s62, 0x400000
L_q_spin:
ds_read_b32 v36, v39
s_waitcnt lgkmcnt(0)
v_readfirstlane_b32 s63, v36
s_cmp_eq_u32 s63, s{S_NONCE}
s_cbranch_scc1 L_q_go
s_sleep 1
s_sub_u32 s62, s62, 1
s_cmp_lg_u32 s62, 0
s_cbranch_scc1 L_q_spin
L_q_go:""")
    sv = list(VM)
    attn_issue(a, True)
    VM[:] = sv
    a.label("L_q_done")
    a(f"s_waitcnt vmcnt({vm_after('qk')})")
    qk(a, 0)
    f1.b_stage(a)
    max_acc(a); max_fin(a)
    qk(a, 1)
    o_zero(a)
    a(f"s_waitcnt vmcnt({vm_after(('kv', 0))}) lgkmcnt(0)")
    stamp(a, 6)
    a("s_barrier")
    if DIAG:
        stamp_flush(a, 0, S_W, 8, keep=True); stamp_init(a); stamp(a, 0)
    G(a, 0)
    ones_write(a, 0xff0)
    f1.b_kv(a)
    a.label("L_at_go")
    a("s_setprio 3\ns_waitcnt lgkmcnt(0)")
    stamp(a, 2)
    lo, hi = f"s_cmp_lg_u32 s{S_KH}, 0", f"s_cmp_eq_u32 s{S_KH}, 0"
    def h_kvflag():
        def f():
            a("s_waitcnt vmcnt(0)")
            nonce_get(a)
            a(f"s_lshl_b32 s60, s{S_NT}, 6\ns_add_u32 s60, s60, s{S_T}\ns_lshl_b32 s60, s60, 4\ns_add_u32 s60, s60, {FL_KV}")
            flag_set(a, "s60")
        cond(a, hi, f)
    def h8():
        a("s_waitcnt vmcnt(0)\ns_barrier")
        kv_dma(a, 0)
    def h_p4c():
        def f():
            a("s_waitcnt vmcnt(0)")
            p4_compute(a)
        cond(a, lo, f)
    def h_obflag():
        def f():
            a("s_waitcnt vmcnt(0)")
            a(f"s_lshl_b32 s60, s{S_T}, 4\ns_add_u32 s60, s60, s{S_NT}\ns_lshl_b32 s60, s60, 4\ns_add_u32 s60, s60, {FL_OB}")
            flag_set(a, "s60")
        cond(a, lo, f)
    def h24():
        a("s_waitcnt vmcnt(0)\ns_barrier")
        f3.p5_batch1(a, 0)
    def h2():
        cond(a, f"s_cmp_ge_u32 s{S_MODE}, s{S_KH}", lambda: f1.b_atomics(a))
    hooks = {1: lambda: kv_dma(a, 1), 2: h2, 3: lambda: kv_dma(a, 2), 7: h_kvflag, 9: lambda: f3.p5_setup(a), 8: h8, 10: lambda: f3.p5_pf(a), 11: lambda: cond(a, lo, lambda: p4_issue(a)), 14: h_p4c, 18: h_obflag,
             19: lambda: f3.p5_addr(a), 20: lambda: f3.p5_batch1(a, 2), 24: h24, 26: lambda: f3.p5_batch1(a, 1), 29: lambda: f3.p5_ob_issue(a)}
    PR = {0: 3, 3: 2, 5: 1, 7: 0}
    for t in range(32):
        for q in range(2):
            i = (2*t + q) & 3
            X, W, Y = S[i], S[(i-1) & 3], S[(i+2) & 3]
            p = t & 1
            pw, qw = (p, 0) if q == 1 else (1 - p, 1)
            ex = [f"v_exp_f32 v{X+e}, v{X+e}" for e in range(16)]
            a("\n".join(ex[0:2]))
            if t + q: a(f"v_smfmac_f32_32x32x32_bf16 {vr(O[qw],16)}, {vr(V[pw][1],4)}, {vr(W+8,8)}, v{IDX}")
            if q == 0:
                rec = t + 1
                if rec in hooks: hooks[rec]()
                if rec & 7 in PR and rec < 32 and not E("NOPRIO"): a(f"s_setprio {PR[rec & 7]}")
                if rec < 32: G(a, rec)
            a("\n".join(ex[2:6]))
            if t < 31: a(f"v_mfma_f32_32x32x16_bf16 {vr(Y,16)}, {vr(K1[p],4)}, {vr(Q1[q],4)}, 0")
            a("\n".join(ex[6:10]))
            a(f"v_smfmac_f32_32x32x32_bf16 {vr(O[q],16)}, {vr(V[p][0],4)}, {vr(X,8)}, v{IDX}")
            a("\n".join(ex[10:14]))
            if t < 31: a(f"v_mfma_f32_32x32x8_bf16 {vr(Y,16)}, {vr(K2[p],2)}, {vr(Q2[q],2)}, {vr(Y,16)}")
            a("\n".join(ex[14:16]))
            if q == 1 and t < 31:
                a("s_waitcnt lgkmcnt(0)")
    stamp(a, 3)
    a(f"""
s_lshl_b32 s54, s{S_QP}, 12
s_mul_i32 s55, s{S_KH}, {HALF}
v_smfmac_f32_32x32x32_bf16 {vr(O[1],16)}, {vr(V[1][1],4)}, {vr(S[3]+8,8)}, v{IDX}
s_add_u32 s56, s54, s55
s_sub_u32 s55, {HALF}, s55
s_add_u32 s55, s55, s54
v_add_u32 v6, s56, v{L16}
v_add_u32 v7, s55, v{L16}
s_waitcnt vmcnt(0)
s_barrier
""")
    for q in range(2):
        a(f"v_add_f32 v{8+q}, |v{O[q]}|, |v{O[q]+1}|")
        for i in range(2, 12):
            a(f"v_add_f32 v{8+q}, v{8+q}, |v{O[q]+i}|")
    a(f"""
v_add_f32 v8, v8, v9
v_add_f32 v9, v{O[0]+12}, v{O[1]+12}
v_mov_b32 v10, 0x0c800000
v_fmac_f32 v9, v8, v10
v_mov_b32 v10, 0x4b000000
v_cmp_nle_f32 vcc, v9, v10
s_lshl_b32 s55, s{S_W}, 2
s_add_u32 s55, s55, {FLG}
v_mov_b32 v9, s55
s_cmp_eq_u32 s{S_KH}, 0
s_cbranch_scc1 L_at_m0
""")
    def send(o):
        for i in range(3):
            a(f"ds_write_b128 v6, {vr(o+4*i,4)} offset:{i*1024}")
        a(f"ds_write_b32 v6, v{o+12} offset:3072")
    send(O[0])
    a("s_waitcnt lgkmcnt(0)")
    for i in range(0, 14, 2):
        a(f"v_mov_b64 {vr(O[0]+i,2)}, {vr(O[1]+i,2)}")
    a("s_branch L_at_m1")
    a.label("L_at_m0")
    send(O[1])
    a.label("L_at_m1")
    a(f"""s_cmp_lg_u64 vcc, 0
s_cselect_b32 s54, 1, 0
v_mov_b32 v8, s54
ds_write_b32 v9, v8
v_mov_b32 v9, {FLG}
s_waitcnt lgkmcnt(0)
s_barrier
ds_read_b128 v[32:35], v9
ds_read_b128 v[8:11], v9 offset:16
ds_read_b32 v{S[0]+12}, v7 offset:3072""")
    for i in range(3):
        a(f"ds_read_b128 {vr(S[0]+4*i,4)}, v7 offset:{i*1024}")
    o = O[0]
    a(f"""s_waitcnt lgkmcnt(3)
v_or3_b32 v8, v8, v9, v10
v_or3_b32 v8, v8, v11, v32
v_or3_b32 v8, v8, v33, v34
v_or_b32 v8, v8, v35
v_add_f32 v{o+12}, v{o+12}, v{S[0]+12}
v_readfirstlane_b32 s54, v8
v_rcp_f32 v6, v{o+12}
s_andn2_b32 s54, s54, s{S_MODE}
s_cmp_eq_u32 s54, 0
s_waitcnt lgkmcnt(0)
s_cbranch_scc1 L_at_fin
s_mov_b32 s{S_MODE}, 1
s_barrier
""")
    attn_issue(a, False)
    max_init(a)
    a(f"s_mov_b32 s56, s{S_KVB}\ns_mov_b32 s57, 64")
    a.label("L_at_max")
    a("s_waitcnt vmcnt(0)")
    qk(a, 0)
    a("s_nop 7\ns_nop 3")
    max_acc(a)
    a(f"""
s_add_u32 s56, s56, 2560
buffer_load_dwordx4 {vr(K1[0],4)}, v{K16}, {q4(SRD_WS)}, s56 offen
buffer_load_dword v{K2[0]}, v{K8}, {q4(SRD_WS)}, s56 offen offset:1024
s_sub_u32 s57, s57, 1
s_cmp_lg_u32 s57, 0
s_cbranch_scc1 L_at_max
""")
    max_fin(a)
    qk(a, 1)
    o_zero(a)
    ones_addr(a)
    ones_write(a, 0xfff)
    a("s_waitcnt vmcnt(0) lgkmcnt(0)\ns_barrier")
    G(a, 0)
    a("s_branch L_at_go")
    a.label("L_at_fin")
    stamp(a, 4)
    for i in range(0, 12, 2):
        a(f"v_pk_add_f32 {vr(o+i,2)}, {vr(o+i,2)}, {vr(S[0]+i,2)}")
    a(f"s_add_u32 s58, s{S_QT}, s{S_KH}")
    out_store(a, o, 6, f"s{S_HEAD}", "s58", OAF)
```

```python
from asmlib import *
from layout import *
from f1 import VL, L16, VN, VH, flag_set, flag_wait, nonce_get
SRD_WOA, SRD_WOB, SRD_OUT = SRD_X, SRD_WA, SRD_WB
S_MB, S_CT, S_T16 = 74, 75, 76
WGA = 216
WGL = 208
OL8 = 213
GV = 221
OFB = 168
R1, R2, Z0, Z1 = 20608, 82432, 0, 61824
def lds_b(b): return R1 + 5120*b if b < 8 else R2 + 5120*(b-8) if b < 16 else R2 + 5120*(b-6)
def lds_a(b):
    if b < 2: return R2 + 5120*(8+b)
    if b < 6: return Z0 + 5120*(b-2)
    if b < 10: return Z1 + 5120*(b-6)
    if b < 18: return R1 + 5120*(b-10)
    return R2 + 5120*(b-18)
MB, LB = 40*1280, 160*1280

def p5_setup(a):
    a(f"""
s_load_dwordx2 s[54:55], s[0:1], 16
s_load_dwordx2 s[56:57], s[0:1], 48
s_load_dwordx2 s[58:59], s[0:1], 64
s_lshl_b32 s{S_MB}, s{S_XCD}, 2
s_and_b32 s60, s{S_J}, 3
s_add_u32 s{S_MB}, s{S_MB}, s60
s_lshr_b32 s{S_CT}, s{S_J}, 2
s_lshl_b32 s{S_T16}, s{S_MB}, 2
s_add_u32 s{S_T16}, s{S_T16}, s{S_TT}
s_waitcnt lgkmcnt(0)
""")
    srd(a, SRD_WOA, 54, WO_BYTES); srd(a, SRD_WOB, 56, WO_BYTES); srd(a, SRD_OUT, 58, OUT_BYTES)

def p5_pf(a):
    lb, l2 = a.newlabel("pfa"), a.newlabel("pfa")
    a(f"""s_lshl_b32 s54, s{S_TT}, 6
v_add_u32 v6, s54, v{VL}
v_min_u32 v6, 199, v6
v_lshlrev_b32 v6, 7, v6
s_mul_i32 s54, s{S_J}, {20*1280}
s_cmp_lg_u32 s{S_FH}, 0
s_cbranch_scc1 {l2}
buffer_load_dword v11, v6, {q4(SRD_WOA)}, s54 offen
s_branch {lb}""")
    a.label(l2)
    a(f"buffer_load_dword v11, v6, {q4(SRD_WOB)}, s54 offen")
    a.label(lb)

def blk_dma(a, srd_, s_lds, s_glob, ad=WGA):
    for i in range(5):
        a(f"""s_add_u32 m0, {s_lds}, {i*1024}
s_nop 0
buffer_load_dwordx4 v{ad+i}, {q4(srd_)}, {s_glob} offen lds""")

def p5_addr(a):
    a(f"s_mul_i32 s54, s{S_CT}, 160\ns_add_u32 s55, s54, {16*1280}")
    for i in range(5):
        a(f"""v_add_u32 v6, {64*i}, v{VL}
v_mul_u32_u24 v7, 6554, v6
v_lshrrev_b32 v7, 16, v7
v_mul_u32_u24 v8, 10, v7
v_sub_u32 v6, v6, v8
v_and_b32 v9, 3, v7
v_mul_u32_u24 v9, 1280, v9
v_lshl_add_u32 v6, v6, 4, v9
v_bfe_u32 v8, v7, 2, 2
v_lshrrev_b32 v9, 4, v7
v_lshl_add_u32 v8, v8, 1, v9
v_mul_u32_u24 v9, {20*1280}, v8
v_add3_u32 v{WGL+i}, v9, v6, s55
v_bfe_u32 v9, v7, 3, 1
v_add_u32 v8, v8, v9
v_mul_u32_u24 v8, {4*1280}, v8
v_add3_u32 v{WGA+i}, v8, v6, s54""")
    a(f"""v_lshrrev_b32 v6, 4, v{VL}
v_and_b32 v7, 15, v{VL}
v_lshlrev_b32 v7, 3, v7
v_lshl_add_u32 v{OL8}, v6, 8, v7""")

def p5_batch1(a, part):
    a(f"s_mul_i32 s54, s{S_W}, 5120\ns_mul_i32 s55, s{S_W}, {MB if part < 2 else LB}")
    lb = a.newlabel("b1")
    if part == 0:
        a(f"s_add_u32 s56, s54, {R1}")
        blk_dma(a, SRD_WOB, "s56", "s55")
    elif part == 1:
        a(f"s_add_u32 s56, s54, {R2}\ns_add_u32 s55, s55, {8*MB}")
        blk_dma(a, SRD_WOB, "s56", "s55")
        a(f"s_cmp_lt_u32 s{S_W}, 6\ns_cbranch_scc1 {lb}\ns_add_u32 s56, s56, {2*5120}\ns_sub_u32 s55, s55, {14*MB}")
        blk_dma(a, SRD_WOA, "s56", "s55")
    else:
        a(f"s_add_u32 s56, s54, {R2 + 10*5120}\ns_cmp_ge_u32 s{S_W}, 4\ns_cbranch_scc1 {lb}")
        blk_dma(a, SRD_WOB, "s56", "s55", WGL)
    a.label(lb)

def o_loads(a, base, dst):
    a(f"""s_mul_i32 s54, s{S_T16}, 20480
s_lshl_b32 s55, s{S_FH}, 10
s_add_u32 s54, s54, s55
s_add_u32 s54, s54, {base}""")
    for i in range(8):
        a(f"buffer_load_dwordx4 {vr(dst+4*i,4)}, v{L16}, {q4(SRD_WS)}, s54 offen offset:{(i&1)*2048} sc1")
        if i & 1: a("s_add_u32 s54, s54, 4096")
    for i in range(8, 10):
        for z in range(2):
            a(f"buffer_load_dwordx2 {vr(dst+4*i+2*z,2)}, v{OL8}, {q4(SRD_WS)}, s54 offen offset:{(i&1)*2048 + 128*z} sc1")

def p5_ob_issue(a):
    nonce_get(a)
    a(f"s_lshr_b32 s60, s{S_T16}, 1\ns_lshl_b32 s60, s60, 8\ns_add_u32 s60, s60, {FL_OB}")
    flag_wait(a, "s60", 16)
    o_loads(a, OBF, OFB)
    a(f"""s_lshl_b32 s54, s{S_T16}, 6
s_add_u32 s54, s54, {GATE}
v_and_b32 v6, 15, v{VL}
v_lshlrev_b32 v6, 2, v6
buffer_load_dword v{GV}, v6, {q4(SRD_WS)}, s54 offen sc1""")

def gen_p5(a, s_qb_head_flag):
    RB = 6
    ACA, ACB = 16, 36
    WF = [56, 76]
    OFA = 96
    a("s_barrier")
    a(f"""s_mul_i32 s56, s{S_TT}, 5120
s_mul_i32 s57, s{S_FH}, {Z1}
s_add_u32 s56, s56, s57
s_add_u32 s55, s{S_W}, 2
s_mul_i32 s55, s55, {MB}""")
    blk_dma(a, SRD_WOA, "s56", "s55")
    a(f"""
v_lshrrev_b32 v9, 2, v{VL}
v_mul_u32_u24 v9, 160, v9
v_and_b32 v10, 3, v{VL}
v_mul_u32_u24 v10, 40, v10
s_mul_i32 s56, s{S_FH}, 5120
v_add3_u32 v{RB}, v9, v10, s56
v_add_u32 v{RB+1}, 57344, v{RB}
v_add_u32 v{RB+2}, 114688, v{RB}
""")
    def reads(addr, b):
        k = addr // 57344
        for t in range(5):
            for aa in range(2):
                a(f"ds_read_b64_tr_b16 {vr(WF[b]+4*t+2*aa,2)}, v{RB+k} offset:{addr - k*57344 + aa*2560 + t*8}")
    def part(ldsf, acc, of, i0, i1, pre=None):
        reads(ldsf(2*i0), i0 & 1)
        for i in range(i0, i1):
            if i + 1 < i1:
                reads(ldsf(2*i+2), (i+1) & 1)
                a("s_waitcnt lgkmcnt(10)")
            else:
                a("s_waitcnt lgkmcnt(0)")
            if pre: pre(i)
            for t in range(5):
                c = "0" if i == 0 else vr(acc+4*t,4)
                a(f"v_mfma_f32_16x16x32_bf16 {vr(acc+4*t,4)}, {vr(WF[i&1]+4*t,4)}, {vr(of+4*i,4)}, {c}")
    def pub(i):
        if i == 1:
            a("s_waitcnt vmcnt(5)")
            flag_set(a, s_qb_head_flag)
            stamp(a, 5)
    part(lds_b, ACB, OFB, 0, 5, pre=pub)
    a("s_barrier")
    l1, l2 = a.newlabel("b3"), a.newlabel("b3")
    a(f"""s_mul_i32 s56, s{S_W}, 5120
s_add_u32 s56, s56, {R1}
s_add_u32 s55, s55, {8*MB}
s_cmp_ge_u32 s{S_W}, 6
s_cbranch_scc1 {l1}""")
    blk_dma(a, SRD_WOA, "s56", "s55")
    a(f"s_branch {l2}")
    a.label(l1)
    a(f"s_sub_u32 s55, s{S_W}, 6\ns_mul_i32 s55, s55, {LB}")
    blk_dma(a, SRD_WOA, "s56", "s55", WGL)
    a(f"s_add_u32 s56, s56, {R2 - R1 - 6*5120}\ns_add_u32 s55, s55, {2*LB}")
    blk_dma(a, SRD_WOA, "s56", "s55", WGL)
    a.label(l2)
    part(lds_b, ACB, OFB, 5, 10)
    if os.environ.get("P5ST"): stamp(a, 3)
    lb = a.newlabel("oaw")
    a(f"s_cmp_lg_u32 s{S_W}, 7\ns_cbranch_scc1 {lb}")
    a(f"s_lshl_b32 s60, s{S_MB}, 10\ns_add_u32 s60, s60, {FL_OA}")
    flag_wait(a, "s60", 64, sleep=2)
    if not os.environ.get("NOTOUCH"):
        a(f"""s_mul_i32 s60, s{S_MB}, 81920
s_mul_i32 s61, s{S_CT}, 10240
s_add_u32 s60, s60, s61
s_add_u32 s60, s60, {OAF}
s_add_u32 s61, s60, 8192
v_lshlrev_b32 v0, 7, v{VL}
v_min_u32 v1, 1920, v0
buffer_load_dword v11, v0, {q4(SRD_WS)}, s60 offen sc1
buffer_load_dword v11, v1, {q4(SRD_WS)}, s61 offen sc1
s_branch L_p5_t""")
    a.label(lb)
    a("s_waitcnt vmcnt(0)")
    a.label("L_p5_t")
    a("s_barrier")
    stamp(a, 6)
    o_loads(a, OAF, OFA)
    def prea(i):
        a(f"s_waitcnt vmcnt({11-i if i < 8 else 2*(9-i)})")
        if os.environ.get("P5ST") and i in (0, 4, 9): stamp(a, (0, 4, 9).index(i))
    part(lds_a, ACA, OFA, 0, 10, pre=prea)
    a(f"""
s_lshl_b32 s54, s{S_TT}, 12
s_mul_i32 s54, s{S_TT}, 5120
s_add_u32 s54, s54, {R2 + 2*5120}
v_add_u32 v9, s54, v{L16}
v_and_b32 v10, 15, v{VL}
s_lshl_b32 s54, s{S_T16}, 4
v_add_u32 v10, s54, v10
v_mul_u32_u24 v10, 1280, v10
v_lshrrev_b32 v12, 4, v{VL}
v_mul_u32_u24 v12, 40, v12
s_mul_i32 s54, s{S_CT}, 160
v_add3_u32 v10, v10, v12, s54
""")
    for i in range(20):
        a(f"v_fmac_f32 v{ACB+i}, v{ACA+i}, v{GV}")
    a(f"s_cmp_eq_u32 s{S_FH}, 0\ns_cbranch_scc1 L_p5_lo")
    for i in range(5):
        a(f"ds_write_b128 v9, {vr(ACB+4*i,4)} offset:{i*1024}")
    a("s_waitcnt lgkmcnt(0)\ns_barrier\ns_branch L_p5_end")
    a.label("L_p5_lo")
    a("s_barrier")
    for i in range(5):
        a(f"ds_read_b128 {vr(ACA+4*i,4)}, v9 offset:{i*1024}")
    a("s_waitcnt lgkmcnt(0)")
    for i in range(0, 20, 2):
        a(f"v_pk_add_f32 {vr(ACB+i,2)}, {vr(ACB+i,2)}, {vr(ACA+i,2)}")
    for e in range(10):
        a(f"v_cvt_pk_bf16_f32 v{ACA+e}, v{ACB+2*e}, v{ACB+2*e+1}")
    a(f"""
buffer_store_dwordx4 {vr(ACA,4)}, v10, {q4(SRD_OUT)}, 0 offen
buffer_store_dwordx4 {vr(ACA+4,4)}, v10, {q4(SRD_OUT)}, 0 offen offset:16
buffer_store_dwordx2 {vr(ACA+8,2)}, v10, {q4(SRD_OUT)}, 0 offen offset:32
""")
    a.label("L_p5_end")
```

```python
QIMG   = 0x0000000
KVIMG  = 0x0280000
WBF    = 0x0790000
KVACC  = 0x0A10000
GATE   = 0x0A30000
FLAGS  = 0x0A34000
OAF    = 0x0A50000
OBF    = 0x0CD0000
WOF    = 0x0F50000
WS_BYTES = 0x1A00000
STAMP_BASE = 0x1800000
X_BYTES = 2048*640*2
WQKV_BYTES = 640*1920*2
WO_BYTES = 640*640*2
WPHI_BYTES = 32*20*20*2
GATEW_BYTES = 640*2
OUT_BYTES = 2048*640*2
FL_WB  = FLAGS + 0x00000
FL_QKV = FLAGS + 0x02000
FL_KV  = FLAGS + 0x04000
FL_OB  = FLAGS + 0x08000
FL_OA  = FLAGS + 0x0C000
FL_WO  = FLAGS + 0x14000
OOB = 0x7ffffff0
import math, struct
def f32hex(x):
    return hex(struct.unpack("<I", struct.pack("<f", x))[0])
LOG2E = math.log2(math.e)
QSCALE = LOG2E / math.sqrt(20.0)
SRD_X, SRD_WA, SRD_WS, SRD_DBG, SRD_WB, SRD_PHI, SRD_GATE = 8, 12, 16, 20, 24, 28, 32
S_XCD, S_J, S_W, S_MT, S_NT, S_TT, S_FH = 36, 37, 38, 39, 40, 41, 42
def q4(b): return f"s[{b}:{b+3}]"
S_NONCE = 43
```

```python
import sys
from asmlib import *
from layout import *
import f1, f2, f3
NAME = "gated_mix__mha_block__linear_kernel_hedgehog__prompt"
def load_srds(a, which):
    a("""s_load_dwordx4 s[4:7], s[0:1], 0
s_load_dwordx4 s[56:59], s[0:1], 72
s_load_dwordx4 s[60:63], s[0:1], 32
s_load_dwordx2 s[64:65], s[0:1], 56""")
    f1.common_init(a)
    a("s_waitcnt lgkmcnt(0)")
    srd(a, SRD_X, 4, X_BYTES); srd(a, SRD_WA, 6, WQKV_BYTES); srd(a, SRD_WS, 58, WS_BYTES); srd(a, SRD_DBG, 56, 256)
    srd(a, SRD_WB, 60, WQKV_BYTES); srd(a, SRD_PHI, 62, WPHI_BYTES); srd(a, SRD_GATE, 64, GATEW_BYTES)
def build(mode):
    ref = open(f"cdna_kernels/{NAME}.s.ref").read().split("\n")
    head = [l for l in ref if l.startswith(";") and "@launch" not in l and "Override launch" not in l and "grid=ceil" not in l]
    a = Asm()
    for l in head: a.raw(l)
    kernels = []
    a.raw(f"; @launch grid=(256,1,1) block=(512,1,1) lds=163840")
    a.raw('.amdgcn_target "amdgcn-amd-amdhsa--gfx950"\n.text')
    kn = NAME + "_kernel"
    kernel_begin(a, kn)
    a("s_cmp_ge_u32 s2, 256\ns_cbranch_scc1 L_end1")
    stamp_init(a); stamp(a, 0)
    load_srds(a, 0)
    f2.attn_scalars(a)
    f1.set_fill(lambda t: (f2.qkv_addr(t), f2.static_setup(t)), 60, 72)
    f1.set_fill(lambda t: (f1.b_addr(t), f2.ones_addr(t)), 73, 80)
    PK = int(os.environ.get("PEEK", "72"))
    f1.set_block(f2.qkv_peek, PK); f1.set_block(f2.qkv_peek2, 78)
    f1.gen_p12(a, {}); f2.gen_attn(a)
    a(f"s_lshr_b32 s77, s{f2.S_QT}, 1\ns_lshl_b32 s77, s77, 5\ns_add_u32 s77, s77, s{f2.S_HEAD}\ns_lshl_b32 s77, s77, 1\ns_add_u32 s77, s77, s{S_FH}\ns_lshl_b32 s77, s77, 4\ns_add_u32 s77, s77, {FL_OA}")
    f3.gen_p5(a, "s77")
    stamp_flush(a, 1, S_W, 8)
    a.label("L_end1"); a("s_endpgm")
    kernels = [(kn, 256)]
    a.raw('.section .rodata,"a"')
    for n, v in kernels:
        a.raw(kernel_desc(n, v, 100 if DIAG else 80))
    return a.text()
if __name__ == "__main__":
    out = sys.argv[2] if len(sys.argv) > 2 else f"cdna_kernels/{NAME}.s"
    open(out, "w").write(build(sys.argv[1]))
```

```python
from asmlib import *
from layout import *

NS = 4
TOP = NS * 32768
BROW = 272
STG = 126976
VL, L16, VN, VH = 2, 3, 4, 5
XG0, XG1, WG = 6, 7, 8
XA = 10
WA = 18
WB = 22
EA = 24
WFB = [40, 48, 248]
LA = 2
ACC = 56
XR = 88
DIST = 3
S_SEQ = 98
PREBAR = {}
FILL = {}
QST = int(os.environ.get('QST', '16'))
STG_STAMP = eval(os.environ.get('STG_STAMP', '{}'))
stamp2 = stamp
PRO = os.environ.get('PRO')
if STG_STAMP or PRO:
    def stamp(a, i): pass
def pstamp(a, i):
    if PRO: stamp2(a, i)
HOLD = [8, 12, 16, 32]
SPM = [4, 6, 74, 76]
STORE_AT = eval(os.environ.get('STORE_AT', '[40,44,48,52]'))
PHQ_R = 228
OMG = 252
S_XO, S_WO, S_KR, S_LB, S_T, S_PREP, S_WBB = 44, 45, 46, 47, 48, 49, 50

def common_init(a):
    a(f"""
s_and_b32 s{S_XCD}, s2, 7
s_lshr_b32 s{S_J}, s2, 3
v_lshrrev_b32 v1, 6, v0
v_and_b32 v{VL}, 63, v0
v_readfirstlane_b32 s{S_W}, v1
s_and_b32 s{S_MT}, s{S_XCD}, 1
s_lshl_b32 s{S_MT}, s{S_MT}, 3
s_and_b32 s52, s{S_J}, 7
s_add_u32 s{S_MT}, s{S_MT}, s52
s_lshr_b32 s{S_NT}, s{S_XCD}, 1
s_lshl_b32 s{S_NT}, s{S_NT}, 2
s_lshr_b32 s52, s{S_J}, 3
s_add_u32 s{S_NT}, s{S_NT}, s52
s_and_b32 s{S_TT}, s{S_W}, 3
s_lshr_b32 s{S_FH}, s{S_W}, 2
v_lshlrev_b32 v{L16}, 4, v{VL}
v_and_b32 v{VN}, 31, v{VL}
v_lshrrev_b32 v{VH}, 5, v{VL}
""")

def nonce_publish(a):
    lb = a.newlabel("np")
    a(f"""s_mov_b32 s{S_NONCE}, 0
s_xor_b32 s60, s{S_W}, 7
s_or_b32 s60, s2, s60
s_cmp_lg_u32 s60, 0
s_cbranch_scc1 {lb}
s_memrealtime s[60:61]
v_mov_b32 v9, 0
s_waitcnt lgkmcnt(0)
s_or_b32 s60, s60, 1
v_mov_b32 v1, s60
s_mov_b64 exec, 1
buffer_store_dword v1, v9, {q4(SRD_DBG)}, 0 offen sc0 sc1
s_mov_b64 exec, -1""")
    a.label(lb)

def nonce_get(a):
    lp, dn = a.newlabel("ng"), a.newlabel("ngd")
    a(f"""s_cmp_lg_u32 s{S_NONCE}, 0
s_cbranch_scc1 {dn}
v_mov_b32 v0, 0
s_mov_b32 s62, 0x40000""")
    a.label(lp)
    a(f"""buffer_load_dword v1, v0, {q4(SRD_DBG)}, 0 offen sc0 sc1
s_waitcnt vmcnt(0)
v_readfirstlane_b32 s{S_NONCE}, v1
s_cmp_lg_u32 s{S_NONCE}, 0
s_cbranch_scc1 {dn}
s_sleep 8
s_sub_u32 s62, s62, 1
s_cmp_lg_u32 s62, 0
s_cbranch_scc1 {lp}""")
    a.label(dn)

def flag_set(a, off_sgpr):
    a(f"""v_mov_b32 v0, 0
v_mov_b32 v1, s{S_NONCE}
s_mov_b64 exec, 1
buffer_store_dword v1, v0, {q4(SRD_WS)}, {off_sgpr} offen sc0 sc1
s_mov_b64 exec, -1""")

def flag_wait(a, off_sgpr, nwords, sleep=10):
    lp, dn = a.newlabel("fw"), a.newlabel("fwd")
    if nwords <= 64:
        a(f"v_min_u32 v0, {nwords-1}, v{VL}\nv_lshlrev_b32 v0, 4, v0")
    a("s_mov_b32 s62, 0x40000")
    a.label(lp)
    if nwords <= 64:
        a(f"""buffer_load_dword v1, v0, {q4(SRD_WS)}, {off_sgpr} offen sc0 sc1
s_waitcnt vmcnt(0)
v_cmp_ne_u32 vcc, s{S_NONCE}, v1""")
    else:
        a(f"""buffer_load_dwordx4 v[36:39], v{L16}, {q4(SRD_WS)}, {off_sgpr} offen sc0 sc1
s_waitcnt vmcnt(0)
v_xor_b32 v36, s{S_NONCE}, v36
v_xor_b32 v37, s{S_NONCE}, v37
v_xor_b32 v38, s{S_NONCE}, v38
v_xor_b32 v39, s{S_NONCE}, v39
v_or3_b32 v36, v36, v37, v38
v_or_b32 v36, v36, v39
v_cmp_ne_u32 vcc, 0, v36""")
    a(f"""s_nop 3
s_cmp_eq_u64 vcc, 0
s_cbranch_scc1 {dn}
s_sleep {sleep}
s_sub_u32 s62, s62, 1
s_cmp_lg_u32 s62, 0
s_cbranch_scc1 {lp}""")
    a.label(dn)

def flag_peek(a, addr_code, nwords, dst):
    a(addr_code)
    a(f"""v_min_u32 v0, {nwords-1}, v{VL}
v_lshlrev_b32 v0, 4, v0
buffer_load_dword v{dst}, v0, {q4(SRD_WS)}, s60 offen sc0 sc1""")
def flag_check(a, addr_code, nwords, dst):
    lb = a.newlabel("fc")
    a(f"""v_cmp_ne_u32 vcc, s{S_NONCE}, v{dst}
s_nop 3
s_cmp_eq_u64 vcc, 0
s_cbranch_scc1 {lb}""")
    a(addr_code)
    flag_wait(a, "s60", nwords)
    a.label(lb)

def flag_wait2(a, off_sgpr, sleep=4):
    lp, dn = a.newlabel("fw"), a.newlabel("fwd")
    a("s_mov_b32 s62, 0x40000")
    a.label(lp)
    a(f"""buffer_load_dword v36, v0, {q4(SRD_WS)}, {off_sgpr} offen sc0 sc1
buffer_load_dword v37, v0, {q4(SRD_WS)}, {off_sgpr} offen offset:128 sc0 sc1
s_waitcnt vmcnt(0)
v_xor_b32 v36, s{S_NONCE}, v36
v_xor_b32 v37, s{S_NONCE}, v37
v_or_b32 v36, v36, v37
v_cmp_ne_u32 vcc, 0, v36
s_nop 3
s_cmp_eq_u64 vcc, 0
s_cbranch_scc1 {dn}
s_sleep {sleep}
s_sub_u32 s62, s62, 1
s_cmp_lg_u32 s62, 0
s_cbranch_scc1 {lp}""")
    a.label(dn)

def wb_flag_set(a):
    nonce_get(a)
    a(f"""s_lshl_b32 s60, s{S_P}, 5
s_add_u32 s60, s60, s{S_BLK}
s_lshl_b32 s60, s60, 4
s_add_u32 s60, s60, {FL_WB}""")
    flag_set(a, "s60")
def wb_flag_wait(a):
    nonce_get(a)
    a(f"""s_lshl_b32 s60, s{S_NT}, 9
s_add_u32 s60, s60, {FL_WB}""")
    flag_wait(a, "s60", 20)

VM = []
def vm_after(tag, prep=False):
    idx = max(i for i, t in enumerate(VM) if t == tag)
    return len([t for t in VM[idx+1:] if prep or not (isinstance(t, str) and t.startswith("p:"))])
P2SLOT = [131072, 147456, 65536, 82432, 98816, 0, 20608, 36992, 82432, 98816]
WBR = [20, 22, 23]
P2BAR = {10: 12, 11: None, 13: 15, 16: 17, 18: 19}

def dma_piece(a, st, i):
    slot = st % NS
    last = 3 if st < 10 else 1
    if st >= 10:
        if i == 0: a(f"s_lshl_b32 s{S_WO}, s{S_KR}, 14")
        a(f"s_add_u32 m0, s{S_LB}, {P2SLOT[st-10] + 1024*i}")
        a(f"s_add_u32 s{S_WO}, s{S_WO}, s{S_WBB}" if i == 0 else f"s_add_u32 s{S_WO}, s{S_WO}, 1024")
        a(f"buffer_load_dwordx4 v{L16}, {q4(SRD_WS)}, s{S_WO} offen lds")
    elif i < 2:
        a(f"""s_add_u32 m0, s{S_LB}, {slot*32768 + 1024*i}
s_lshl_b32 s{S_XO}, s{S_KR}, 7
buffer_load_dwordx4 v{XG0+i}, {q4(SRD_X)}, s{S_XO} offen lds""")
    else:
        a(f"s_add_u32 m0, s{S_LB}, {slot*32768 + 16384 + 1024*(i-2)}")
        a(f"s_mul_i32 s{S_WO}, s{S_KR}, {64*3840}" if i == 2 else f"s_add_u32 s{S_WO}, s{S_WO}, {4*3840}")
        a(f"buffer_load_dwordx4 v{WG}, {q4(SRD_WA)}, s{S_WO} offen lds")
    if i == last:
        if st == 9: a(f"s_mov_b64 s[{S_SEQ}:{S_SEQ+1}], s[{S_SEQ+2}:{S_SEQ+3}]")
        else: a(f"s_lshr_b64 s[{S_SEQ}:{S_SEQ+1}], s[{S_SEQ}:{S_SEQ+1}], 4")
        a(f"s_and_b32 s{S_KR}, s{S_SEQ}, 15")
    VM.append(("dma", st))
def dma_sched(ds, pc):
    if ds == 2: return [(2, 2*pc - 4), (2, 2*pc - 3)]
    if ds < 10: return [(ds, pc)]
    if ds == 10: return [(10 + pc, 0), (10 + pc, 1)] if pc < 3 else []
    if ds == 11: return [(13 + (pc >> 1), pc & 1)]
    if ds == 12: return [(15, pc)] if pc < 2 else []
    if ds == 13: return [(16 + (pc >> 1), pc & 1)]
    if ds == 18: return [(18 + pc, 0), (18 + pc, 1)] if pc < 2 else []
    return []
def dma(a, st):
    for i in range(4): dma_piece(a, st, i)

def reads(a, g, xonly=False):
    st, ks, wf = g >> 2, g & 3, WFB[g % 3]
    slot = st % NS
    hi = slot >= 2
    so = (slot & 1) * 32768
    if st < 10:
        a(f"ds_read_b128 {vr(XR+4*g,4)}, v{XA+4*hi+ks} offset:{so}")
        for ft in range(0 if xonly else 2):
            for aa in range(2):
                a(f"ds_read_b64_tr_b16 {vr(wf+4*ft+2*aa,2)}, v{WA+2*hi+ft} offset:{so + (16*ks+4*aa)*256}")
    elif st < 20:
        for ft in range(2):
            a(f"ds_read_b128 {vr(wf+4*ft,4)}, v{WBR[P2SLOT[st-10] >> 16]} offset:{(P2SLOT[st-10] & 65535) + ks*4096 + ft*1024}")
def nreads(g):
    return 5 if g < 40 else 2 if g < 80 else 0

def enter_stage(a, st):
    if st >= 10:
        if st == QST and st not in P2BAR:
            a(f"s_waitcnt vmcnt({vm_after('epi')})\ns_barrier")
            return
        if st not in P2BAR: return
    cov = P2BAR.get(st, st)
    if cov is None:
        a("s_barrier")
        return
    n, n2 = vm_after(("dma", cov)), vm_after(("dma", cov), True)
    assert st < 2 or n == n2
    if st == QST: n = min(n, vm_after("epi"))
    a(f"s_waitcnt vmcnt({n})")
    if st in PREBAR: PREBAR[st]()
    a("s_barrier")
    if st in STG_STAMP: stamp2(a, STG_STAMP[st])

def steps(a, g0, g1, swapped, hooks):
    for g in range(g0, g1):
        wf = WFB[g % 3]
        nst = (g + LA) >> 2
        if (g + LA) & 3 == 0 and nst < 20:
            enter_stage(a, nst)
        xonly = swapped == "x"
        reads(a, g + LA, xonly)
        if (g + LA) & 3 == 0 and nst in hooks: hooks[nst]()
        a(f"s_waitcnt lgkmcnt({LA if xonly else sum(nreads(g+i) for i in range(1, LA+1))})")
        for ft in range(0 if xonly else 2):
            A, B = vr(wf+4*ft,4), vr(XR+4*(g%40),4)
            if swapped: A, B = B, A
            c = "0" if g % 40 == 0 else vr(ACC+16*ft,16)
            a(f"v_mfma_f32_32x32x16_bf16 {vr(ACC+16*ft,16)}, {A}, {B}, {c}")
            for ln in FILL.get((g, ft), []): a.raw(ln)
        ds, pc = ((g + LA) >> 2) + DIST - 1, (g + LA) & 3
        for x in dma_sched(ds, pc): dma_piece(a, *x)
        for j in [j for j in range(4) if int(STORE_AT[j]) == g]:
            a(f"buffer_store_dwordx4 {vr(HOLD[j],4)}, v{EA+j}, {q4(SRD_WS)}, 0 offen sc1")
            VM.append("epi")

def set_fill(fn, g0, g1):
    t = Asm(); fn(t)
    lines = [l for l in t.lines if l.strip() and not l.strip().startswith(";")]
    slots = [(g, ft) for g in range(g0, g1) for ft in range(2)]
    per = -(-len(lines) // len(slots))
    for i, sl in enumerate(slots):
        FILL.setdefault(sl, []).extend(lines[i*per:(i+1)*per])

def set_block(fn, g):
    t = Asm(); fn(t)
    FILL.setdefault((g, 1), []).extend(t.lines)

def swap23(a, dst, src, tmp):
    a(f"""v_and_b32 v{dst}, 0x13, v{src}
v_bfe_u32 v{tmp}, v{src}, 2, 1
v_lshl_or_b32 v{dst}, v{tmp}, 3, v{dst}
v_bfe_u32 v{tmp}, v{src}, 3, 1
v_lshl_or_b32 v{dst}, v{tmp}, 2, v{dst}""")

AF, GT, PM, PL, IA, IB, D = 124, 160, 168, 180, 192, 204, 216
S_U, S_P, S_BLK = 51, 52, 53
def prep_addr(a):
    a(f"""
s_mul_i32 s57, s{S_P}, 1600
s_mul_i32 s55, s{S_W}, 10496
s_cmp_eq_u32 s{S_NT}, 15
s_cselect_b32 s55, s55, {TOP}
v_cmp_gt_u32 vcc, 36, v{VL}
v_mov_b32 v37, {OOB}
v_and_b32 v36, 15, v{VL}
v_cndmask_b32 v32, v37, v{L16}, vcc
v_cmp_gt_u32 vcc, 15, v36
v_mul_u32_u24 v38, 205, v36
v_lshrrev_b32 v38, 10, v38
v_mul_u32_u24 v38, 1200, v38
v_lshl_add_u32 v36, v36, 4, v38
v_lshrrev_b32 v38, 4, v{VL}
v_mul_u32_u24 v38, 3840, v38
v_add_u32 v36, v36, v38
v_cndmask_b32 v33, v37, v36, vcc
s_mul_i32 s58, s{S_BLK}, {32*3840}
s_mul_i32 s56, s{S_P}, 80
s_add_u32 s58, s58, s56
v_lshlrev_b32 v34, 4, v{VH}
s_lshl_b32 s59, s{S_BLK}, 6
""")
def prep_issue(a):
    a(f"""s_mov_b32 m0, s55
s_nop 0
buffer_load_dwordx4 v{L16}, {q4(SRD_PHI)}, s57 offen lds
buffer_load_dwordx4 v32, {q4(SRD_PHI)}, s57 offen offset:1024 lds""")
    for i in range(8):
        a(f"s_add_u32 m0, s55, {2048 + 1040*i}")
        a(f"s_add_u32 s58, s58, {4*3840}" if i else "s_nop 0")
        a(f"buffer_load_dwordx4 v33, {q4(SRD_WB)}, s58 offen lds")
    a(f"""buffer_load_dwordx4 {vr(GT,4)}, v34, {q4(SRD_GATE)}, s59 offen
buffer_load_dwordx4 {vr(GT+4,4)}, v34, {q4(SRD_GATE)}, s59 offen offset:32""")

def prep_compute(a, nyounger):
    a(f"""
v_bfe_u32 v36, v{VL}, 2, 2
v_lshl_add_u32 v36, v{VH}, 3, v36
v_and_b32 v37, 1, v{VL}
v_mul_u32_u24 v37, 20, v37
v_sub_u32 v38, v36, v37
v_bfe_u32 v39, v{VL}, 1, 1
v_bfe_u32 v1, v{VL}, 4, 1
v_lshl_add_u32 v39, v1, 1, v39
v_mul_u32_u24 v36, 40, v36
v_add_u32 v36, s55, v36
v_lshl_add_u32 v0, v39, 3, v36
v_cmp_eq_u32 s[58:59], 0, v39
s_add_u32 s57, s55, 1600
v_mov_b32 v37, s57
s_waitcnt vmcnt({nyounger + 10})
""")
    for u in range(3):
        for aa in range(2):
            k0 = 16*u + 4*aa
            a(f"""v_add_u32 v1, {k0}, v38
v_cmp_gt_u32 vcc, 20, v1
v_add_u32 v1, {k0*40}, v0
v_add_u32 v39, {k0*40 + 32}, v36
v_cndmask_b32 v1, v37, v1, vcc
s_and_b64 vcc, vcc, s[58:59]
ds_read_b64_tr_b16 {vr(PM+4*u+2*aa,2)}, v1
v_cndmask_b32 v39, v37, v39, vcc
ds_read_b64_tr_b16 {vr(PL+4*u+2*aa,2)}, v39""")
    a(f"""
v_and_b32 v0, 3, v{VN}
v_lshlrev_b32 v0, 4, v0
v_mov_b32 v36, 0x3f80
v_mov_b32 v37, 0
v_lshlrev_b64 v[36:37], v0, v[36:37]
v_bfe_u32 v0, v{VN}, 2, 1
v_mul_u32_u24 v0, 5, v0
v_lshrrev_b32 v1, 3, v{VN}
v_add_u32 v0, v0, v1
v_lshlrev_b32 v38, 1, v{VH}
v_sub_u32 v0, v0, v38
v_cmp_eq_u32 vcc, 0, v1
v_mov_b32 v38, 99
s_nop 0
v_cndmask_b32 v0, v0, v38, vcc
v_cmp_eq_u32 s[58:59], 3, v1
""")
    for u in range(3):
        for aa in range(2):
            kq = 4*u + aa
            a(f"""v_cmp_eq_u32 vcc, {kq+1}, v0
s_nop 1
v_cndmask_b32 v{IA+4*u+2*aa}, 0, v36, vcc
v_cndmask_b32 v{IA+4*u+2*aa+1}, 0, v37, vcc
v_cmp_eq_u32 vcc, {kq-2}, v0
s_nop 1
v_cndmask_b32 v{IB+4*u+2*aa}, 0, v36, vcc
v_cndmask_b32 v{IB+4*u+2*aa+1}, 0, v37, vcc""")
    a(f"""
s_mul_i32 s54, s{S_P}, {40*4096}
s_lshl_b32 s56, s{S_BLK}, 13
s_add_u32 s54, s54, s56
s_add_u32 s54, s54, {WBF}
s_add_u32 s56, s54, 4096
""")
    swap23(a, 36, VN, 38)
    a(f"""v_lshrrev_b32 v37, 2, v36
v_mul_u32_u24 v37, 1040, v37
v_and_b32 v36, 3, v36
v_lshl_add_u32 v36, v36, 8, v37
v_lshl_add_u32 v36, v{VH}, 4, v36
v_add_u32 v36, s55, v36
s_waitcnt vmcnt({nyounger})""")
    for seg in range(3):
        for u in range(3):
            a(f"ds_read_b128 {vr(AF+4*(3*seg+u),4)}, v36 offset:{2048 + 80*seg + 32*u}")
    a("s_waitcnt lgkmcnt(0)")

    plan = [[(0, PM)], [(0, PL), (2, IA)], [(1, PM)], [(1, PL), (2, IB)]]
    def mm(t):
        d = D + 16*(t & 1)
        first = True
        for seg, fr in plan[t]:
            for u in range(3):
                a(f"v_mfma_f32_32x32x16_bf16 {vr(d,16)}, {vr(AF+4*(3*seg+u),4)}, {vr(fr+4*u,4)}, {'0' if first else vr(d,16)}")
                first = False
    def fin(t):
        d = D + 16*(t & 1)
        for g in range(2):
            r = d + 8*g
            for e in range(4):
                a(f"v_cvt_pk_bf16_f32 v{r+e}, v{r+2*e}, v{r+2*e+1}")
            if t == 3:
                for e in range(4):
                    a(f"v_cndmask_b32 v{r+e}, v{r+e}, v{GT+4*g+e}, s[58:59]")
        a(f"""buffer_store_dwordx4 {vr(d,4)}, v{L16}, {q4(SRD_WS)}, s54 offen offset:{t*1024} sc1
buffer_store_dwordx4 {vr(d+8,4)}, v{L16}, {q4(SRD_WS)}, s56 offen offset:{t*1024} sc1""")
    mm(0); mm(1); a("s_waitcnt vmcnt(0)\ns_nop 6"); fin(0); a("s_nop 1"); mm(2); fin(1); a("s_nop 1"); mm(3); fin(2); a("s_nop 3"); fin(3)
    lb = a.newlabel("nz")
    a(f"""
s_cmp_lg_u32 s{S_BLK}, 0
s_cbranch_scc1 {lb}
s_lshl_b32 s54, s{S_P}, 13
s_add_u32 s54, s54, {KVACC}
s_add_u32 s56, s54, 4096
v_mov_b32 v{AF}, 0
v_mov_b32 v{AF+1}, 0
v_mov_b32 v{AF+2}, 0
v_mov_b32 v{AF+3}, 0
""")
    for i in range(4):
        a(f"""buffer_store_dwordx4 {vr(AF,4)}, v{L16}, {q4(SRD_WS)}, s54 offen offset:{i*1024} sc1
buffer_store_dwordx4 {vr(AF,4)}, v{L16}, {q4(SRD_WS)}, s56 offen offset:{i*1024} sc1""")
    a.label(lb)

def phi(a, u, dst, EP, T):
    mx, mn, sp, sn = T, T+1, T+2, T+4
    a(f"v_max3_f32 v{mx}, v{u}, v{u+1}, v{u+2}\nv_min3_f32 v{mn}, v{u}, v{u+1}, v{u+2}")
    for e in range(3, 19, 2):
        a(f"v_max3_f32 v{mx}, v{u+e}, v{u+e+1}, v{mx}\nv_min3_f32 v{mn}, v{u+e}, v{u+e+1}, v{mn}")
    a(f"v_max_f32 v{mx}, v{u+19}, v{mx}\nv_min_f32 v{mn}, v{u+19}, v{mn}")
    a(f"s_mov_b32 s54, {f32hex(LOG2E)}\nv_pk_mul_f32 {vr(mx,2)}, {vr(mx,2)}, s[54:55] op_sel_hi:[1,0]")
    for e in range(0, 20, 2):
        a(f"v_pk_fma_f32 {vr(EP+e,2)}, {vr(u+e,2)}, s[54:55], {vr(mx,2)} op_sel:[0,0,1] op_sel_hi:[1,0,1] neg_lo:[1,0,0] neg_hi:[1,0,0]")
        a(f"v_pk_fma_f32 {vr(u+e,2)}, {vr(u+e,2)}, s[54:55], {vr(mx,2)} op_sel:[0,0,0] op_sel_hi:[1,0,0] neg_lo:[0,0,1] neg_hi:[0,0,1]")
    for e in range(20):
        a(f"v_exp_f32 v{EP+e}, v{EP+e}\nv_exp_f32 v{u+e}, v{u+e}")
    a(f"v_pk_add_f32 {vr(sp,2)}, {vr(u,2)}, {vr(u+2,2)}\nv_pk_add_f32 {vr(sn,2)}, {vr(EP,2)}, {vr(EP+2,2)}")
    for e in range(4, 20, 2):
        a(f"v_pk_add_f32 {vr(sp,2)}, {vr(sp,2)}, {vr(u+e,2)}\nv_pk_add_f32 {vr(sn,2)}, {vr(sn,2)}, {vr(EP+e,2)}")
    a(f"""v_add_f32 v{sp}, v{sp}, v{sp+1}
v_add_f32 v{sp+1}, v{sn}, v{sn+1}
v_rcp_f32 v{sp}, v{sp}
v_rcp_f32 v{sp+1}, v{sp+1}
s_nop 0""")
    for e in range(0, 20, 2):
        a(f"v_pk_mul_f32 {vr(u+e,2)}, {vr(u+e,2)}, {vr(sp,2)} op_sel:[0,0] op_sel_hi:[1,0]")
        a(f"v_pk_mul_f32 {vr(EP+e,2)}, {vr(EP+e,2)}, {vr(sp,2)} op_sel:[0,1] op_sel_hi:[1,1]")
    for e in range(10):
        a(f"v_cvt_pk_bf16_f32 v{dst+e}, v{u+2*e}, v{u+2*e+1}\nv_cvt_pk_bf16_f32 v{dst+10+e}, v{EP+2*e}, v{EP+2*e+1}")

def gen_p12(a, p2hooks):
    a(f"""
s_mov_b32 s{S_P}, s{S_NT}
s_mov_b32 s{S_BLK}, s{S_MT}
s_cmp_eq_u32 s{S_W}, 0
s_cselect_b32 s{S_PREP}, 1, 0
s_cbranch_scc1 L_p_sel
s_cmp_lg_u32 s{S_NT}, 15
s_cbranch_scc1 L_p_sel
s_and_b32 s{S_P}, s{S_MT}, 3
s_lshl_b32 s{S_P}, s{S_P}, 2
s_add_u32 s{S_P}, s{S_P}, s{S_W}
s_sub_u32 s{S_P}, s{S_P}, 1
s_lshr_b32 s{S_BLK}, s{S_MT}, 2
s_add_u32 s{S_BLK}, s{S_BLK}, 16
s_cmp_lt_u32 s{S_W}, 5
s_cselect_b32 s{S_PREP}, 1, 0
L_p_sel:
""")
    VM.clear()
    E = os.environ.get
    def do_prep(fn):
        lb = a.newlabel("pp")
        a(f"s_cmp_eq_u32 s{S_PREP}, 0\ns_cbranch_scc1 {lb}")
        fn(a)
        a.label(lb)
    do_prep(prep_addr)
    ROT = E("ROT", "sched")
    if ROT == "sched": seqs = eval(E("SEQS", "[[0,4,1,2,3,8,5,6,7,9],[1,0,5,2,3,4,9,6,7,8],[2,3,0,6,1,4,5,7,8,9],[3,2,0,1,7,4,5,6,8,9]]"))
    else: seqs = [[(o + i) % 10 for i in range(10)] for o in (0, 3, 5, 8)]
    pk = lambda q: sum(v << (4*i) for i, v in enumerate(q))
    a(f"s_lshr_b32 s54, s{S_J}, 3\ns_add_u32 s54, s54, s{S_J}\ns_and_b32 s54, s54, 3")
    for c in range(4):
        assert sorted(seqs[c]) == list(range(10))
        op = "s_mov_b32" if c == 0 else "s_cmov_b32"
        if c: a(f"s_cmp_eq_u32 s54, {c}")
        a(f"{op} s{S_SEQ}, {hex(pk(seqs[c]) & 0xffffffff)}\n{op} s{S_SEQ+1}, {hex(pk(seqs[c]) >> 32)}")
    a(f"s_mov_b64 s[{S_SEQ+2}:{S_SEQ+3}], s[{S_SEQ}:{S_SEQ+1}]\ns_and_b32 s{S_KR}, s{S_SEQ}, 15")
    a(f"""
v_lshrrev_b32 v36, 3, v{VL}
s_lshl_b32 s54, s{S_MT}, 7
s_lshl_b32 s56, s{S_W}, 4
s_add_u32 s54, s54, s56
v_add_u32 v36, s54, v36
v_mul_u32_u24 v36, 1280, v36
v_lshrrev_b32 v37, 4, v{VL}
v_and_b32 v38, 7, v{VL}
v_xor_b32 v38, v38, v37
v_lshlrev_b32 v38, 4, v38
v_add_u32 v{XG0}, v36, v38
v_xor_b32 v38, 64, v38
v_add_u32 v{XG1}, v36, v38
v_add_u32 v{XG1}, {8*1280}, v{XG1}
s_lshl_b32 s54, s{S_W}, 3
v_add_u32 v36, s54, v37
v_mul_u32_u24 v36, 3840, v36
v_and_b32 v38, 15, v{VL}
v_lshlrev_b32 v37, 2, v37
v_xor_b32 v38, v38, v37
v_lshlrev_b32 v38, 4, v38
v_add_u32 v36, v36, v38
s_lshl_b32 s54, s{S_NT}, 8
v_add_u32 v{WG}, s54, v36
s_lshl_b32 s{S_LB}, s{S_W}, 11
s_mul_i32 s{S_WBB}, s{S_NT}, {40*4096}
s_add_u32 s{S_WBB}, s{S_WBB}, s{S_LB}
s_add_u32 s{S_WBB}, s{S_WBB}, {WBF}
""")
    a("s_waitcnt lgkmcnt(0)")
    pstamp(a, 1)
    do_prep(prep_issue)
    a(f"s_cmp_eq_u32 s{S_NT}, 15\ns_cbranch_scc1 L_p_nodma")
    dma(a, 0)
    pstamp(a, 2)
    a.label("L_p_nodma")
    nonce_publish(a)
    a(f"""
s_lshl_b32 s54, s{S_TT}, 12
v_lshlrev_b32 v36, 7, v{VN}
v_add_u32 v36, s54, v36
v_bfe_u32 v37, v{VN}, 1, 3
v_xor_b32 v37, v37, v{VH}
""")
    for ks in range(4):
        a(f"""v_xor_b32 v38, {2*ks}, v37
v_lshl_add_u32 v{XA+ks}, v38, 4, v36
v_add_u32 v{XA+4+ks}, 0x10000, v{XA+ks}""")
    a(f"""
v_bfe_u32 v36, v{VL}, 2, 2
v_lshl_add_u32 v37, v{VH}, 3, v36
v_lshlrev_b32 v37, 8, v37
v_add_u32 v37, 16384, v37
v_and_b32 v38, 1, v{VL}
v_bfe_u32 v1, v{VL}, 1, 1
s_cmp_ge_u32 s{S_NT}, 10
s_cselect_b64 vcc, -1, 0
v_cndmask_b32 v0, v1, v38, vcc
v_cndmask_b32 v1, v38, v1, vcc
v_lshl_add_u32 v37, v0, 3, v37
v_bfe_u32 v38, v{VL}, 4, 1
v_lshl_add_u32 v38, v38, 1, v1
s_lshl_b32 s54, s{S_FH}, 3
v_add_u32 v38, s54, v38
v_lshlrev_b32 v36, 2, v36
v_xor_b32 v38, v38, v36
v_lshl_add_u32 v{WA}, v38, 4, v37
v_xor_b32 v38, 4, v38
v_lshl_add_u32 v{WA+1}, v38, 4, v37
v_add_u32 v{WA+2}, 0x10000, v{WA}
v_add_u32 v{WA+3}, 0x10000, v{WA+1}
s_lshl_b32 s54, s{S_FH}, 11
s_add_u32 s54, s54, 65536
v_add_u32 v{WB}, s54, v{L16}
v_add_u32 v{WB+1}, 0x10000, v{WB}
s_lshl_b32 s{S_T}, s{S_MT}, 2
s_add_u32 s{S_T}, s{S_T}, s{S_TT}
""")
    a(f"s_cmp_eq_u32 s{S_NT}, 15\ns_cbranch_scc1 L_p1_x")
    do_prep(lambda a: prep_compute(a, 4))
    pstamp(a, 3)
    VM0 = list(VM)
    a(f"""
s_cmp_ge_u32 s{S_NT}, 10
s_cbranch_scc1 L_p1_v
""")
    def h_pub():
        lb = a.newlabel("pa")
        a(f"s_cmp_eq_u32 s{S_PREP}, 0\ns_cbranch_scc1 {lb}")
        a(f"s_waitcnt vmcnt({vm_after('nonce', True)})\nv_readfirstlane_b32 s{S_NONCE}, v35")
        wb_flag_set(a)
        a.label(lb)
    def h_wb_issue():
        lb = a.newlabel("pw")
        a(f"""s_cmp_lg_u32 s{S_W}, 7
s_cbranch_scc1 {lb}
s_lshl_b32 s60, s{S_NT}, 9
s_add_u32 s60, s60, {FL_WB}
v_min_u32 v0, 19, v{VL}
v_lshlrev_b32 v0, 4, v0
buffer_load_dword v34, v0, {q4(SRD_WS)}, s60 offen sc0 sc1""")
        a.label(lb)
    def h_wb_check():
        lb = a.newlabel("pw")
        a(f"""s_cmp_lg_u32 s{S_W}, 7
s_cbranch_scc1 {lb}
v_cmp_ne_u32 vcc, s{S_NONCE}, v34
s_cmp_eq_u32 s{S_NONCE}, 0
s_cselect_b32 s60, 1, 0
s_nop 2
s_or_b32 s60, s60, vcc_lo
s_or_b32 s60, s60, vcc_hi
s_cbranch_scc0 {lb}""")
        wb_flag_wait(a)
        a.label(lb)
    PREBAR[8] = h_wb_check
    hooks1 = {1: h_pub, 2: lambda: a(f"v_readfirstlane_b32 s60, v35\ns_max_u32 s{S_NONCE}, s{S_NONCE}, s60"), 3: lambda: stamp(a, 2), 6: h_wb_issue, 9: lambda: stamp(a, 3)}
    def p1(swapped):
        VM[:] = VM0
        pstamp(a, 4)
        for half in range(2):
            lb = a.newlabel("pc")
            a(f"s_cmp_lg_u32 s{S_PREP}, 0\ns_cbranch_scc1 {lb}\ns_waitcnt vmcnt(2)")
            a.label(lb)
            dma_piece(a, 1, 2*half); dma_piece(a, 1, 2*half + 1)
            pstamp(a, 5 + half)
        a(f"v_mov_b32 v0, 0\nbuffer_load_dword v35, v0, {q4(SRD_DBG)}, 0 offen sc0 sc1\ns_barrier")
        VM.append("nonce")
        stamp(a, 1)
        for i in range(LA): reads(a, i, swapped == 'x')
        steps(a, 0, 40, swapped, hooks1)
    a(f"""
s_cmp_ge_u32 s{S_NT}, 5
s_cselect_b32 s54, 5, 0
s_sub_u32 s54, s{S_NT}, s54
s_lshl_b32 s54, s54, 4
s_lshl_b32 s56, s{S_FH}, 3
s_add_u32 s54, s54, s56
s_cmp_ge_u32 s{S_NT}, 5
s_mov_b32 s56, {64*1280}
s_cselect_b32 s58, {64*2560}, s56
s_mov_b32 s56, 1280
s_cselect_b32 s59, 2560, s56
s_mov_b32 s56, {QIMG}
s_cselect_b32 s63, {KVIMG}, s56
s_mov_b32 s56, {f32hex(QSCALE)}
s_cselect_b32 s64, 1.0, s56
s_mul_i32 s59, s59, s{S_T}
s_add_u32 s63, s63, s59
s_lshl_b32 s59, s58, 1
s_sub_u32 s65, s58, 1536
""")
    a(f"""
v_mov_b32 v36, v{VN}
v_add_u32 v38, s54, v{VH}
v_bfe_u32 v0, v{VN}, 2, 1
v_mul_u32_u24 v1, 3, v0
v_xor_b32 v1, v1, v{VN}
v_and_b32 v1, 3, v1
v_lshlrev_b32 v1, 4, v1
v_lshrrev_b32 v39, 3, v{VN}
v_lshl_add_u32 v39, v39, 6, v1
v_mul_lo_u32 v0, v0, s58
v_add_u32 v39, v39, v0
v_add_u32 v39, 1024, v39
""")
    for j in range(4):
        a(f"""v_add_u32 v0, {2*j}, v38
v_mul_u32_u24 v1, 205, v0
v_lshrrev_b32 v1, 10, v1
v_mul_u32_u24 v37, 5, v1
v_sub_u32 v0, v0, v37
v_mul_lo_u32 v1, v1, s59
v_add_u32 v1, s63, v1
v_cmp_lt_u32 vcc, 2, v0
v_lshl_add_u32 v37, v0, 9, v1
v_lshl_add_u32 v37, v36, 4, v37
v_add_u32 v{EA+j}, s65, v37
v_cndmask_b32 v37, v37, v{EA+j}, vcc
v_cmp_eq_u32 s[{SPM[j]}:{SPM[j]+1}], 2, v0
v_add_u32 v1, v1, v39
s_nop 0
v_cndmask_b32 v{EA+j}, v37, v1, s[{SPM[j]}:{SPM[j]+1}]""")
    p1(False)
    a("s_nop 7\ns_nop 3")
    for j in range(4):
        r = ACC + 8*j
        for e in range(0, 8, 2):
            a(f"v_pk_mul_f32 {vr(r+e,2)}, {vr(r+e,2)}, s[64:65] op_sel_hi:[1,0]")
        for e in range(4):
            a(f"v_cvt_pk_bf16_f32 v{HOLD[j]+e}, v{r+2*e}, v{r+2*e+1}")
    for j in range(4):
        h = HOLD[j]
        lb = a.newlabel("sp")
        a(f"""s_cmp_eq_u64 s[{SPM[j]}:{SPM[j]+1}], 0
s_cbranch_scc1 {lb}
s_mov_b64 exec, s[{SPM[j]}:{SPM[j]+1}]
v_mov_b64 v[0:1], {vr(h+2,2)}
v_mov_b32_dpp v{h+2}, v{h} row_half_mirror row_mask:0xf bank_mask:0x5
v_mov_b32_dpp v{h+3}, v{h+1} row_half_mirror row_mask:0xf bank_mask:0x5
v_mov_b32_dpp v{h}, v0 row_half_mirror row_mask:0xf bank_mask:0xa
v_mov_b32_dpp v{h+1}, v1 row_half_mirror row_mask:0xf bank_mask:0xa
s_mov_b64 exec, -1""")
        a.label(lb)
    a("s_branch L_p2")
    a.label("L_p1_x")
    a(f"s_cmp_eq_u32 s{S_PREP}, 0\ns_cbranch_scc1 L_x_ld")
    prep_compute(a, 0)
    a("s_barrier\ns_waitcnt vmcnt(0)")
    wb_flag_set(a)
    stamp(a, 6)
    a(f"""s_branch L_x_sync
L_x_ld:
s_barrier
s_sub_u32 s54, s{S_W}, 5
s_mul_i32 s54, s54, 3
s_sub_u32 s55, s54, s{S_W}
s_mul_i32 s55, s55, {16*1280}
v_add_u32 v36, s55, v{XG0}
v_add_u32 v37, s55, v{XG1}
s_lshl_b32 s54, s54, 11
s_mov_b32 s55, 0
L_x_loop:""")
    for i in range(3):
        if i == 2: a(f"s_cmp_eq_u32 s{S_W}, 7\ns_cbranch_scc1 L_x_next")
        a(f"""s_add_u32 m0, s54, {2048*i}
s_add_u32 s56, s55, {16*1280*i}
buffer_load_dwordx4 v36, {q4(SRD_X)}, s56 offen lds
s_add_u32 m0, s54, {2048*i + 1024}
s_nop 0
buffer_load_dwordx4 v37, {q4(SRD_X)}, s56 offen lds""")
    a(f"""L_x_next:
s_add_u32 s54, s54, 16384
s_add_u32 s55, s55, 128
s_cmp_lt_u32 s55, 1024
s_cbranch_scc1 L_x_loop
L_x_sync:
s_waitcnt vmcnt(0)
s_barrier""")
    stamp(a, 1)
    for st in (8, 9):
        for i in range(2):
            a(f"""s_add_u32 m0, s{S_LB}, {TOP + (st-8)*16384 + 1024*i}
s_movk_i32 s{S_XO}, {st*128}
buffer_load_dwordx4 v{XG0+i}, {q4(SRD_X)}, s{S_XO} offen lds""")
    for g in range(32):
        a(f"ds_read_b128 {vr(XR+4*g,4)}, v{XA+4*(g>>4)+(g&3)} offset:{((g>>2)&3)*16384}")
    for ks in range(4):
        a(f"v_add_u32 v{XA+ks}, 0x20000, v{XA+ks}")
    nonce_get(a)
    lb = a.newlabel("xw")
    a(f"s_cmp_lg_u32 s{S_W}, 7\ns_cbranch_scc1 {lb}")
    wb_flag_wait(a)
    a.label(lb)
    a("s_waitcnt vmcnt(0) lgkmcnt(0)\ns_barrier")
    stamp(a, 2)
    for g in range(32, 40):
        a(f"ds_read_b128 {vr(XR+4*g,4)}, v{XA+(g&3)} offset:{((g>>2)&1)*16384}")
    a(f"s_mov_b32 s{S_KR}, 2\ns_mov_b32 s{S_SEQ}, 0x76105432\ns_mov_b32 s{S_SEQ+1}, 0x98")
    for st in range(12, 16):
        for i in range(2): dma_piece(a, st, i)
    a("s_waitcnt lgkmcnt(0)\ns_barrier")
    for st in range(10, 12):
        for i in range(2): dma_piece(a, st, i)
    for i in range(4):
        a(f"v_mov_b32 v{EA+i}, {OOB}")
    a("s_waitcnt vmcnt(0)\ns_barrier")
    stamp(a, 3)
    reads(a, 40); reads(a, 41)
    a("s_branch L_p2")
    a.label("L_p1_v")
    a(f"""
s_sub_u32 s54, s{S_NT}, 10
s_lshl_b32 s54, s54, 7
s_lshl_b32 s56, s{S_FH}, 6
s_add_u32 s54, s54, s56
s_mul_i32 s63, s{S_T}, 2560
s_add_u32 s63, s63, {KVIMG + 1280}
s_mov_b32 s58, {64*2560}
v_mul_u32_u24 v36, 320, v{VH}
v_add_u32 v36, s63, v36
v_add_u32 v38, s54, v{VN}
""")
    for ft in range(2):
        a(f"""v_add_u32 v0, {32*ft}, v38
v_mul_u32_u24 v1, 3277, v0
v_lshrrev_b32 v1, 16, v1
v_mul_u32_u24 v37, 20, v1
v_sub_u32 v0, v0, v37
v_mul_lo_u32 v1, v1, s58
v_lshl_add_u32 v1, v0, 4, v1
v_add_u32 v{EA+2*ft}, v1, v36
v_add_u32 v{EA+2*ft+1}, 640, v{EA+2*ft}""")
    p1(True)
    a("s_nop 7\ns_nop 7")
    for j in range(4):
        for e in range(4):
            a(f"v_cvt_pk_bf16_f32 v{HOLD[j]+e}, v{ACC+8*j+2*e}, v{ACC+8*j+2*e+1}")
    a.label("L_p2")
    a(f"v_add_u32 v{WBR[0]}, 0xffff0000, v{WB}")
    def h_qkv():
        lb = a.newlabel("qa")
        a(f"s_cmp_lg_u32 s{S_W}, 7\ns_cbranch_scc1 {lb}")
        a(f"s_lshl_b32 s60, s{S_NT}, 4\ns_add_u32 s60, s60, s{S_MT}\ns_lshl_b32 s60, s60, 4\ns_add_u32 s60, s60, {FL_QKV}")
        flag_set(a, "s60")
        a.label(lb)
    stamp(a, 4)
    hooks2 = dict(p2hooks)
    hooks2[QST] = h_qkv
    steps(a, 40, 80, False, hooks2)
    stamp(a, 5)

T0, T1, T2, T3, T4, T5, T6, T7 = 194, 195, 196, 197, 198, 199, 216, 217
S_KVA = 79
def b_addr(a):
    a(f"""
s_lshl_b32 s54, s{S_TT}, 5
v_add_u32 v{T0}, s54, v{VN}
v_mul_u32_u24 v{T0}, {BROW}, v{T0}
v_add_u32 v{T0}, {STG}, v{T0}
v_mul_u32_u24 v{T2}, 48, v{VH}
v_add_u32 v{T2}, v{T2}, v{T0}
v_mul_u32_u24 v{T1}, 80, v{VH}
v_add_u32 v{T1}, v{T1}, v{T0}
s_and_b32 s57, s{S_W}, 1
s_bfe_u32 s58, s{S_W}, 0x10001
v_bfe_u32 v6, v{VL}, 2, 2
v_lshl_add_u32 v6, v{VH}, 3, v6
v_mul_u32_u24 v6, {BROW}, v6
v_bfe_u32 v7, v{VL}, 4, 1
v_lshl_add_u32 v6, v7, 5, v6
v_and_b32 v7, 3, v{VL}
v_lshl_add_u32 v6, v7, 3, v6
s_mul_i32 s54, s57, 48
s_add_u32 s54, s54, {160 + STG}
v_add_u32 v{T3}, s54, v6
s_mul_i32 s54, s57, 80
s_lshl_b32 s56, s58, 6
s_add_u32 s54, s54, s56
s_add_u32 s54, s54, {STG}
v_add_u32 v{T4}, s54, v6
s_lshl_b32 s{S_KVA}, s{S_NT}, 1
s_add_u32 s{S_KVA}, s{S_KVA}, s57
s_lshl_b32 s{S_KVA}, s{S_KVA}, 12
s_add_u32 s{S_KVA}, s{S_KVA}, {KVACC}
s_lshl_b32 s56, s58, 5
v_add_u32 v6, s56, v{VN}
v_cmp_gt_u32 vcc, 40, v6
v_lshlrev_b32 v6, 2, v6
v_mul_u32_u24 v7, 640, v{VH}
v_add_u32 v6, v6, v7
v_mov_b32 v7, {OOB}
v_cndmask_b32 v{T5}, v7, v6, vcc
v_cmp_gt_u32 vcc, 32, v{VL}
s_nop 1
v_cndmask_b32 v{T6}, v7, v{T5}, vcc
""")

def b_stage(a):
    for e in range(6):
        a(f"v_cvt_pk_bf16_f32 v{168+e}, v{ACC+20+2*e}, v{ACC+21+2*e}")
    a(f"""
s_cmp_eq_u32 s{S_FH}, 0
s_cbranch_scc0 L_b_k
ds_write_b128 v{T2}, v[168:171] offset:160
ds_write_b64 v{T2}, v[172:173] offset:176
v_mov_b64 {vr(PHQ_R+20,2)}, 0
v_mov_b64 {vr(PHQ_R+22,2)}, 0
""")
    for g in range(3):
        for e in range(4):
            a(f"v_permlane32_swap_b32 v{PHQ_R+8*g+e}, v{PHQ_R+8*g+4+e}")
    a(f"""
s_branch L_b_staged
L_b_k:
v_mul_f32 v{ACC+28}, {f32hex(-LOG2E)}, v{ACC+28}
v_exp_f32 v{ACC+28}, v{ACC+28}
v_mov_b32 v172, 0x3f80
v_add_f32 v{ACC+28}, 1.0, v{ACC+28}
v_rcp_f32 v174, v{ACC+28}
v_mov_b32 v173, 0
ds_write_b64 v{T2}, v[168:169] offset:184
ds_write_b128 v{T2}, v[170:173] offset:192
v_sub_f32 v175, 1.0, v174
""")
    for i in range(5):
        a(f"ds_write_b128 v{T1}, {vr(PHQ_R+4*i,4)} offset:{16*i}")
    a(f"""
ds_write_b32 v{T0}, v175 offset:256
s_cmp_lg_u32 s{S_NT}, 0
s_cbranch_scc1 L_b_staged
s_lshl_b32 s54, s{S_T}, 7
s_add_u32 s54, s54, {GATE}
v_lshlrev_b32 v0, 2, v{VN}
buffer_store_dword v174, v0, {q4(SRD_WS)}, s54 offen sc1
L_b_staged:
""")

def b_kv(a):
    a(f"""
s_cmp_eq_u32 s{S_FH}, 0
s_cbranch_scc0 L_b_k2
ds_read_b32 v{OMG}, v{T0} offset:256
s_branch L_b_done
L_b_k2:
""")
    KD, FR = 200, 168
    def kvreads(ks):
        b = FR + 8*(ks % 3)
        for aa in range(2):
            a(f"ds_read_b64_tr_b16 {vr(b+2*aa,2)}, v{T3} offset:{(16*ks+4*aa)*BROW}")
            a(f"ds_read_b64_tr_b16 {vr(b+4+2*aa,2)}, v{T4} offset:{(16*ks+4*aa)*BROW}")
    kvreads(0); kvreads(1)
    for ks in range(8):
        b = FR + 8*(ks % 3)
        if ks + 2 < 8: kvreads(ks + 2)
        a(f"s_waitcnt lgkmcnt({4*min(2, 7-ks)})")
        a(f"v_mfma_f32_32x32x16_bf16 {vr(KD,16)}, {vr(b,4)}, {vr(b+4,4)}, {'0' if ks == 0 else vr(KD,16)}")
    a.label("L_b_done")
def b_atomics(a):
    for r in range(12):
        ad = T6 if r > 8 else T5
        a(f"buffer_atomic_add_f32 v{200+r}, v{ad}, {q4(SRD_WS)}, s{S_KVA} offen offset:{(8*(r//4) + r%4)*160}")
```

```python
from asmlib import *
from layout import *
import f1
from f1 import VL, L16, VN, VH, PHQ_R, OMG, swap23, flag_set, flag_wait, flag_wait2, flag_peek, flag_check, nonce_get, S_T, VM, vm_after
SLOT = 10304
RST = eval(os.environ.get('RST', '{}'))
stamp2 = stamp
if RST:
    def stamp(a, i): pass
HALF = 6 * SLOT
FLG = 159232
import f3
S = [16, 32, 48, 64]; O = [80, 96]
Q1 = [112, 116]; Q2 = [120, 122]
K1 = [124, 128]; K2 = [132, 134]
V = [[136, 140], [144, 148]]
VA = 152; KA1 = 160; KA2 = 161; IDX = 162; DG = 163; K16 = 164; K8 = 165; MX = [166, 167]
QA8, OA4, OA2, ROWM = 12, 13, 14, 15
ONEA = f1.T7
RAW = 168
S_HEAD, S_QT, S_MODE, S_WIN, S_M0, S_KVB = 66, 67, 68, 69, 70, 71
S_QP, S_KH = S_TT, S_FH

def kv_dma(a, pos):
    a(f"""s_add_u32 m0, s{S_M0}, {pos*2*SLOT}
s_add_u32 s54, s{S_WIN}, 4096
buffer_load_dwordx4 v{DG}, {q4(SRD_WS)}, s{S_WIN} offen lds
buffer_load_dwordx4 v{DG}, {q4(SRD_WS)}, s{S_WIN} offen offset:1024 lds
buffer_load_dwordx4 v{DG}, {q4(SRD_WS)}, s{S_WIN} offen offset:2048 lds
buffer_load_dwordx4 v{DG}, {q4(SRD_WS)}, s{S_WIN} offen offset:3072 lds
s_add_u32 m0, s{S_M0}, {pos*2*SLOT + 4096}
s_add_u32 s{S_WIN}, s{S_WIN}, 20480
buffer_load_dwordx4 v{DG}, {q4(SRD_WS)}, s54 offen lds""")
    VM.extend([("kv", pos)] * 5)

def attn_scalars(a):
    a(f"""
s_lshr_b32 s54, s{S_J}, 3
s_lshl_b32 s{S_HEAD}, s{S_XCD}, 2
s_add_u32 s{S_HEAD}, s{S_HEAD}, s54
s_and_b32 s54, s{S_J}, 7
s_lshl_b32 s54, s54, 3
s_lshl_b32 s{S_QT}, s{S_QP}, 1
s_add_u32 s{S_QT}, s{S_QT}, s54
s_mul_i32 s{S_KVB}, s{S_HEAD}, {64*2560}
s_add_u32 s{S_KVB}, s{S_KVB}, {KVIMG}
s_mul_i32 s54, s{S_QP}, 5120
s_lshr_b32 s{S_M0}, s{S_QP}, 1
s_mul_i32 s{S_M0}, s{S_M0}, {SLOT - 10240}
s_add_u32 s{S_M0}, s{S_M0}, s54
s_mul_i32 s54, s{S_KH}, {HALF}
s_add_u32 s{S_M0}, s{S_M0}, s54
s_mov_b32 s{S_MODE}, 0
""")

S_QF = 78
QGO = 163832
def qkv_addr(a):
    a(f"""s_mul_i32 s54, s{S_HEAD}, 20
s_lshr_b32 s55, s54, 7
s_add_u32 s54, s54, 19
s_lshr_b32 s54, s54, 7
s_sub_u32 s54, s54, s55
s_lshl_b32 s54, s54, 8
s_lshl_b32 s{S_QF}, s55, 8
s_add_u32 s{S_QF}, s{S_QF}, {FL_QKV}
v_min_u32 v6, 47, v{VL}
v_lshrrev_b32 v38, 4, v6
v_mul_u32_u24 v38, 1280, v38
v_bfe_u32 v7, v6, 3, 1
v_mul_u32_u24 v7, s54, v7
v_and_b32 v6, 7, v6
v_lshlrev_b32 v6, 4, v6
v_add3_u32 v38, v38, v7, v6
v_mov_b32 v39, {QGO}
v_mov_b32 v6, 0
ds_write_b32 v39, v6""")
def qkv_peek(a):
    a(f"""s_cmp_lg_u32 s{S_W}, 0
s_cbranch_scc1 L_pk1
buffer_load_dword v36, v38, {q4(SRD_WS)}, s{S_QF} offen sc0 sc1
buffer_load_dword v37, v38, {q4(SRD_WS)}, s{S_QF} offen offset:128 sc0 sc1
L_pk1:""")
def qkv_peek2(a):
    a(f"""s_mov_b32 s61, 1
s_cmp_lg_u32 s{S_W}, 0
s_cbranch_scc1 L_pk2
s_waitcnt vmcnt(0)
v_xor_b32 v36, s{S_NONCE}, v36
v_xor_b32 v37, s{S_NONCE}, v37
v_or_b32 v36, v36, v37
v_cmp_ne_u32 s[60:61], 0, v36
v_mov_b32 v36, s{S_NONCE}
s_nop 3
s_or_b32 s61, s60, s61
s_cselect_b32 s61, 0, 1
s_cbranch_scc1 L_pk2
ds_write_b32 v39, v36
L_pk2:""")

def attn_issue(a, first):
    if first:
        a(f"""
s_mul_i32 s54, s{S_QT}, 1280
s_mul_i32 s55, s{S_HEAD}, {64*1280}
s_add_u32 s54, s54, s55
s_add_u32 s54, s54, {QIMG}
buffer_load_dwordx4 {vr(Q1[0],4)}, v{L16}, {q4(SRD_WS)}, s54 offen
buffer_load_dword v{Q2[0]}, v{QA8}, {q4(SRD_WS)}, s54 offen offset:1024
buffer_load_dwordx4 {vr(Q1[1],4)}, v{L16}, {q4(SRD_WS)}, s54 offen offset:1280
buffer_load_dword v{Q2[1]}, v{QA8}, {q4(SRD_WS)}, s54 offen offset:2304
""")
        VM.extend(["qk"] * 4)
    a(f"""
s_mul_i32 s{S_WIN}, s{S_KH}, {32*2560}
s_add_u32 s{S_WIN}, s{S_WIN}, s{S_KVB}
buffer_load_dwordx4 {vr(K1[0],4)}, v{K16}, {q4(SRD_WS)}, s{S_KVB} offen
buffer_load_dword v{K2[0]}, v{K8}, {q4(SRD_WS)}, s{S_KVB} offen offset:1024
buffer_load_dwordx4 {vr(K1[1],4)}, v{K16}, {q4(SRD_WS)}, s{S_WIN} offen
buffer_load_dword v{K2[1]}, v{K8}, {q4(SRD_WS)}, s{S_WIN} offen offset:1024
s_add_u32 s{S_WIN}, s{S_WIN}, 1280
""")
    VM.extend(["qk"] * 4)
    kv_dma(a, 0)

def out_store(a, o, scale, head_s, tile_s, base):
    for i in range(0, 12, 2):
        a(f"v_pk_mul_f32 {vr(o+i,2)}, {vr(o+i,2)}, {vr(scale,2)} op_sel_hi:[1,0]")
    for i in range(6):
        a(f"v_cvt_pk_bf16_f32 v{o+i}, v{o+2*i}, v{o+2*i+1}")
    a(f"""
s_mul_i32 s54, {tile_s}, 40960
s_add_u32 s54, s54, {base}
s_lshl_b32 s56, {head_s}, 9
s_add_u32 s56, s56, s54
s_lshl_b32 s57, {head_s}, 7
s_add_u32 s57, s57, s54
buffer_store_dwordx4 {vr(o,4)}, v{OA4}, {q4(SRD_WS)}, s56 offen sc1
buffer_store_dwordx2 {vr(o+4,2)}, v{OA2}, {q4(SRD_WS)}, s57 offen sc1
""")

PKR = 10
KV_AD = f"s_lshl_b32 s60, s{S_NT}, 10\ns_add_u32 s60, s60, {FL_KV}"
def p4_issue(a):
    a("s_waitcnt vmcnt(0)")
    flag_check(a, KV_AD, 64, PKR)
    a(f"""
s_lshl_b32 s54, s{S_NT}, 13
s_add_u32 s54, s54, {KVACC}
s_add_u32 s55, s54, 4096
v_mov_b32 v8, {OOB}
""")
    a(f"""v_cmp_ge_u32 vcc, 20, v{ROWM}
v_mul_u32_u24 v6, 160, v{ROWM}
v_lshl_add_u32 v6, v{VH}, 5, v6
v_cndmask_b32 v6, v8, v6, vcc
v_cmp_gt_u32 vcc, 32, v{VL}
s_nop 1
v_cndmask_b32 v7, v8, v6, vcc""")
    for hh in range(2):
        for u in range(3):
            for hf in range(2):
                a(f"buffer_load_dwordx4 {vr(RAW+24*hh+8*u+4*hf,4)}, v{7 if u == 2 else 6}, {q4(SRD_WS)}, s{54+hh} offen offset:{64*u + 16*hf} sc0 sc1")

def p4_compute(a):
    for f in range(6):
        for e in range(4):
            a(f"v_cvt_pk_bf16_f32 v{RAW+4*f+e}, v{RAW+8*f+2*e}, v{RAW+8*f+2*e+1}")
    a("s_nop 1")
    D = [192, 208]
    for hh in range(2):
        for u in range(3):
            a(f"v_mfma_f32_32x32x16_bf16 {vr(D[hh],16)}, {vr(RAW+12*hh+4*u,4)}, {vr(PHQ_R+8*u+4*hh,4)}, {'0' if u == 0 else vr(D[hh],16)}")
    a(f"s_lshl_b32 s58, s{S_NT}, 1\ns_nop 7")
    for hh in range(2):
        a(f"""v_add_f32 v6, {f32hex(1e-6)}, v{D[hh]+12}
v_rcp_f32 v6, v6
s_nop 0
v_mul_f32 v6, v6, v{OMG}""")
        out_store(a, D[hh], 6, "s58", f"s{S_T}", OBF)
        if hh == 0: a("s_add_u32 s58, s58, 1")

def max_init(a):
    a(f"""
v_mov_b32 v{K2[0]+1}, 0x3f803f80
v_mov_b32 v{K2[1]+1}, 0x3f803f80
v_mov_b32 v{Q2[0]+1}, 0
v_mov_b32 v{Q2[1]+1}, 0
v_mov_b32 v{MX[0]}, 0xff800000
v_mov_b32 v{MX[1]}, 0xff800000
v_mov_b64 {vr(V[1][1],2)}, 0
v_mov_b64 {vr(V[1][1]+2,2)}, 0
""")
def qk(a, kb):
    for q in range(2):
        a(f"""v_mfma_f32_32x32x16_bf16 {vr(S[q],16)}, {vr(K1[kb],4)}, {vr(Q1[q],4)}, 0
v_mfma_f32_32x32x8_bf16 {vr(S[q],16)}, {vr(K2[kb],2)}, {vr(Q2[q],2)}, {vr(S[q],16)}""")
def max_acc(a):
    for q in range(2):
        for e in range(8):
            a(f"v_max3_f32 v{MX[q]}, v{S[q]+2*e}, v{S[q]+2*e+1}, v{MX[q]}")
def max_fin(a):
    a(f"v_cmp_gt_u32 vcc, 32, v{VL}\nv_mov_b32 v176, v{MX[0]}\nv_mov_b32 v179, v{MX[1]}\ns_nop 0")
    a(f"v_permlane32_swap_b32 v176, v{MX[0]}\nv_permlane32_swap_b32 v179, v{MX[1]}\ns_nop 0")
    for q in range(2):
        t = 176 + 3*q
        a(f"""v_max_f32 v{t}, v{t}, v{MX[q]}
v_xor_b32 v{t}, 0x80000000, v{t}
v_and_b32 v{t+1}, 0xffff0000, v{t}
v_sub_f32 v{t}, v{t}, v{t+1}
v_and_b32 v{t+2}, 0xffff0000, v{t}
v_sub_f32 v{t}, v{t}, v{t+2}
v_lshrrev_b32 v{t+1}, 16, v{t+1}
v_or_b32 v{t+1}, v{t+1}, v{t+2}
v_lshrrev_b32 v{t}, 16, v{t}
v_cndmask_b32 v{Q2[q]+1}, v{t}, v{t+1}, vcc""")
    a("s_nop 1")
def static_setup(a):
    swap23(a, ROWM, VN, 6)
    for dst, src in ((QA8, VN), (K8, ROWM)):
        a(f"""v_bfe_u32 v6, v{src}, 2, 1
v_mul_u32_u24 v6, 7, v6
v_lshlrev_b32 v7, 1, v{src}
v_and_b32 v7, 6, v7
v_xor_b32 v6, v6, v7
v_and_b32 v7, 24, v{src}
v_add_u32 v6, v6, v7
v_lshlrev_b32 v6, 3, v6
v_lshl_add_u32 v{dst}, v{VH}, 2, v6""")
    a(f"""
v_lshlrev_b32 v{K16}, 4, v{ROWM}
v_lshl_add_u32 v{K16}, v{VH}, 9, v{K16}
s_mul_i32 s54, s{S_QP}, 5120
v_add_u32 v{DG}, s54, v{L16}
v_cmp_gt_u32 vcc, 20, v{VN}
v_and_b32 v6, 27, v{VN}
v_mov_b32 v7, 31
v_cndmask_b32 v{ROWM}, v7, v{ROWM}, vcc
v_cmp_eq_u32 vcc, 24, v6
v_bfe_u32 v6, v{VL}, 4, 1
v_mul_u32_u24 v6, 20480, v6
v_cndmask_b32 v{ROWM}, v{ROWM}, 20, vcc
v_and_b32 v7, 15, v{VL}
v_lshl_add_u32 v{OA4}, v7, 4, v6
v_lshl_add_u32 v{OA4}, v{VH}, 8, v{OA4}
v_lshl_add_u32 v6, v7, 3, v6
v_add_u32 v6, 16384, v6
v_cmp_gt_u32 vcc, 32, v{VL}
v_mov_b32 v7, {OOB}
v_mov_b32 v{IDX}, 0xdddddddd
v_cndmask_b32 v{OA2}, v7, v6, vcc
s_mul_i32 s55, s{S_KH}, {HALF}
v_add_u32 v{KA1}, s55, v{K16}
v_add_u32 v{KA2}, s55, v{K8}
v_mul_u32_u24 v7, 320, v{VH}
v_lshl_add_u32 v7, v{ROWM}, 4, v7
v_cmp_eq_u32 vcc, 20, v{ROWM}
v_mov_b32 v8, 10240
v_mov_b32 v9, 10256
v_cndmask_b32 v9, v9, v8, vcc
v_cmp_gt_u32 vcc, 20, v{ROWM}
v_mov_b32 v8, 640
v_mov_b32 v10, 1920
v_cndmask_b32 v7, v9, v7, vcc
v_cndmask_b32 v8, 0, v8, vcc
v_cndmask_b32 v10, 0, v10, vcc
v_add_u32 v{VA}, s55, v7
""")
    for i in range(1, 8):
        a(f"v_add_u32 v{VA+i}, v{VA+i-1}, v{8 if i & 1 else 10}")
    max_init(a)
def ones_addr(a):
    a(f"""
v_min_u32 v6, 11, v{VL}
v_lshrrev_b32 v7, 1, v6
v_mul_u32_u24 v7, {SLOT}, v7
v_and_b32 v6, 1, v6
v_lshl_add_u32 v7, v6, 4, v7
s_mul_i32 s55, s{S_KH}, {HALF}
s_add_u32 s55, s55, 10240
v_add_u32 v{ONEA}, s55, v7
v_add_u32 v6, -1, v6
v_and_b32 v8, 0x3f803f80, v6
v_mov_b32 v9, v8
v_mov_b32 v10, v8
v_mov_b32 v11, v8
""")
def ones_write(a, mask):
    a(f"s_mov_b64 exec, {mask}\nds_write_b128 v{ONEA}, v[8:11]\ns_mov_b64 exec, -1")
def o_zero(a):
    for q in range(2):
        a(f"v_mfma_f32_32x32x16_bf16 {vr(O[q],16)}, {vr(V[1][1],4)}, {vr(V[1][1],4)}, 0")
def G(a, rec):
    pos = (0, 1, 2, 0, 1)[rec >> 3]
    slot, j, p = (rec >> 2) & 1, rec & 3, rec & 1
    so = (2*pos + slot) * SLOT
    a(f"""ds_read_b128 {vr(K1[p],4)}, v{KA1} offset:{so + j*2560 + 1280}
ds_read_b32 v{K2[p]}, v{KA2} offset:{so + j*2560 + 2304}
ds_read_b128 {vr(V[p][0],4)}, v{VA+2*j} offset:{so}
ds_read_b128 {vr(V[p][1],4)}, v{VA+2*j+1} offset:{so}""")

def cond(a, test, fn):
    lb = a.newlabel("c")
    a(test + f"\ns_cbranch_scc1 {lb}")
    fn()
    a.label(lb)

def gen_attn(a):
    E = os.environ.get
    nonce_get(a)
    a(f"s_cmp_lg_u32 s61, 0\ns_cbranch_scc1 L_q_other\nv_mov_b32 v0, v38")
    flag_wait2(a, f"s{S_QF}", sleep=2)
    a(f"v_mov_b32 v36, s{S_NONCE}\nds_write_b32 v39, v36")
    a.label("L_q_other")
    a("ds_read_b32 v36, v39")
    ones_write(a, 15)
    a(f"""s_waitcnt lgkmcnt(0)
v_readfirstlane_b32 s63, v36
s_nop 3
s_sub_u32 s63, s63, s{S_NONCE}
s_cmp_lg_u32 s63, 0
s_cbranch_scc1 L_q_notyet""")
    attn_issue(a, True)
    a.label("L_q_notyet")
    f1.phi(a, f1.ACC, PHQ_R, 168, 188)
    a(f"""s_cmp_eq_u32 s63, 0
s_cbranch_scc1 L_q_done
s_mov_b32 s62, 0x400000
L_q_spin:
ds_read_b32 v36, v39
s_waitcnt lgkmcnt(0)
v_readfirstlane_b32 s63, v36
s_cmp_eq_u32 s63, s{S_NONCE}
s_cbranch_scc1 L_q_go
s_sleep 1
s_sub_u32 s62, s62, 1
s_cmp_lg_u32 s62, 0
s_cbranch_scc1 L_q_spin
L_q_go:""")
    sv = list(VM)
    attn_issue(a, True)
    VM[:] = sv
    a.label("L_q_done")
    a(f"s_waitcnt vmcnt({vm_after('qk')})")
    qk(a, 0)
    f1.b_stage(a)
    max_acc(a); max_fin(a)
    qk(a, 1)
    o_zero(a)
    a(f"s_waitcnt vmcnt({vm_after(('kv', 0))}) lgkmcnt(0)")
    a("s_barrier")
    if DIAG:
        stamp_flush(a, 0, S_W, 8, keep=True); stamp_init(a); stamp(a, 0)
    G(a, 0)
    ones_write(a, 0xff0)
    f1.b_kv(a)
    a.label("L_at_go")
    a("s_setprio 3\ns_waitcnt lgkmcnt(0)")
    stamp(a, 2)
    def h_kvflag():
        a("s_waitcnt vmcnt(0)")
        a(f"s_lshl_b32 s60, s{S_NT}, 6\ns_add_u32 s60, s60, s{S_T}\ns_lshl_b32 s60, s60, 4\ns_add_u32 s60, s60, {FL_KV}")
        flag_set(a, "s60")
    def h_p4c():
        a("s_waitcnt vmcnt(0)")
        p4_compute(a)
    def h_obflag():
        a("s_waitcnt vmcnt(0)")
        a(f"s_lshl_b32 s60, s{S_T}, 4\ns_add_u32 s60, s60, s{S_NT}\ns_lshl_b32 s60, s60, 4\ns_add_u32 s60, s60, {FL_OB}")
        flag_set(a, "s60")
    def h_atom():
        cond(a, f"s_cmp_lg_u32 s{S_MODE}, 0", lambda: f1.b_atomics(a))
    def bar8(): a("s_waitcnt vmcnt(1)\ns_barrier")
    def bar24():
        a("s_waitcnt vmcnt(0)")
        f3.wo_check(a)
        a("s_barrier")
    B1 = lambda p: (lambda: f3.p5_batch1(a, p))
    KD_ = lambda p: (lambda: kv_dma(a, p))
    both = {8: bar8, 24: bar24}
    hlo = {1: KD_(1), 3: KD_(2), 5: lambda: f3.p5_setup(a), 7: lambda: a(f"buffer_load_dword v11, v{L16}, {q4(SRD_DBG)}, 0 offen"),
           8: KD_(0), 10: lambda: flag_peek(a, KV_AD, 64, PKR), 12: lambda: p4_issue(a), 15: h_p4c,
           18: h_obflag, 21: lambda: f3.p5_misc(a), 24: B1(0), 25: B1(1), 26: lambda: (B1(2)(), f3.ob_peek(a)), 27: lambda: f3.wo_touch(a), 28: lambda: f3.p5_ob_issue(a)}
    hhi = {2: h_atom, 3: KD_(1), 4: KD_(2), 6: lambda: f3.p5_setup(a), 7: h_kvflag,
           8: lambda: f3.wo_issue(a), 9: KD_(0), 11: lambda: f3.wo_move(a), 12: lambda: f3.wo_store(a), 14: lambda: f3.wo_flag(a),
           20: lambda: f3.p5_misc(a), 22: lambda: f3.wo_peek(a), 25: B1(0), 26: B1(1), 27: lambda: (B1(2)(), f3.ob_peek(a)), 29: lambda: f3.p5_ob_issue(a)}
    def mk(rec):
        def f():
            if rec in both: both[rec]()
            if rec in hlo and rec in hhi:
                l1, l2 = a.newlabel("h"), a.newlabel("h")
                a(f"s_cmp_lg_u32 s{S_KH}, 0\ns_cbranch_scc1 {l1}")
                hlo[rec](); a(f"s_branch {l2}"); a.label(l1); hhi[rec](); a.label(l2)
            elif rec in hlo: cond(a, f"s_cmp_lg_u32 s{S_KH}, 0", hlo[rec])
            elif rec in hhi: cond(a, f"s_cmp_eq_u32 s{S_KH}, 0", hhi[rec])
        return f
    hooks = {r: mk(r) for r in set(both) | set(hlo) | set(hhi)}
    PR = eval(E('PR', '{3: 2, 5: 1, 7: 0, 8: 3, 15: 2, 20: 1, 23: 0, 24: 3, 27: 2, 29: 1, 31: 0}'))
    for t in range(32):
        for q in range(2):
            i = (2*t + q) & 3
            X, W, Y = S[i], S[(i-1) & 3], S[(i+2) & 3]
            p = t & 1
            pw, qw = (p, 0) if q == 1 else (1 - p, 1)
            ex = [f"v_exp_f32 v{X+e}, v{X+e}" for e in range(16)]
            a("\n".join(ex[0:2]))
            if t + q: a(f"v_smfmac_f32_32x32x32_bf16 {vr(O[qw],16)}, {vr(V[pw][1],4)}, {vr(W+8,8)}, v{IDX}")
            if q == 0:
                rec = t + 1
                if rec in RST: stamp2(a, RST[rec])
                if rec in hooks: hooks[rec]()
                if rec in PR: a(f"s_setprio {PR[rec]}")
                if rec < 32: G(a, rec)
            a("\n".join(ex[2:6]))
            if t < 31: a(f"v_mfma_f32_32x32x16_bf16 {vr(Y,16)}, {vr(K1[p],4)}, {vr(Q1[q],4)}, 0")
            a("\n".join(ex[6:10]))
            a(f"v_smfmac_f32_32x32x32_bf16 {vr(O[q],16)}, {vr(V[p][0],4)}, {vr(X,8)}, v{IDX}")
            a("\n".join(ex[10:14]))
            if t < 31: a(f"v_mfma_f32_32x32x8_bf16 {vr(Y,16)}, {vr(K2[p],2)}, {vr(Q2[q],2)}, {vr(Y,16)}")
            a("\n".join(ex[14:16]))
            if q == 1 and t < 31:
                a("s_waitcnt lgkmcnt(0)")
    stamp(a, 3)
    a(f"""
s_lshl_b32 s54, s{S_QP}, 12
s_mul_i32 s55, s{S_KH}, {HALF}
v_smfmac_f32_32x32x32_bf16 {vr(O[1],16)}, {vr(V[1][1],4)}, {vr(S[3]+8,8)}, v{IDX}
s_add_u32 s56, s54, s55
s_sub_u32 s55, {HALF}, s55
s_add_u32 s55, s55, s54
v_add_u32 v6, s56, v{L16}
v_add_u32 v7, s55, v{L16}
s_waitcnt vmcnt(0)
s_barrier
""")
    for q in range(2):
        a(f"v_add_f32 v{8+q}, |v{O[q]}|, |v{O[q]+1}|")
        for i in range(2, 12):
            a(f"v_add_f32 v{8+q}, v{8+q}, |v{O[q]+i}|")
    a(f"""
v_add_f32 v8, v8, v9
v_add_f32 v9, v{O[0]+12}, v{O[1]+12}
v_mov_b32 v10, 0x0c800000
v_fmac_f32 v9, v8, v10
v_mov_b32 v10, 0x4b000000
v_cmp_nle_f32 vcc, v9, v10
s_lshl_b32 s55, s{S_W}, 2
s_add_u32 s55, s55, {FLG}
v_mov_b32 v9, s55
s_cmp_eq_u32 s{S_KH}, 0
s_cbranch_scc1 L_at_m0
""")
    def send(o):
        for i in range(3):
            a(f"ds_write_b128 v6, {vr(o+4*i,4)} offset:{i*1024}")
        a(f"ds_write_b32 v6, v{o+12} offset:3072")
    send(O[0])
    a("s_waitcnt lgkmcnt(0)")
    for i in range(0, 14, 2):
        a(f"v_mov_b64 {vr(O[0]+i,2)}, {vr(O[1]+i,2)}")
    a("s_branch L_at_m1")
    a.label("L_at_m0")
    send(O[1])
    a.label("L_at_m1")
    a(f"""s_cmp_lg_u64 vcc, 0
s_cselect_b32 s54, 1, 0
v_mov_b32 v8, s54
ds_write_b32 v9, v8
v_mov_b32 v9, {FLG}
s_waitcnt lgkmcnt(0)
s_barrier
ds_read_b128 v[32:35], v9
ds_read_b128 v[8:11], v9 offset:16
ds_read_b32 v{S[0]+12}, v7 offset:3072""")
    for i in range(3):
        a(f"ds_read_b128 {vr(S[0]+4*i,4)}, v7 offset:{i*1024}")
    o = O[0]
    a(f"""s_waitcnt lgkmcnt(3)
v_or3_b32 v8, v8, v9, v10
v_or3_b32 v8, v8, v11, v32
v_or3_b32 v8, v8, v33, v34
v_or_b32 v8, v8, v35
v_add_f32 v{o+12}, v{o+12}, v{S[0]+12}
v_readfirstlane_b32 s54, v8
v_rcp_f32 v6, v{o+12}
s_andn2_b32 s54, s54, s{S_MODE}
s_cmp_eq_u32 s54, 0
s_waitcnt lgkmcnt(0)
s_cbranch_scc1 L_at_fin
s_mov_b32 s{S_MODE}, 1
s_barrier
""")
    attn_issue(a, False)
    max_init(a)
    a(f"s_mov_b32 s56, s{S_KVB}\ns_mov_b32 s57, 64")
    a.label("L_at_max")
    a("s_waitcnt vmcnt(0)")
    qk(a, 0)
    a("s_nop 7\ns_nop 3")
    max_acc(a)
    a(f"""
s_add_u32 s56, s56, 2560
buffer_load_dwordx4 {vr(K1[0],4)}, v{K16}, {q4(SRD_WS)}, s56 offen
buffer_load_dword v{K2[0]}, v{K8}, {q4(SRD_WS)}, s56 offen offset:1024
s_sub_u32 s57, s57, 1
s_cmp_lg_u32 s57, 0
s_cbranch_scc1 L_at_max
""")
    max_fin(a)
    qk(a, 1)
    o_zero(a)
    ones_addr(a)
    ones_write(a, 0xfff)
    a("s_waitcnt vmcnt(0) lgkmcnt(0)\ns_barrier")
    G(a, 0)
    a("s_branch L_at_go")
    a.label("L_at_fin")
    stamp(a, 4)
    for i in range(0, 12, 2):
        a(f"v_pk_add_f32 {vr(o+i,2)}, {vr(o+i,2)}, {vr(S[0]+i,2)}")
    a(f"s_add_u32 s58, s{S_QT}, s{S_KH}")
    out_store(a, o, 6, f"s{S_HEAD}", "s58", OAF)
```

```python
from asmlib import *
from layout import *
from f1 import VL, L16, VN, VH, flag_set, flag_wait, flag_peek, flag_check, nonce_get
if os.environ.get('RST'):
    def stamp(a, i): pass
SRD_WOA, SRD_WOB, SRD_OUT = SRD_X, SRD_WA, SRD_WB
S_MB, S_CT, S_T16 = 74, 75, 76
OL8 = 213
S_WOF = 73
GV = 221
OFB = 168
R1, R2, Z0, Z1 = 20608, 82432, 0, 61824
def lds_b(b): return R1 + 5120*b if b < 8 else R2 + 5120*(b-8) if b < 16 else R2 + 5120*(b-6)
def lds_a(b):
    if b < 2: return R2 + 5120*(8+b)
    if b < 6: return Z0 + 5120*(b-2)
    if b < 10: return Z1 + 5120*(b-6)
    if b < 18: return R1 + 5120*(b-10)
    return R2 + 5120*(b-18)
MB, LB = 40*1280, 160*1280

def p5_setup(a):
    a(f"""
s_load_dwordx2 s[54:55], s[0:1], 16
s_load_dwordx2 s[56:57], s[0:1], 48
s_load_dwordx2 s[58:59], s[0:1], 64
s_lshl_b32 s{S_MB}, s{S_XCD}, 2
s_and_b32 s60, s{S_J}, 3
s_add_u32 s{S_MB}, s{S_MB}, s60
s_lshr_b32 s{S_CT}, s{S_J}, 2
s_lshl_b32 s{S_T16}, s{S_MB}, 2
s_add_u32 s{S_T16}, s{S_T16}, s{S_TT}
s_mul_i32 s{S_WOF}, s{S_CT}, {40*5120}
s_add_u32 s{S_WOF}, s{S_WOF}, {WOF}
s_waitcnt lgkmcnt(0)
""")
    srd(a, SRD_WOA, 54, WO_BYTES); srd(a, SRD_WOB, 56, WO_BYTES); srd(a, SRD_OUT, 58, OUT_BYTES)

WSCR = 131072
def wo_sel(a, fn):
    lb = a.newlabel("wo")
    a(f"""s_sub_u32 s56, s{S_W}, 4
s_lshl_b32 s57, s56, 5
s_add_u32 s57, s57, s{S_MB}
s_cmp_ge_u32 s57, 40
s_cbranch_scc1 {lb}""")
    fn()
    a.label(lb)
def wo_issue(a):
    def f():
        l1, l2 = a.newlabel("wo"), a.newlabel("wo")
        a(f"""s_lshl_b32 s56, s56, 13
s_add_u32 s56, s56, {WSCR}
s_sub_u32 s58, s57, 20
s_cmp_ge_u32 s57, 20
s_cselect_b32 s58, s58, s57
s_sub_u32 s59, s58, 16
s_mul_i32 s59, s59, {LB}
s_add_u32 s59, s59, {16*1280}
s_mul_i32 s55, s58, {MB}
s_cmp_ge_u32 s58, 16
s_cselect_b32 s55, s59, s55
s_movk_i32 s59, {4*1280}
s_cselect_b32 s58, 0, s59
s_cselect_b32 s59, {20*1280}, s59
s_mul_i32 s54, s{S_CT}, 160
s_add_u32 s55, s55, s54
v_lshrrev_b32 v6, 4, v{VL}
v_mul_u32_u24 v6, 1280, v6
v_and_b32 v7, 15, v{VL}
v_min_u32 v7, 9, v7
v_lshl_add_u32 v6, v7, 4, v6
s_cmp_ge_u32 s57, 20
s_cbranch_scc1 {l1}""")
        for srd_, end in ((SRD_WOA, f"s_branch {l2}\n{l1}:"), (SRD_WOB, f"{l2}:")):
            for kq in range(8):
                i = (kq >> 1) + 4 * (kq & 1)
                a(f"s_add_u32 m0, s56, {i*1024}")
                a("s_add_u32 s55, s55, s58" if kq == 4 else "s_nop 0")
                a(f"buffer_load_dwordx4 v6, {q4(srd_)}, s55 offen lds")
                if kq < 7: a("s_add_u32 s55, s55, s59")
            a(end)
    wo_sel(a, f)
def wo_move(a):
    def f():
        a(f"""s_lshl_b32 s56, s56, 13
s_add_u32 s56, s56, {WSCR}
v_lshrrev_b32 v6, 2, v{VL}
v_and_b32 v7, 3, v{VL}
v_mul_u32_u24 v7, 40, v7
v_lshl_add_u32 v6, v6, 8, v7
v_add_u32 v6, s56, v6
s_waitcnt vmcnt(0)""")
        for t in range(5):
            for aa in range(2):
                a(f"ds_read_b64_tr_b16 {vr(168+4*t+2*aa,2)}, v6 offset:{aa*4096 + t*8}")
    wo_sel(a, f)
def wo_store(a):
    def f():
        a(f"""s_mul_i32 s55, s57, 5120
s_add_u32 s55, s55, s{S_WOF}
s_add_u32 s54, s55, 4096""")
        for t in range(5):
            a(f"buffer_store_dwordx4 {vr(168+4*t,4)}, v{L16}, {q4(SRD_WS)}, {'s55' if t < 4 else 's54'} offen offset:{(t&3)*1024} sc1")
    wo_sel(a, f)
def wo_flag(a):
    def f():
        a(f"""s_waitcnt vmcnt(0)
s_lshl_b32 s60, s{S_CT}, 6
s_add_u32 s60, s60, s57
s_lshl_b32 s60, s60, 4
s_add_u32 s60, s60, {FL_WO}""")
        flag_set(a, "s60")
    wo_sel(a, f)
WO_AD = f"s_lshl_b32 s60, s{S_CT}, 10\ns_add_u32 s60, s60, {FL_WO}"
OB_AD = f"s_lshr_b32 s60, s{S_T16}, 1\ns_lshl_b32 s60, s60, 8\ns_add_u32 s60, s60, {FL_OB}"
def only7(a, fn):
    lb = a.newlabel("w7")
    a(f"s_cmp_lg_u32 s{S_W}, 7\ns_cbranch_scc1 {lb}")
    fn()
    a.label(lb)
def wo_peek(a): only7(a, lambda: flag_peek(a, WO_AD, 40, 10))
def wo_check(a): only7(a, lambda: flag_check(a, WO_AD, 40, 10))
def ob_peek(a): flag_peek(a, OB_AD, 16, 10)
def wo_touch(a):
    lb = a.newlabel("wot")
    a(f"""s_cmp_ge_u32 s{S_W}, 3
s_cbranch_scc1 {lb}
s_and_b32 s54, s{S_MB}, 3
s_mul_i32 s54, s54, 3
s_add_u32 s54, s54, s{S_W}
s_mul_i32 s54, s54, {60*128}
s_add_u32 s54, s54, s{S_WOF}
s_add_u32 s54, s54, {2*5120}
v_min_u32 v6, 59, v{VL}
v_lshlrev_b32 v6, 7, v6
buffer_load_dword v11, v6, {q4(SRD_WS)}, s54 offen""")
    a.label(lb)

def blk_dma(a, s_lds, s_blk):
    a(f"""s_mul_i32 s60, {s_blk}, 5120
s_mov_b32 m0, {s_lds}
s_add_u32 s60, s60, s{S_WOF}
s_add_u32 s61, s60, 4096""")
    for i in range(4):
        a(f"buffer_load_dwordx4 v{L16}, {q4(SRD_WS)}, s60 offen offset:{i*1024} lds")
    a(f"s_add_u32 m0, {s_lds}, 4096\ns_nop 0\nbuffer_load_dwordx4 v{L16}, {q4(SRD_WS)}, s61 offen lds")

def p5_batch1(a, part):
    a(f"s_mul_i32 s54, s{S_W}, 5120")
    lb = a.newlabel("b1")
    if part == 0:
        a(f"s_add_u32 s56, s54, {R1}\ns_add_u32 s55, s{S_W}, 20")
    elif part == 1:
        a(f"s_add_u32 s56, s54, {R2}\ns_add_u32 s55, s{S_W}, 28")
    else:
        a(f"""s_add_u32 s56, s54, {R2 + 8*5120}
s_add_u32 s55, s{S_W}, 34
s_cmp_lt_u32 s{S_W}, 2
s_cselect_b32 s55, s{S_W}, s55
s_cmp_ge_u32 s{S_W}, 6
s_cbranch_scc1 {lb}""")
    blk_dma(a, "s56", "s55")
    a.label(lb)

def o_loads(a, base, dst):
    a(f"""s_mul_i32 s54, s{S_T16}, 20480
s_lshl_b32 s55, s{S_FH}, 10
s_add_u32 s54, s54, s55
s_add_u32 s54, s54, {base}""")
    for i in range(8):
        a(f"buffer_load_dwordx4 {vr(dst+4*i,4)}, v{L16}, {q4(SRD_WS)}, s54 offen offset:{(i&1)*2048} sc1")
        if i & 1: a("s_add_u32 s54, s54, 4096")
    for i in range(8, 10):
        for z in range(2):
            a(f"buffer_load_dwordx2 {vr(dst+4*i+2*z,2)}, v{OL8}, {q4(SRD_WS)}, s54 offen offset:{(i&1)*2048 + 128*z} sc1")

def p5_ob_issue(a):
    a("s_waitcnt vmcnt(0)")
    flag_check(a, OB_AD, 16, 10)
    o_loads(a, OBF, OFB)
    a(f"""s_lshl_b32 s54, s{S_T16}, 6
s_add_u32 s54, s54, {GATE}
v_and_b32 v6, 15, v{VL}
v_lshlrev_b32 v6, 2, v6
buffer_load_dword v{GV}, v6, {q4(SRD_WS)}, s54 offen sc1""")

GO2 = 159232 + 64
OUTA = 214
def p5_misc(a):
    a(f"""v_and_b32 v6, 15, v{VL}
s_lshl_b32 s54, s{S_T16}, 4
v_add_u32 v6, s54, v6
v_mul_u32_u24 v6, 1280, v6
v_lshrrev_b32 v7, 4, v{VL}
v_mul_u32_u24 v7, 40, v7
s_mul_i32 s54, s{S_CT}, 160
v_add3_u32 v{OUTA}, v6, v7, s54
v_lshrrev_b32 v6, 4, v{VL}
v_and_b32 v7, 15, v{VL}
v_lshlrev_b32 v7, 3, v7
v_lshl_add_u32 v{OL8}, v6, 8, v7
v_mov_b32 v6, {GO2}
v_mov_b32 v7, 0
ds_write_b32 v6, v7""")
    if os.environ.get("TLB"):
        a(f"s_mov_b64 exec, 1\nbuffer_load_dword v11, v{OUTA}, {q4(SRD_OUT)}, 0 offen\ns_mov_b64 exec, -1")

def gen_p5(a, s_qb_head_flag):
    P5ST = os.environ.get("P5ST")
    RB = 6
    ACA, ACB = 16, 36
    WF = [56, 76]
    OFA = 96
    PRE = [136, 156, 176, 222, 56, 76]
    NPRE = len(PRE)
    PUBI = int(os.environ.get('PUBI', '2'))
    o7 = lambda fn: only7(a, fn)
    a(f"""s_lshl_b32 s63, s{S_MB}, 10
s_add_u32 s63, s63, {FL_OA}
v_mov_b32 v9, {GO2}
s_barrier""")
    a(f"""s_mul_i32 s56, s{S_TT}, 5120
s_mul_i32 s57, s{S_FH}, {Z1}
s_add_u32 s56, s56, s57
s_add_u32 s59, s{S_W}, 2""")
    blk_dma(a, "s56", "s59")
    if P5ST == "2": stamp(a, 0)
    a(f"""
s_mul_i32 s56, s{S_FH}, 5120
v_add_u32 v{RB}, s56, v{L16}
v_add_u32 v{RB+1}, 57344, v{RB}
v_add_u32 v{RB+2}, 114688, v{RB}
""")
    def reads(addr, dst):
        k = addr // 57344
        for t in range(5):
            a(f"ds_read_b128 {vr(dst+4*t,4)}, v{RB+k} offset:{addr - k*57344 + t*1024}")
    def mm(acc, wf, of, first):
        for t in range(5):
            a(f"v_mfma_f32_16x16x32_bf16 {vr(acc+4*t,4)}, {vr(wf+4*t,4)}, {vr(of,4)}, {'0' if first else vr(acc+4*t,4)}")
    def partb(i0, i1, pre=None):
        reads(lds_b(2*i0), WF[i0 & 1])
        for i in range(i0, i1):
            if i + 1 < i1:
                reads(lds_b(2*i+2), WF[(i+1) & 1])
                a("s_waitcnt lgkmcnt(5)")
            else:
                a("s_waitcnt lgkmcnt(0)")
            if pre: pre(i)
            mm(ACB, WF[i & 1], OFB + 4*i, i == 0)
    def pub(i):
        if i == PUBI:
            a("s_waitcnt vmcnt(5)")
            flag_set(a, s_qb_head_flag)
            stamp(a, 5)
    partb(0, 5, pub)
    def chk():
        lb = a.newlabel("pk")
        a(f"""s_waitcnt vmcnt(0)
v_cmp_ne_u32 vcc, s{S_NONCE}, v12
v_mov_b32 v12, s{S_NONCE}
s_nop 2
s_cmp_lg_u64 vcc, 0
s_cbranch_scc1 {lb}
ds_write_b32 v9, v12
s_waitcnt lgkmcnt(0)""")
        a.label(lb)
    if P5ST == "2": stamp(a, 1)
    a("s_barrier")
    l2 = a.newlabel("b3")
    a(f"""s_mul_i32 s56, s{S_W}, 5120
s_add_u32 s56, s56, {R1}
s_add_u32 s55, s{S_W}, 10""")
    blk_dma(a, "s56", "s55")
    a(f"s_cmp_ge_u32 s{S_W}, 2\ns_cbranch_scc1 {l2}\ns_add_u32 s56, s56, {R2 - R1}\ns_add_u32 s55, s55, 8")
    blk_dma(a, "s56", "s55")
    a.label(l2)
    if P5ST == "2": stamp(a, 2)
    def peek(i):
        if i == 6: o7(lambda: a(f"buffer_load_dword v12, v{L16}, {q4(SRD_WS)}, s63 offen sc0 sc1"))
    partb(5, 10, peek)
    if P5ST: stamp(a, 3)
    o7(chk)
    a(f"""s_waitcnt vmcnt(0)
s_barrier
ds_read_b32 v12, v9
s_waitcnt lgkmcnt(0)
v_readfirstlane_b32 s58, v12
s_cmp_lg_u32 s58, s{S_NONCE}
s_cbranch_scc1 L_p5_late""")
    reads(lds_a(0), PRE[0]); reads(lds_a(2), PRE[1])
    o_loads(a, OAF, OFA)
    for i in range(2, NPRE):
        reads(lds_a(2*i), PRE[i])
    a("s_branch L_p5_go")
    a.label("L_p5_late")
    for i in range(NPRE):
        reads(lds_a(2*i), PRE[i])
    def poll():
        flag_wait(a, "s63", 64, sleep=1)
        a(f"v_mov_b32 v12, s{S_NONCE}\nds_write_b32 v9, v12")
    o7(poll)
    a(f"""s_mov_b32 s62, 0x4000000
L_p5_spin:
ds_read_b32 v12, v9
s_waitcnt lgkmcnt(0)
v_readfirstlane_b32 s58, v12
s_cmp_eq_u32 s58, s{S_NONCE}
s_cbranch_scc1 L_p5_ld
s_sub_u32 s62, s62, 1
s_cmp_lg_u32 s62, 0
s_cbranch_scc1 L_p5_spin
L_p5_ld:""")
    o_loads(a, OAF, OFA)
    a.label("L_p5_go")
    stamp(a, 6)
    outstanding = [10] * NPRE
    for i in range(10):
        later = sum(5 for j in range(i + 1, min(10, i + NPRE)))
        a(f"s_waitcnt vmcnt({11-i if i < 8 else 2*(9-i)}) lgkmcnt({min(15, later)})")
        if P5ST == "1" and i in (0, 4, 9): stamp(a, (0, 4, 9).index(i))
        mm(ACA, PRE[i % NPRE], OFA + 4*i, i == 0)
        if i + NPRE < 10: reads(lds_a(2*(i + NPRE)), PRE[i % NPRE])
    a(f"""
s_mul_i32 s54, s{S_TT}, 5120
s_add_u32 s54, s54, {R2 + 2*5120}
v_add_u32 v9, s54, v{L16}
s_nop 4
""")
    for i in range(20):
        a(f"v_fmac_f32 v{ACB+i}, v{ACA+i}, v{GV}")
    a(f"s_cmp_eq_u32 s{S_FH}, 0\ns_cbranch_scc1 L_p5_lo")
    for i in range(5):
        a(f"ds_write_b128 v9, {vr(ACB+4*i,4)} offset:{i*1024}")
    a("s_waitcnt lgkmcnt(0)\ns_barrier\ns_branch L_p5_end")
    a.label("L_p5_lo")
    a("s_barrier")
    for i in range(5):
        a(f"ds_read_b128 {vr(ACA+4*i,4)}, v9 offset:{i*1024}")
    a("s_waitcnt lgkmcnt(0)")
    for i in range(0, 20, 2):
        a(f"v_pk_add_f32 {vr(ACB+i,2)}, {vr(ACB+i,2)}, {vr(ACA+i,2)}")
    for e in range(10):
        a(f"v_cvt_pk_bf16_f32 v{ACA+e}, v{ACB+2*e}, v{ACB+2*e+1}")
    a(f"""
buffer_store_dwordx4 {vr(ACA,4)}, v{OUTA}, {q4(SRD_OUT)}, 0 offen
buffer_store_dwordx4 {vr(ACA+4,4)}, v{OUTA}, {q4(SRD_OUT)}, 0 offen offset:16
buffer_store_dwordx2 {vr(ACA+8,2)}, v{OUTA}, {q4(SRD_OUT)}, 0 offen offset:32
""")
    a.label("L_p5_end")
```

```python
import sys
from asmlib import *
from layout import *
import f1, f2, f3
NAME = "gated_mix__mha_block__linear_kernel_hedgehog__prompt"
def load_srds(a, which):
    tab = [(SRD_PHI, 40, WPHI_BYTES), (SRD_WB, 32, WQKV_BYTES), (SRD_X, 0, X_BYTES), (SRD_WA, 8, WQKV_BYTES), (SRD_GATE, 56, GATEW_BYTES), (SRD_WS, 80, WS_BYTES), (SRD_DBG, 72, 256)]
    for d, off, n in tab:
        a(f"s_load_dwordx2 s[{d}:{d+1}], s[0:1], {off}")
    for d, off, n in tab:
        a(f"s_mov_b32 s{d+2}, {hex(n)}\ns_mov_b32 s{d+3}, 0x20000")
    f1.common_init(a)
def build(mode):
    ref = open(f"cdna_kernels/{NAME}.s.ref").read().split("\n")
    head = [l for l in ref if l.startswith(";") and "@launch" not in l and "Override launch" not in l and "grid=ceil" not in l]
    a = Asm()
    for l in head: a.raw(l)
    kernels = []
    a.raw(f"; @launch grid=(256,1,1) block=(512,1,1) lds=163840")
    a.raw('.amdgcn_target "amdgcn-amd-amdhsa--gfx950"\n.text')
    kn = NAME + "_kernel"
    kernel_begin(a, kn)
    a("s_cmp_ge_u32 s2, 256\ns_cbranch_scc1 L_end1")
    stamp_init(a); stamp(a, 0)
    load_srds(a, 0)
    f1.set_fill(f2.attn_scalars, 56, 59)
    f1.set_fill(lambda t: (f2.qkv_addr(t), f2.static_setup(t)), 60, 72)
    f1.set_fill(lambda t: (f1.b_addr(t), f2.ones_addr(t)), 73, 80)
    PK = int(os.environ.get("PEEK", "72"))
    f1.set_block(f2.qkv_peek, PK); f1.set_block(f2.qkv_peek2, 78)
    f1.gen_p12(a, {}); f2.gen_attn(a)
    a(f"s_lshr_b32 s77, s{f2.S_QT}, 1\ns_lshl_b32 s77, s77, 5\ns_add_u32 s77, s77, s{f2.S_HEAD}\ns_lshl_b32 s77, s77, 1\ns_add_u32 s77, s77, s{S_FH}\ns_lshl_b32 s77, s77, 4\ns_add_u32 s77, s77, {FL_OA}")
    f3.gen_p5(a, "s77")
    f1.nonce_clear(a)
    stamp_flush(a, 1, S_W, 8)
    a.label("L_end1"); a("s_endpgm")
    kernels = [(kn, 256)]
    a.raw('.section .rodata,"a"')
    for n, v in kernels:
        a.raw(kernel_desc(n, v, 102))
    return a.text()
if __name__ == "__main__":
    out = sys.argv[2] if len(sys.argv) > 2 else f"cdna_kernels/{NAME}.s"
    open(out, "w").write(build(sys.argv[1]))
```

```python
from asmlib import *
from layout import *

NS = 4
TOP = NS * 32768
BROW = 272
STG = 126976
VL, L16, VN, VH = 2, 3, 4, 5
XG0, XG1, WG = 6, 7, 8
XA = 10
WA = 18
WB = 22
EA = 24
WFB = [40, 48, 248]
LA = 2
ACC = 56
XR = 88
DIST = 3
S_SEQ = 98
PREBAR = {}
FILL = {}
QST = int(os.environ.get('QST', '16'))
STG_STAMP = eval(os.environ.get('STG_STAMP', '{}'))
stamp2 = stamp
PRO = os.environ.get('PRO')
if STG_STAMP or PRO:
    def stamp(a, i): pass
def pstamp(a, i):
    if PRO: stamp2(a, i)
HOLD = [8, 12, 16, 32]
SPM = [4, 6, 74, 76]
STORE_AT = eval(os.environ.get('STORE_AT', '[40,44,48,52]'))
PHQ_R = 228
OMG = 252
S_XO, S_WO, S_KR, S_LB, S_T, S_PREP, S_WBB = 44, 45, 46, 47, 48, 49, 50

def common_init(a):
    a(f"""
s_and_b32 s{S_XCD}, s2, 7
s_lshr_b32 s{S_J}, s2, 3
v_lshrrev_b32 v1, 6, v0
v_and_b32 v{VL}, 63, v0
v_readfirstlane_b32 s{S_W}, v1
s_and_b32 s{S_MT}, s{S_XCD}, 1
s_lshl_b32 s{S_MT}, s{S_MT}, 3
s_and_b32 s52, s{S_J}, 7
s_add_u32 s{S_MT}, s{S_MT}, s52
s_lshr_b32 s{S_NT}, s{S_XCD}, 1
s_lshl_b32 s{S_NT}, s{S_NT}, 2
s_lshr_b32 s52, s{S_J}, 3
s_add_u32 s{S_NT}, s{S_NT}, s52
s_and_b32 s{S_TT}, s{S_W}, 3
s_lshr_b32 s{S_FH}, s{S_W}, 2
v_lshlrev_b32 v{L16}, 4, v{VL}
v_and_b32 v{VN}, 31, v{VL}
v_lshrrev_b32 v{VH}, 5, v{VL}
""")

def nonce_publish(a):
    lb = a.newlabel("np")
    a(f"""s_mov_b32 s{S_NONCE}, 0
s_xor_b32 s60, s{S_W}, 1
s_or_b32 s60, s2, s60
s_cmp_lg_u32 s60, 0
s_cbranch_scc1 {lb}
s_memrealtime s[60:61]
v_mov_b32 v9, 0
s_waitcnt lgkmcnt(0)
s_or_b32 s60, s60, 1
v_mov_b32 v1, s60
s_mov_b64 exec, 1
buffer_store_dword v1, v9, {q4(SRD_DBG)}, 0 offen sc0 sc1
s_mov_b64 exec, -1""")
    a.label(lb)

def nonce_clear(a):
    lb = a.newlabel("nc")
    a(f"""s_xor_b32 s60, s{S_W}, 4
s_or_b32 s60, s2, s60
s_cmp_lg_u32 s60, 0
s_cbranch_scc1 {lb}
v_mov_b32 v0, 0
s_mov_b64 exec, 1
buffer_store_dword v0, v0, {q4(SRD_DBG)}, 0 offen sc0 sc1
s_mov_b64 exec, -1""")
    a.label(lb)

def nonce_get(a):
    lp, dn = a.newlabel("ng"), a.newlabel("ngd")
    a(f"""s_cmp_lg_u32 s{S_NONCE}, 0
s_cbranch_scc1 {dn}
v_mov_b32 v0, 0
s_mov_b32 s62, 0x200000""")
    a.label(lp)
    a(f"""buffer_load_dword v1, v0, {q4(SRD_DBG)}, 0 offen sc0 sc1
s_waitcnt vmcnt(0)
v_readfirstlane_b32 s{S_NONCE}, v1
s_cmp_lg_u32 s{S_NONCE}, 0
s_cbranch_scc1 {dn}
s_sleep 8
s_sub_u32 s62, s62, 1
s_cmp_lg_u32 s62, 0
s_cbranch_scc1 {lp}""")
    a.label(dn)

def flag_set(a, off_sgpr):
    a(f"""v_mov_b32 v0, 0
v_mov_b32 v1, s{S_NONCE}
s_mov_b64 exec, 1
buffer_store_dword v1, v0, {q4(SRD_WS)}, {off_sgpr} offen sc0 sc1
s_mov_b64 exec, -1""")

def flag_wait(a, off_sgpr, nwords, sleep=10):
    lp, dn = a.newlabel("fw"), a.newlabel("fwd")
    if nwords <= 64:
        a(f"v_min_u32 v0, {nwords-1}, v{VL}\nv_lshlrev_b32 v0, 4, v0")
    a("s_mov_b32 s62, 0x200000")
    a.label(lp)
    if nwords <= 64:
        a(f"""buffer_load_dword v1, v0, {q4(SRD_WS)}, {off_sgpr} offen sc0 sc1
s_waitcnt vmcnt(0)
v_cmp_ne_u32 vcc, s{S_NONCE}, v1""")
    else:
        a(f"""buffer_load_dwordx4 v[36:39], v{L16}, {q4(SRD_WS)}, {off_sgpr} offen sc0 sc1
s_waitcnt vmcnt(0)
v_xor_b32 v36, s{S_NONCE}, v36
v_xor_b32 v37, s{S_NONCE}, v37
v_xor_b32 v38, s{S_NONCE}, v38
v_xor_b32 v39, s{S_NONCE}, v39
v_or3_b32 v36, v36, v37, v38
v_or_b32 v36, v36, v39
v_cmp_ne_u32 vcc, 0, v36""")
    a(f"""s_nop 3
s_cmp_eq_u64 vcc, 0
s_cbranch_scc1 {dn}
s_sleep {sleep}
s_sub_u32 s62, s62, 1
s_cmp_lg_u32 s62, 0
s_cbranch_scc1 {lp}""")
    a.label(dn)

def flag_peek(a, addr_code, nwords, dst):
    a(addr_code)
    a(f"""v_min_u32 v0, {nwords-1}, v{VL}
v_lshlrev_b32 v0, 4, v0
buffer_load_dword v{dst}, v0, {q4(SRD_WS)}, s60 offen sc0 sc1""")
def flag_check(a, addr_code, nwords, dst):
    lb = a.newlabel("fc")
    a(f"""v_cmp_ne_u32 vcc, s{S_NONCE}, v{dst}
s_nop 3
s_cmp_eq_u64 vcc, 0
s_cbranch_scc1 {lb}""")
    a(addr_code)
    flag_wait(a, "s60", nwords)
    a.label(lb)

def flag_wait2(a, off_sgpr, sleep=4):
    lp, dn = a.newlabel("fw"), a.newlabel("fwd")
    a("s_mov_b32 s62, 0x200000")
    a.label(lp)
    a(f"""buffer_load_dword v36, v0, {q4(SRD_WS)}, {off_sgpr} offen sc0 sc1
buffer_load_dword v37, v0, {q4(SRD_WS)}, {off_sgpr} offen offset:128 sc0 sc1
s_waitcnt vmcnt(0)
v_xor_b32 v36, s{S_NONCE}, v36
v_xor_b32 v37, s{S_NONCE}, v37
v_or_b32 v36, v36, v37
v_cmp_ne_u32 vcc, 0, v36
s_nop 3
s_cmp_eq_u64 vcc, 0
s_cbranch_scc1 {dn}
s_sleep {sleep}
s_sub_u32 s62, s62, 1
s_cmp_lg_u32 s62, 0
s_cbranch_scc1 {lp}""")
    a.label(dn)

def wb_flag_set(a):
    nonce_get(a)
    a(f"""s_lshl_b32 s60, s{S_P}, 5
s_add_u32 s60, s60, s{S_BLK}
s_lshl_b32 s60, s60, 4
s_add_u32 s60, s60, {FL_WB}""")
    flag_set(a, "s60")
def wb_flag_wait(a):
    nonce_get(a)
    a(f"""s_lshl_b32 s60, s{S_NT}, 9
s_add_u32 s60, s60, {FL_WB}""")
    flag_wait(a, "s60", 20)

VM = []
def vm_after(tag, prep=False):
    idx = max(i for i, t in enumerate(VM) if t == tag)
    return len([t for t in VM[idx+1:] if prep or not (isinstance(t, str) and t.startswith("p:"))])
P2SLOT = [131072, 147456, 65536, 82432, 98816, 0, 20608, 36992, 82432, 98816]
WBR = [20, 22, 23]
P2BAR = {10: 12, 11: None, 13: 15, 16: 17, 18: 19}

def dma_piece(a, st, i):
    slot = st % NS
    last = 3 if st < 10 else 1
    if st >= 10:
        if i == 0: a(f"s_lshl_b32 s{S_WO}, s{S_KR}, 14")
        a(f"s_add_u32 m0, s{S_LB}, {P2SLOT[st-10] + 1024*i}")
        a(f"s_add_u32 s{S_WO}, s{S_WO}, s{S_WBB}" if i == 0 else f"s_add_u32 s{S_WO}, s{S_WO}, 1024")
        a(f"buffer_load_dwordx4 v{L16}, {q4(SRD_WS)}, s{S_WO} offen lds")
    elif i < 2:
        a(f"""s_add_u32 m0, s{S_LB}, {slot*32768 + 1024*i}
s_lshl_b32 s{S_XO}, s{S_KR}, 7
buffer_load_dwordx4 v{XG0+i}, {q4(SRD_X)}, s{S_XO} offen lds""")
    else:
        a(f"s_add_u32 m0, s{S_LB}, {slot*32768 + 16384 + 1024*(i-2)}")
        a(f"s_mul_i32 s{S_WO}, s{S_KR}, {64*3840}" if i == 2 else f"s_add_u32 s{S_WO}, s{S_WO}, {4*3840}")
        a(f"buffer_load_dwordx4 v{WG}, {q4(SRD_WA)}, s{S_WO} offen lds")
    if i == last:
        if st == 9: a(f"s_mov_b64 s[{S_SEQ}:{S_SEQ+1}], s[{S_SEQ+2}:{S_SEQ+3}]")
        else: a(f"s_lshr_b64 s[{S_SEQ}:{S_SEQ+1}], s[{S_SEQ}:{S_SEQ+1}], 4")
        a(f"s_and_b32 s{S_KR}, s{S_SEQ}, 15")
    VM.append(("dma", st))
def dma_sched(ds, pc):
    if ds == 2: return [(2, 2*pc - 4), (2, 2*pc - 3)]
    if ds < 10: return [(ds, pc)]
    if ds == 10: return [(10 + pc, 0), (10 + pc, 1)] if pc < 3 else []
    if ds == 11: return [(13 + (pc >> 1), pc & 1)]
    if ds == 12: return [(15, pc)] if pc < 2 else []
    if ds == 13: return [(16 + (pc >> 1), pc & 1)]
    if ds == 18: return [(18 + pc, 0), (18 + pc, 1)] if pc < 2 else []
    return []
def dma(a, st):
    for i in range(4): dma_piece(a, st, i)

def reads(a, g, xonly=False):
    st, ks, wf = g >> 2, g & 3, WFB[g % 3]
    slot = st % NS
    hi = slot >= 2
    so = (slot & 1) * 32768
    if st < 10:
        a(f"ds_read_b128 {vr(XR+4*g,4)}, v{XA+4*hi+ks} offset:{so}")
        for ft in range(0 if xonly else 2):
            for aa in range(2):
                a(f"ds_read_b64_tr_b16 {vr(wf+4*ft+2*aa,2)}, v{WA+2*hi+ft} offset:{so + (16*ks+4*aa)*256}")
    elif st < 20:
        for ft in range(2):
            a(f"ds_read_b128 {vr(wf+4*ft,4)}, v{WBR[P2SLOT[st-10] >> 16]} offset:{(P2SLOT[st-10] & 65535) + ks*4096 + ft*1024}")
def nreads(g):
    return 5 if g < 40 else 2 if g < 80 else 0

def enter_stage(a, st):
    if st >= 10:
        if st == QST and st not in P2BAR:
            a(f"s_waitcnt vmcnt({vm_after('epi')})\ns_barrier")
            return
        if st not in P2BAR: return
    cov = P2BAR.get(st, st)
    if cov is None:
        a("s_barrier")
        return
    n, n2 = vm_after(("dma", cov)), vm_after(("dma", cov), True)
    assert st < 2 or n == n2
    if st == QST: n = min(n, vm_after("epi"))
    a(f"s_waitcnt vmcnt({n})")
    if st in PREBAR: PREBAR[st]()
    a("s_barrier")
    if st in STG_STAMP: stamp2(a, STG_STAMP[st])

def steps(a, g0, g1, swapped, hooks):
    for g in range(g0, g1):
        wf = WFB[g % 3]
        nst = (g + LA) >> 2
        if (g + LA) & 3 == 0 and nst < 20:
            enter_stage(a, nst)
        xonly = swapped == "x"
        reads(a, g + LA, xonly)
        if (g + LA) & 3 == 0 and nst in hooks: hooks[nst]()
        a(f"s_waitcnt lgkmcnt({LA if xonly else sum(nreads(g+i) for i in range(1, LA+1))})")
        for ft in range(0 if xonly else 2):
            A, B = vr(wf+4*ft,4), vr(XR+4*(g%40),4)
            if swapped: A, B = B, A
            c = "0" if g % 40 == 0 else vr(ACC+16*ft,16)
            a(f"v_mfma_f32_32x32x16_bf16 {vr(ACC+16*ft,16)}, {A}, {B}, {c}")
            for ln in FILL.get((g, ft), []): a.raw(ln)
        ds, pc = ((g + LA) >> 2) + DIST - 1, (g + LA) & 3
        for x in dma_sched(ds, pc): dma_piece(a, *x)
        for j in [j for j in range(4) if int(STORE_AT[j]) == g]:
            a(f"buffer_store_dwordx4 {vr(HOLD[j],4)}, v{EA+j}, {q4(SRD_WS)}, 0 offen sc1")
            VM.append("epi")

def set_fill(fn, g0, g1):
    t = Asm(); fn(t)
    lines = [l for l in t.lines if l.strip() and not l.strip().startswith(";")]
    slots = [(g, ft) for g in range(g0, g1) for ft in range(2)]
    per = -(-len(lines) // len(slots))
    for i, sl in enumerate(slots):
        FILL.setdefault(sl, []).extend(lines[i*per:(i+1)*per])

def set_block(fn, g):
    t = Asm(); fn(t)
    FILL.setdefault((g, 1), []).extend(t.lines)

def swap23(a, dst, src, tmp):
    a(f"""v_and_b32 v{dst}, 0x13, v{src}
v_bfe_u32 v{tmp}, v{src}, 2, 1
v_lshl_or_b32 v{dst}, v{tmp}, 3, v{dst}
v_bfe_u32 v{tmp}, v{src}, 3, 1
v_lshl_or_b32 v{dst}, v{tmp}, 2, v{dst}""")

AF, GT, PM, PL, IA, IB, D = 124, 160, 168, 180, 192, 204, 216
S_U, S_P, S_BLK = 51, 52, 53
def prep_addr(a):
    a(f"""
s_mul_i32 s57, s{S_P}, 1600
s_mul_i32 s55, s{S_W}, 10496
s_cmp_eq_u32 s{S_NT}, 15
s_cselect_b32 s55, s55, {TOP}
v_cmp_gt_u32 vcc, 36, v{VL}
v_mov_b32 v37, {OOB}
v_and_b32 v36, 15, v{VL}
v_cndmask_b32 v32, v37, v{L16}, vcc
v_cmp_gt_u32 vcc, 15, v36
v_mul_u32_u24 v38, 205, v36
v_lshrrev_b32 v38, 10, v38
v_mul_u32_u24 v38, 1200, v38
v_lshl_add_u32 v36, v36, 4, v38
v_lshrrev_b32 v38, 4, v{VL}
v_mul_u32_u24 v38, 3840, v38
v_add_u32 v36, v36, v38
v_cndmask_b32 v33, v37, v36, vcc
s_mul_i32 s58, s{S_BLK}, {32*3840}
s_mul_i32 s56, s{S_P}, 80
s_add_u32 s58, s58, s56
v_lshlrev_b32 v34, 4, v{VH}
s_lshl_b32 s59, s{S_BLK}, 6
""")
def prep_issue(a):
    a(f"""s_mov_b32 m0, s55
s_nop 0
buffer_load_dwordx4 v{L16}, {q4(SRD_PHI)}, s57 offen lds
buffer_load_dwordx4 v32, {q4(SRD_PHI)}, s57 offen offset:1024 lds""")
    for i in range(8):
        a(f"s_add_u32 m0, s55, {2048 + 1040*i}")
        a(f"s_add_u32 s58, s58, {4*3840}" if i else "s_nop 0")
        a(f"buffer_load_dwordx4 v33, {q4(SRD_WB)}, s58 offen lds")
    a(f"""buffer_load_dwordx4 {vr(GT,4)}, v34, {q4(SRD_GATE)}, s59 offen
buffer_load_dwordx4 {vr(GT+4,4)}, v34, {q4(SRD_GATE)}, s59 offen offset:32""")

def prep_compute(a, nyounger):
    a(f"""
v_bfe_u32 v36, v{VL}, 2, 2
v_lshl_add_u32 v36, v{VH}, 3, v36
v_and_b32 v37, 1, v{VL}
v_mul_u32_u24 v37, 20, v37
v_sub_u32 v38, v36, v37
v_bfe_u32 v39, v{VL}, 1, 1
v_bfe_u32 v1, v{VL}, 4, 1
v_lshl_add_u32 v39, v1, 1, v39
v_mul_u32_u24 v36, 40, v36
v_add_u32 v36, s55, v36
v_lshl_add_u32 v0, v39, 3, v36
v_cmp_eq_u32 s[58:59], 0, v39
s_add_u32 s57, s55, 1600
v_mov_b32 v37, s57
s_waitcnt vmcnt({nyounger + 10})
""")
    for u in range(3):
        for aa in range(2):
            k0 = 16*u + 4*aa
            a(f"""v_add_u32 v1, {k0}, v38
v_cmp_gt_u32 vcc, 20, v1
v_add_u32 v1, {k0*40}, v0
v_add_u32 v39, {k0*40 + 32}, v36
v_cndmask_b32 v1, v37, v1, vcc
s_and_b64 vcc, vcc, s[58:59]
ds_read_b64_tr_b16 {vr(PM+4*u+2*aa,2)}, v1
v_cndmask_b32 v39, v37, v39, vcc
ds_read_b64_tr_b16 {vr(PL+4*u+2*aa,2)}, v39""")
    a(f"""
v_and_b32 v0, 3, v{VN}
v_lshlrev_b32 v0, 4, v0
v_mov_b32 v36, 0x3f80
v_mov_b32 v37, 0
v_lshlrev_b64 v[36:37], v0, v[36:37]
v_bfe_u32 v0, v{VN}, 2, 1
v_mul_u32_u24 v0, 5, v0
v_lshrrev_b32 v1, 3, v{VN}
v_add_u32 v0, v0, v1
v_lshlrev_b32 v38, 1, v{VH}
v_sub_u32 v0, v0, v38
v_cmp_eq_u32 vcc, 0, v1
v_mov_b32 v38, 99
s_nop 0
v_cndmask_b32 v0, v0, v38, vcc
v_cmp_eq_u32 s[58:59], 3, v1
""")
    for u in range(3):
        for aa in range(2):
            kq = 4*u + aa
            a(f"""v_cmp_eq_u32 vcc, {kq+1}, v0
s_nop 1
v_cndmask_b32 v{IA+4*u+2*aa}, 0, v36, vcc
v_cndmask_b32 v{IA+4*u+2*aa+1}, 0, v37, vcc
v_cmp_eq_u32 vcc, {kq-2}, v0
s_nop 1
v_cndmask_b32 v{IB+4*u+2*aa}, 0, v36, vcc
v_cndmask_b32 v{IB+4*u+2*aa+1}, 0, v37, vcc""")
    a(f"""
s_mul_i32 s54, s{S_P}, {40*4096}
s_lshl_b32 s56, s{S_BLK}, 13
s_add_u32 s54, s54, s56
s_add_u32 s54, s54, {WBF}
s_add_u32 s56, s54, 4096
""")
    swap23(a, 36, VN, 38)
    a(f"""v_lshrrev_b32 v37, 2, v36
v_mul_u32_u24 v37, 1040, v37
v_and_b32 v36, 3, v36
v_lshl_add_u32 v36, v36, 8, v37
v_lshl_add_u32 v36, v{VH}, 4, v36
v_add_u32 v36, s55, v36
s_waitcnt vmcnt({nyounger})""")
    for seg in range(3):
        for u in range(3):
            a(f"ds_read_b128 {vr(AF+4*(3*seg+u),4)}, v36 offset:{2048 + 80*seg + 32*u}")
    a("s_waitcnt lgkmcnt(0)")

    plan = [[(0, PM)], [(0, PL), (2, IA)], [(1, PM)], [(1, PL), (2, IB)]]
    def mm(t):
        d = D + 16*(t & 1)
        first = True
        for seg, fr in plan[t]:
            for u in range(3):
                a(f"v_mfma_f32_32x32x16_bf16 {vr(d,16)}, {vr(AF+4*(3*seg+u),4)}, {vr(fr+4*u,4)}, {'0' if first else vr(d,16)}")
                first = False
    def fin(t):
        d = D + 16*(t & 1)
        for g in range(2):
            r = d + 8*g
            for e in range(4):
                a(f"v_cvt_pk_bf16_f32 v{r+e}, v{r+2*e}, v{r+2*e+1}")
            if t == 3:
                for e in range(4):
                    a(f"v_cndmask_b32 v{r+e}, v{r+e}, v{GT+4*g+e}, s[58:59]")
        a(f"""buffer_store_dwordx4 {vr(d,4)}, v{L16}, {q4(SRD_WS)}, s54 offen offset:{t*1024} sc1
buffer_store_dwordx4 {vr(d+8,4)}, v{L16}, {q4(SRD_WS)}, s56 offen offset:{t*1024} sc1""")
    mm(0); mm(1); a("s_waitcnt vmcnt(0)\ns_nop 6"); fin(0); a("s_nop 1"); mm(2); fin(1); a("s_nop 1"); mm(3); fin(2); a("s_nop 3"); fin(3)
    lb = a.newlabel("nz")
    a(f"""
s_cmp_lg_u32 s{S_BLK}, 0
s_cbranch_scc1 {lb}
s_lshl_b32 s54, s{S_P}, 13
s_add_u32 s54, s54, {KVACC}
s_add_u32 s56, s54, 4096
v_mov_b32 v{AF}, 0
v_mov_b32 v{AF+1}, 0
v_mov_b32 v{AF+2}, 0
v_mov_b32 v{AF+3}, 0
""")
    for i in range(4):
        a(f"""buffer_store_dwordx4 {vr(AF,4)}, v{L16}, {q4(SRD_WS)}, s54 offen offset:{i*1024} sc1
buffer_store_dwordx4 {vr(AF,4)}, v{L16}, {q4(SRD_WS)}, s56 offen offset:{i*1024} sc1""")
    a.label(lb)

def phi(a, u, dst, EP, T):
    mx, mn, sp, sn = T, T+1, T+2, T+4
    a(f"v_max3_f32 v{mx}, v{u}, v{u+1}, v{u+2}\nv_min3_f32 v{mn}, v{u}, v{u+1}, v{u+2}")
    for e in range(3, 19, 2):
        a(f"v_max3_f32 v{mx}, v{u+e}, v{u+e+1}, v{mx}\nv_min3_f32 v{mn}, v{u+e}, v{u+e+1}, v{mn}")
    a(f"v_max_f32 v{mx}, v{u+19}, v{mx}\nv_min_f32 v{mn}, v{u+19}, v{mn}")
    a(f"s_mov_b32 s54, {f32hex(LOG2E)}\nv_pk_mul_f32 {vr(mx,2)}, {vr(mx,2)}, s[54:55] op_sel_hi:[1,0]")
    for e in range(0, 20, 2):
        a(f"v_pk_fma_f32 {vr(EP+e,2)}, {vr(u+e,2)}, s[54:55], {vr(mx,2)} op_sel:[0,0,1] op_sel_hi:[1,0,1] neg_lo:[1,0,0] neg_hi:[1,0,0]")
        a(f"v_pk_fma_f32 {vr(u+e,2)}, {vr(u+e,2)}, s[54:55], {vr(mx,2)} op_sel:[0,0,0] op_sel_hi:[1,0,0] neg_lo:[0,0,1] neg_hi:[0,0,1]")
    for e in range(20):
        a(f"v_exp_f32 v{EP+e}, v{EP+e}\nv_exp_f32 v{u+e}, v{u+e}")
    a(f"v_pk_add_f32 {vr(sp,2)}, {vr(u,2)}, {vr(u+2,2)}\nv_pk_add_f32 {vr(sn,2)}, {vr(EP,2)}, {vr(EP+2,2)}")
    for e in range(4, 20, 2):
        a(f"v_pk_add_f32 {vr(sp,2)}, {vr(sp,2)}, {vr(u+e,2)}\nv_pk_add_f32 {vr(sn,2)}, {vr(sn,2)}, {vr(EP+e,2)}")
    a(f"""v_add_f32 v{sp}, v{sp}, v{sp+1}
v_add_f32 v{sp+1}, v{sn}, v{sn+1}
v_rcp_f32 v{sp}, v{sp}
v_rcp_f32 v{sp+1}, v{sp+1}
s_nop 0""")
    for e in range(0, 20, 2):
        a(f"v_pk_mul_f32 {vr(u+e,2)}, {vr(u+e,2)}, {vr(sp,2)} op_sel:[0,0] op_sel_hi:[1,0]")
        a(f"v_pk_mul_f32 {vr(EP+e,2)}, {vr(EP+e,2)}, {vr(sp,2)} op_sel:[0,1] op_sel_hi:[1,1]")
    for e in range(10):
        a(f"v_cvt_pk_bf16_f32 v{dst+e}, v{u+2*e}, v{u+2*e+1}\nv_cvt_pk_bf16_f32 v{dst+10+e}, v{EP+2*e}, v{EP+2*e+1}")

def gen_p12(a, p2hooks):
    a(f"""
s_mov_b32 s{S_P}, s{S_NT}
s_mov_b32 s{S_BLK}, s{S_MT}
s_cmp_eq_u32 s{S_W}, 0
s_cselect_b32 s{S_PREP}, 1, 0
s_cbranch_scc1 L_p_sel
s_cmp_lg_u32 s{S_NT}, 15
s_cbranch_scc1 L_p_sel
s_and_b32 s{S_P}, s{S_MT}, 3
s_lshl_b32 s{S_P}, s{S_P}, 2
s_add_u32 s{S_P}, s{S_P}, s{S_W}
s_sub_u32 s{S_P}, s{S_P}, 1
s_lshr_b32 s{S_BLK}, s{S_MT}, 2
s_add_u32 s{S_BLK}, s{S_BLK}, 16
s_cmp_lt_u32 s{S_W}, 5
s_cselect_b32 s{S_PREP}, 1, 0
L_p_sel:
""")
    VM.clear()
    E = os.environ.get
    def do_prep(fn):
        lb = a.newlabel("pp")
        a(f"s_cmp_eq_u32 s{S_PREP}, 0\ns_cbranch_scc1 {lb}")
        fn(a)
        a.label(lb)
    do_prep(prep_addr)
    ROT = E("ROT", "sched")
    if ROT == "sched": seqs = eval(E("SEQS", "[[0,4,1,2,3,8,5,6,7,9],[1,0,5,2,3,4,9,6,7,8],[2,3,0,6,1,4,5,7,8,9],[3,2,0,1,7,4,5,6,8,9]]"))
    else: seqs = [[(o + i) % 10 for i in range(10)] for o in (0, 3, 5, 8)]
    pk = lambda q: sum(v << (4*i) for i, v in enumerate(q))
    a(f"s_lshr_b32 s54, s{S_J}, 3\ns_add_u32 s54, s54, s{S_J}\ns_and_b32 s54, s54, 3")
    for c in range(4):
        assert sorted(seqs[c]) == list(range(10))
        op = "s_mov_b32" if c == 0 else "s_cmov_b32"
        if c: a(f"s_cmp_eq_u32 s54, {c}")
        a(f"{op} s{S_SEQ}, {hex(pk(seqs[c]) & 0xffffffff)}\n{op} s{S_SEQ+1}, {hex(pk(seqs[c]) >> 32)}")
    a(f"s_mov_b64 s[{S_SEQ+2}:{S_SEQ+3}], s[{S_SEQ}:{S_SEQ+1}]\ns_and_b32 s{S_KR}, s{S_SEQ}, 15")
    a(f"""
v_lshrrev_b32 v36, 3, v{VL}
s_lshl_b32 s54, s{S_MT}, 7
s_lshl_b32 s56, s{S_W}, 4
s_add_u32 s54, s54, s56
v_add_u32 v36, s54, v36
v_mul_u32_u24 v36, 1280, v36
v_lshrrev_b32 v37, 4, v{VL}
v_and_b32 v38, 7, v{VL}
v_xor_b32 v38, v38, v37
v_lshlrev_b32 v38, 4, v38
v_add_u32 v{XG0}, v36, v38
v_xor_b32 v38, 64, v38
v_add_u32 v{XG1}, v36, v38
v_add_u32 v{XG1}, {8*1280}, v{XG1}
s_lshl_b32 s54, s{S_W}, 3
v_add_u32 v36, s54, v37
v_mul_u32_u24 v36, 3840, v36
v_and_b32 v38, 15, v{VL}
v_lshlrev_b32 v37, 2, v37
v_xor_b32 v38, v38, v37
v_lshlrev_b32 v38, 4, v38
v_add_u32 v36, v36, v38
s_lshl_b32 s54, s{S_NT}, 8
v_add_u32 v{WG}, s54, v36
s_lshl_b32 s{S_LB}, s{S_W}, 11
s_mul_i32 s{S_WBB}, s{S_NT}, {40*4096}
s_add_u32 s{S_WBB}, s{S_WBB}, s{S_LB}
s_add_u32 s{S_WBB}, s{S_WBB}, {WBF}
""")
    a("s_waitcnt lgkmcnt(0)")
    pstamp(a, 1)
    nonce_publish(a)
    do_prep(prep_issue)
    a(f"s_cmp_eq_u32 s{S_NT}, 15\ns_cbranch_scc1 L_p_nodma")
    dma(a, 0)
    pstamp(a, 2)
    a.label("L_p_nodma")
    a(f"""
s_lshl_b32 s54, s{S_TT}, 12
v_lshlrev_b32 v36, 7, v{VN}
v_add_u32 v36, s54, v36
v_bfe_u32 v37, v{VN}, 1, 3
v_xor_b32 v37, v37, v{VH}
""")
    for ks in range(4):
        a(f"""v_xor_b32 v38, {2*ks}, v37
v_lshl_add_u32 v{XA+ks}, v38, 4, v36
v_add_u32 v{XA+4+ks}, 0x10000, v{XA+ks}""")
    a(f"""
v_bfe_u32 v36, v{VL}, 2, 2
v_lshl_add_u32 v37, v{VH}, 3, v36
v_lshlrev_b32 v37, 8, v37
v_add_u32 v37, 16384, v37
v_and_b32 v38, 1, v{VL}
v_bfe_u32 v1, v{VL}, 1, 1
s_cmp_ge_u32 s{S_NT}, 10
s_cselect_b64 vcc, -1, 0
v_cndmask_b32 v0, v1, v38, vcc
v_cndmask_b32 v1, v38, v1, vcc
v_lshl_add_u32 v37, v0, 3, v37
v_bfe_u32 v38, v{VL}, 4, 1
v_lshl_add_u32 v38, v38, 1, v1
s_lshl_b32 s54, s{S_FH}, 3
v_add_u32 v38, s54, v38
v_lshlrev_b32 v36, 2, v36
v_xor_b32 v38, v38, v36
v_lshl_add_u32 v{WA}, v38, 4, v37
v_xor_b32 v38, 4, v38
v_lshl_add_u32 v{WA+1}, v38, 4, v37
v_add_u32 v{WA+2}, 0x10000, v{WA}
v_add_u32 v{WA+3}, 0x10000, v{WA+1}
s_lshl_b32 s54, s{S_FH}, 11
s_add_u32 s54, s54, 65536
v_add_u32 v{WB}, s54, v{L16}
v_add_u32 v{WB+1}, 0x10000, v{WB}
s_lshl_b32 s{S_T}, s{S_MT}, 2
s_add_u32 s{S_T}, s{S_T}, s{S_TT}
""")
    a(f"s_cmp_eq_u32 s{S_NT}, 15\ns_cbranch_scc1 L_p1_x")
    do_prep(lambda a: prep_compute(a, 4))
    pstamp(a, 3)
    VM0 = list(VM)
    a(f"""
s_cmp_ge_u32 s{S_NT}, 10
s_cbranch_scc1 L_p1_v
""")
    def h_pub():
        lb = a.newlabel("pa")
        a(f"s_cmp_eq_u32 s{S_PREP}, 0\ns_cbranch_scc1 {lb}")
        a(f"s_waitcnt vmcnt({vm_after('nonce', True)})\nv_readfirstlane_b32 s{S_NONCE}, v35")
        wb_flag_set(a)
        a.label(lb)
    def h_wb_issue():
        lb = a.newlabel("pw")
        a(f"""s_cmp_lg_u32 s{S_W}, 7
s_cbranch_scc1 {lb}
s_lshl_b32 s60, s{S_NT}, 9
s_add_u32 s60, s60, {FL_WB}
v_min_u32 v0, 19, v{VL}
v_lshlrev_b32 v0, 4, v0
buffer_load_dword v34, v0, {q4(SRD_WS)}, s60 offen sc0 sc1""")
        a.label(lb)
    def h_wb_check():
        lb = a.newlabel("pw")
        a(f"""s_cmp_lg_u32 s{S_W}, 7
s_cbranch_scc1 {lb}
v_cmp_ne_u32 vcc, s{S_NONCE}, v34
s_cmp_eq_u32 s{S_NONCE}, 0
s_cselect_b32 s60, 1, 0
s_nop 2
s_or_b32 s60, s60, vcc_lo
s_or_b32 s60, s60, vcc_hi
s_cbranch_scc0 {lb}""")
        wb_flag_wait(a)
        a.label(lb)
    PREBAR[8] = h_wb_check
    hooks1 = {1: h_pub, 2: lambda: a(f"v_readfirstlane_b32 s60, v35\ns_max_u32 s{S_NONCE}, s{S_NONCE}, s60"), 3: lambda: stamp(a, 2), 6: h_wb_issue, 9: lambda: stamp(a, 3)}
    def p1(swapped):
        VM[:] = VM0
        pstamp(a, 4)
        for half in range(2):
            lb = a.newlabel("pc")
            a(f"s_cmp_lg_u32 s{S_PREP}, 0\ns_cbranch_scc1 {lb}\ns_waitcnt vmcnt(2)")
            a.label(lb)
            dma_piece(a, 1, 2*half); dma_piece(a, 1, 2*half + 1)
            pstamp(a, 5 + half)
        a(f"v_mov_b32 v0, 0\nbuffer_load_dword v35, v0, {q4(SRD_DBG)}, 0 offen sc0 sc1\ns_barrier")
        VM.append("nonce")
        stamp(a, 1)
        for i in range(LA): reads(a, i, swapped == 'x')
        steps(a, 0, 40, swapped, hooks1)
    a(f"""
s_cmp_ge_u32 s{S_NT}, 5
s_cselect_b32 s54, 5, 0
s_sub_u32 s54, s{S_NT}, s54
s_lshl_b32 s54, s54, 4
s_lshl_b32 s56, s{S_FH}, 3
s_add_u32 s54, s54, s56
s_cmp_ge_u32 s{S_NT}, 5
s_mov_b32 s56, {64*1280}
s_cselect_b32 s58, {64*2560}, s56
s_mov_b32 s56, 1280
s_cselect_b32 s59, 2560, s56
s_mov_b32 s56, {QIMG}
s_cselect_b32 s63, {KVIMG}, s56
s_mov_b32 s56, {f32hex(QSCALE)}
s_cselect_b32 s64, 1.0, s56
s_mul_i32 s59, s59, s{S_T}
s_add_u32 s63, s63, s59
s_lshl_b32 s59, s58, 1
s_sub_u32 s65, s58, 1536
""")
    a(f"""
v_mov_b32 v36, v{VN}
v_add_u32 v38, s54, v{VH}
v_bfe_u32 v0, v{VN}, 2, 1
v_mul_u32_u24 v1, 3, v0
v_xor_b32 v1, v1, v{VN}
v_and_b32 v1, 3, v1
v_lshlrev_b32 v1, 4, v1
v_lshrrev_b32 v39, 3, v{VN}
v_lshl_add_u32 v39, v39, 6, v1
v_mul_lo_u32 v0, v0, s58
v_add_u32 v39, v39, v0
v_add_u32 v39, 1024, v39
""")
    for j in range(4):
        a(f"""v_add_u32 v0, {2*j}, v38
v_mul_u32_u24 v1, 205, v0
v_lshrrev_b32 v1, 10, v1
v_mul_u32_u24 v37, 5, v1
v_sub_u32 v0, v0, v37
v_mul_lo_u32 v1, v1, s59
v_add_u32 v1, s63, v1
v_cmp_lt_u32 vcc, 2, v0
v_lshl_add_u32 v37, v0, 9, v1
v_lshl_add_u32 v37, v36, 4, v37
v_add_u32 v{EA+j}, s65, v37
v_cndmask_b32 v37, v37, v{EA+j}, vcc
v_cmp_eq_u32 s[{SPM[j]}:{SPM[j]+1}], 2, v0
v_add_u32 v1, v1, v39
s_nop 0
v_cndmask_b32 v{EA+j}, v37, v1, s[{SPM[j]}:{SPM[j]+1}]""")
    p1(False)
    a("s_nop 7\ns_nop 3")
    for j in range(4):
        r = ACC + 8*j
        for e in range(0, 8, 2):
            a(f"v_pk_mul_f32 {vr(r+e,2)}, {vr(r+e,2)}, s[64:65] op_sel_hi:[1,0]")
        for e in range(4):
            a(f"v_cvt_pk_bf16_f32 v{HOLD[j]+e}, v{r+2*e}, v{r+2*e+1}")
    for j in range(4):
        h = HOLD[j]
        lb = a.newlabel("sp")
        a(f"""s_cmp_eq_u64 s[{SPM[j]}:{SPM[j]+1}], 0
s_cbranch_scc1 {lb}
s_mov_b64 exec, s[{SPM[j]}:{SPM[j]+1}]
v_mov_b64 v[0:1], {vr(h+2,2)}
v_mov_b32_dpp v{h+2}, v{h} row_half_mirror row_mask:0xf bank_mask:0x5
v_mov_b32_dpp v{h+3}, v{h+1} row_half_mirror row_mask:0xf bank_mask:0x5
v_mov_b32_dpp v{h}, v0 row_half_mirror row_mask:0xf bank_mask:0xa
v_mov_b32_dpp v{h+1}, v1 row_half_mirror row_mask:0xf bank_mask:0xa
s_mov_b64 exec, -1""")
        a.label(lb)
    a("s_branch L_p2")
    a.label("L_p1_x")
    a(f"s_cmp_eq_u32 s{S_PREP}, 0\ns_cbranch_scc1 L_x_ld")
    prep_compute(a, 0)
    a("s_barrier\ns_waitcnt vmcnt(0)")
    wb_flag_set(a)
    stamp(a, 6)
    a(f"""s_branch L_x_sync
L_x_ld:
s_barrier
s_sub_u32 s54, s{S_W}, 5
s_mul_i32 s54, s54, 3
s_sub_u32 s55, s54, s{S_W}
s_mul_i32 s55, s55, {16*1280}
v_add_u32 v36, s55, v{XG0}
v_add_u32 v37, s55, v{XG1}
s_lshl_b32 s54, s54, 11
s_mov_b32 s55, 0
L_x_loop:""")
    for i in range(3):
        if i == 2: a(f"s_cmp_eq_u32 s{S_W}, 7\ns_cbranch_scc1 L_x_next")
        a(f"""s_add_u32 m0, s54, {2048*i}
s_add_u32 s56, s55, {16*1280*i}
buffer_load_dwordx4 v36, {q4(SRD_X)}, s56 offen lds
s_add_u32 m0, s54, {2048*i + 1024}
s_nop 0
buffer_load_dwordx4 v37, {q4(SRD_X)}, s56 offen lds""")
    a(f"""L_x_next:
s_add_u32 s54, s54, 16384
s_add_u32 s55, s55, 128
s_cmp_lt_u32 s55, 1024
s_cbranch_scc1 L_x_loop
L_x_sync:
s_waitcnt vmcnt(0)
s_barrier""")
    stamp(a, 1)
    for st in (8, 9):
        for i in range(2):
            a(f"""s_add_u32 m0, s{S_LB}, {TOP + (st-8)*16384 + 1024*i}
s_movk_i32 s{S_XO}, {st*128}
buffer_load_dwordx4 v{XG0+i}, {q4(SRD_X)}, s{S_XO} offen lds""")
    for g in range(32):
        a(f"ds_read_b128 {vr(XR+4*g,4)}, v{XA+4*(g>>4)+(g&3)} offset:{((g>>2)&3)*16384}")
    for ks in range(4):
        a(f"v_add_u32 v{XA+ks}, 0x20000, v{XA+ks}")
    nonce_get(a)
    lb = a.newlabel("xw")
    a(f"s_cmp_lg_u32 s{S_W}, 7\ns_cbranch_scc1 {lb}")
    wb_flag_wait(a)
    a.label(lb)
    a("s_waitcnt vmcnt(0) lgkmcnt(0)\ns_barrier")
    stamp(a, 2)
    for g in range(32, 40):
        a(f"ds_read_b128 {vr(XR+4*g,4)}, v{XA+(g&3)} offset:{((g>>2)&1)*16384}")
    a(f"s_mov_b32 s{S_KR}, 2\ns_mov_b32 s{S_SEQ}, 0x76105432\ns_mov_b32 s{S_SEQ+1}, 0x98")
    for st in range(12, 16):
        for i in range(2): dma_piece(a, st, i)
    a("s_waitcnt lgkmcnt(0)\ns_barrier")
    for st in range(10, 12):
        for i in range(2): dma_piece(a, st, i)
    for i in range(4):
        a(f"v_mov_b32 v{EA+i}, {OOB}")
    a("s_waitcnt vmcnt(0)\ns_barrier")
    stamp(a, 3)
    reads(a, 40); reads(a, 41)
    a("s_branch L_p2")
    a.label("L_p1_v")
    a(f"""
s_sub_u32 s54, s{S_NT}, 10
s_lshl_b32 s54, s54, 7
s_lshl_b32 s56, s{S_FH}, 6
s_add_u32 s54, s54, s56
s_mul_i32 s63, s{S_T}, 2560
s_add_u32 s63, s63, {KVIMG + 1280}
s_mov_b32 s58, {64*2560}
v_mul_u32_u24 v36, 320, v{VH}
v_add_u32 v36, s63, v36
v_add_u32 v38, s54, v{VN}
""")
    for ft in range(2):
        a(f"""v_add_u32 v0, {32*ft}, v38
v_mul_u32_u24 v1, 3277, v0
v_lshrrev_b32 v1, 16, v1
v_mul_u32_u24 v37, 20, v1
v_sub_u32 v0, v0, v37
v_mul_lo_u32 v1, v1, s58
v_lshl_add_u32 v1, v0, 4, v1
v_add_u32 v{EA+2*ft}, v1, v36
v_add_u32 v{EA+2*ft+1}, 640, v{EA+2*ft}""")
    p1(True)
    a("s_nop 7\ns_nop 7")
    for j in range(4):
        for e in range(4):
            a(f"v_cvt_pk_bf16_f32 v{HOLD[j]+e}, v{ACC+8*j+2*e}, v{ACC+8*j+2*e+1}")
    a.label("L_p2")
    a(f"v_add_u32 v{WBR[0]}, 0xffff0000, v{WB}")
    def h_qkv():
        lb = a.newlabel("qa")
        a(f"s_cmp_lg_u32 s{S_W}, 7\ns_cbranch_scc1 {lb}")
        a(f"s_lshl_b32 s60, s{S_NT}, 4\ns_add_u32 s60, s60, s{S_MT}\ns_lshl_b32 s60, s60, 4\ns_add_u32 s60, s60, {FL_QKV}")
        flag_set(a, "s60")
        a.label(lb)
    stamp(a, 4)
    hooks2 = dict(p2hooks)
    hooks2[QST] = h_qkv
    steps(a, 40, 80, False, hooks2)
    stamp(a, 5)

T0, T1, T2, T3, T4, T5, T6, T7 = 194, 195, 196, 197, 198, 199, 216, 217
S_KVA = 79
def b_addr(a):
    a(f"""
s_lshl_b32 s54, s{S_TT}, 5
v_add_u32 v{T0}, s54, v{VN}
v_mul_u32_u24 v{T0}, {BROW}, v{T0}
v_add_u32 v{T0}, {STG}, v{T0}
v_mul_u32_u24 v{T2}, 48, v{VH}
v_add_u32 v{T2}, v{T2}, v{T0}
v_mul_u32_u24 v{T1}, 80, v{VH}
v_add_u32 v{T1}, v{T1}, v{T0}
s_and_b32 s57, s{S_W}, 1
s_bfe_u32 s58, s{S_W}, 0x10001
v_bfe_u32 v6, v{VL}, 2, 2
v_lshl_add_u32 v6, v{VH}, 3, v6
v_mul_u32_u24 v6, {BROW}, v6
v_bfe_u32 v7, v{VL}, 4, 1
v_lshl_add_u32 v6, v7, 5, v6
v_and_b32 v7, 3, v{VL}
v_lshl_add_u32 v6, v7, 3, v6
s_mul_i32 s54, s57, 48
s_add_u32 s54, s54, {160 + STG}
v_add_u32 v{T3}, s54, v6
s_mul_i32 s54, s57, 80
s_lshl_b32 s56, s58, 6
s_add_u32 s54, s54, s56
s_add_u32 s54, s54, {STG}
v_add_u32 v{T4}, s54, v6
s_lshl_b32 s{S_KVA}, s{S_NT}, 1
s_add_u32 s{S_KVA}, s{S_KVA}, s57
s_lshl_b32 s{S_KVA}, s{S_KVA}, 12
s_add_u32 s{S_KVA}, s{S_KVA}, {KVACC}
s_lshl_b32 s56, s58, 5
v_add_u32 v6, s56, v{VN}
v_cmp_gt_u32 vcc, 40, v6
v_lshlrev_b32 v6, 2, v6
v_mul_u32_u24 v7, 640, v{VH}
v_add_u32 v6, v6, v7
v_mov_b32 v7, {OOB}
v_cndmask_b32 v{T5}, v7, v6, vcc
v_cmp_gt_u32 vcc, 32, v{VL}
s_nop 1
v_cndmask_b32 v{T6}, v7, v{T5}, vcc
""")

def b_stage(a):
    for e in range(6):
        a(f"v_cvt_pk_bf16_f32 v{168+e}, v{ACC+20+2*e}, v{ACC+21+2*e}")
    a(f"""
s_cmp_eq_u32 s{S_FH}, 0
s_cbranch_scc0 L_b_k
ds_write_b128 v{T2}, v[168:171] offset:160
ds_write_b64 v{T2}, v[172:173] offset:176
v_mov_b64 {vr(PHQ_R+20,2)}, 0
v_mov_b64 {vr(PHQ_R+22,2)}, 0
""")
    for g in range(3):
        for e in range(4):
            a(f"v_permlane32_swap_b32 v{PHQ_R+8*g+e}, v{PHQ_R+8*g+4+e}")
    a(f"""
s_branch L_b_staged
L_b_k:
v_mul_f32 v{ACC+28}, {f32hex(-LOG2E)}, v{ACC+28}
v_exp_f32 v{ACC+28}, v{ACC+28}
v_mov_b32 v172, 0x3f80
v_add_f32 v{ACC+28}, 1.0, v{ACC+28}
v_rcp_f32 v174, v{ACC+28}
v_mov_b32 v173, 0
ds_write_b64 v{T2}, v[168:169] offset:184
ds_write_b128 v{T2}, v[170:173] offset:192
v_sub_f32 v175, 1.0, v174
""")
    for i in range(5):
        a(f"ds_write_b128 v{T1}, {vr(PHQ_R+4*i,4)} offset:{16*i}")
    a(f"""
ds_write_b32 v{T0}, v175 offset:256
s_cmp_lg_u32 s{S_NT}, 0
s_cbranch_scc1 L_b_staged
s_lshl_b32 s54, s{S_T}, 7
s_add_u32 s54, s54, {GATE}
v_lshlrev_b32 v0, 2, v{VN}
buffer_store_dword v174, v0, {q4(SRD_WS)}, s54 offen sc1
L_b_staged:
""")

def b_kv(a):
    a(f"""
s_cmp_eq_u32 s{S_FH}, 0
s_cbranch_scc0 L_b_k2
ds_read_b32 v{OMG}, v{T0} offset:256
s_branch L_b_done
L_b_k2:
""")
    KD, FR = 200, 168
    def kvreads(ks):
        b = FR + 8*(ks % 3)
        for aa in range(2):
            a(f"ds_read_b64_tr_b16 {vr(b+2*aa,2)}, v{T3} offset:{(16*ks+4*aa)*BROW}")
            a(f"ds_read_b64_tr_b16 {vr(b+4+2*aa,2)}, v{T4} offset:{(16*ks+4*aa)*BROW}")
    kvreads(0); kvreads(1)
    for ks in range(8):
        b = FR + 8*(ks % 3)
        if ks + 2 < 8: kvreads(ks + 2)
        a(f"s_waitcnt lgkmcnt({4*min(2, 7-ks)})")
        a(f"v_mfma_f32_32x32x16_bf16 {vr(KD,16)}, {vr(b,4)}, {vr(b+4,4)}, {'0' if ks == 0 else vr(KD,16)}")
    a.label("L_b_done")
def b_atomics(a):
    for r in range(12):
        ad = T6 if r > 8 else T5
        a(f"buffer_atomic_add_f32 v{200+r}, v{ad}, {q4(SRD_WS)}, s{S_KVA} offen offset:{(8*(r//4) + r%4)*160}")
```

```python
from asmlib import *
from layout import *
import f1
from f1 import VL, L16, VN, VH, PHQ_R, OMG, swap23, flag_set, flag_wait, flag_wait2, flag_peek, flag_check, nonce_get, S_T, VM, vm_after
SLOT = 10304
RST = eval(os.environ.get('RST', '{}'))
stamp2 = stamp
if RST:
    def stamp(a, i): pass
HALF = 6 * SLOT
FLG = 159232
import f3
S = [16, 32, 48, 64]; O = [80, 96]
Q1 = [112, 116]; Q2 = [120, 122]
K1 = [124, 128]; K2 = [132, 134]
V = [[136, 140], [144, 148]]
VA = 152; KA1 = 160; KA2 = 161; IDX = 162; DG = 163; K16 = 164; K8 = 165; MX = [166, 167]
QA8, OA4, OA2, ROWM = 12, 13, 14, 15
ONEA = f1.T7
RAW = 168
S_HEAD, S_QT, S_MODE, S_WIN, S_M0, S_KVB = 66, 67, 68, 69, 70, 71
S_QP, S_KH = S_TT, S_FH

def kv_dma(a, pos):
    a(f"""s_add_u32 m0, s{S_M0}, {pos*2*SLOT}
s_add_u32 s54, s{S_WIN}, 4096
buffer_load_dwordx4 v{DG}, {q4(SRD_WS)}, s{S_WIN} offen lds
buffer_load_dwordx4 v{DG}, {q4(SRD_WS)}, s{S_WIN} offen offset:1024 lds
buffer_load_dwordx4 v{DG}, {q4(SRD_WS)}, s{S_WIN} offen offset:2048 lds
buffer_load_dwordx4 v{DG}, {q4(SRD_WS)}, s{S_WIN} offen offset:3072 lds
s_add_u32 m0, s{S_M0}, {pos*2*SLOT + 4096}
s_add_u32 s{S_WIN}, s{S_WIN}, 20480
buffer_load_dwordx4 v{DG}, {q4(SRD_WS)}, s54 offen lds""")
    VM.extend([("kv", pos)] * 5)

def attn_scalars(a):
    a(f"""
s_lshr_b32 s54, s{S_J}, 3
s_lshl_b32 s{S_HEAD}, s{S_XCD}, 2
s_add_u32 s{S_HEAD}, s{S_HEAD}, s54
s_and_b32 s54, s{S_J}, 7
s_lshl_b32 s54, s54, 3
s_lshl_b32 s{S_QT}, s{S_QP}, 1
s_add_u32 s{S_QT}, s{S_QT}, s54
s_mul_i32 s{S_KVB}, s{S_HEAD}, {64*2560}
s_add_u32 s{S_KVB}, s{S_KVB}, {KVIMG}
s_mul_i32 s54, s{S_QP}, 5120
s_lshr_b32 s{S_M0}, s{S_QP}, 1
s_mul_i32 s{S_M0}, s{S_M0}, {SLOT - 10240}
s_add_u32 s{S_M0}, s{S_M0}, s54
s_mul_i32 s54, s{S_KH}, {HALF}
s_add_u32 s{S_M0}, s{S_M0}, s54
s_mov_b32 s{S_MODE}, 0
""")

S_QF = 78
QGO = 163832
def qkv_addr(a):
    a(f"""s_mul_i32 s54, s{S_HEAD}, 20
s_lshr_b32 s55, s54, 7
s_add_u32 s54, s54, 19
s_lshr_b32 s54, s54, 7
s_sub_u32 s54, s54, s55
s_lshl_b32 s54, s54, 8
s_lshl_b32 s{S_QF}, s55, 8
s_add_u32 s{S_QF}, s{S_QF}, {FL_QKV}
v_min_u32 v6, 47, v{VL}
v_lshrrev_b32 v38, 4, v6
v_mul_u32_u24 v38, 1280, v38
v_bfe_u32 v7, v6, 3, 1
v_mul_u32_u24 v7, s54, v7
v_and_b32 v6, 7, v6
v_lshlrev_b32 v6, 4, v6
v_add3_u32 v38, v38, v7, v6
v_mov_b32 v39, {QGO}
v_mov_b32 v6, 0
ds_write_b32 v39, v6""")
def qkv_peek(a):
    a(f"""s_cmp_lg_u32 s{S_W}, 0
s_cbranch_scc1 L_pk1
buffer_load_dword v36, v38, {q4(SRD_WS)}, s{S_QF} offen sc0 sc1
buffer_load_dword v37, v38, {q4(SRD_WS)}, s{S_QF} offen offset:128 sc0 sc1
L_pk1:""")
def qkv_peek2(a):
    a(f"""s_mov_b32 s61, 1
s_cmp_lg_u32 s{S_W}, 0
s_cbranch_scc1 L_pk2
s_waitcnt vmcnt(0)
v_xor_b32 v36, s{S_NONCE}, v36
v_xor_b32 v37, s{S_NONCE}, v37
v_or_b32 v36, v36, v37
v_cmp_ne_u32 s[60:61], 0, v36
v_mov_b32 v36, s{S_NONCE}
s_nop 3
s_or_b32 s61, s60, s61
s_cselect_b32 s61, 0, 1
s_cbranch_scc1 L_pk2
ds_write_b32 v39, v36
L_pk2:""")

def attn_issue(a, first):
    if first:
        a(f"""
s_mul_i32 s54, s{S_QT}, 1280
s_mul_i32 s55, s{S_HEAD}, {64*1280}
s_add_u32 s54, s54, s55
s_add_u32 s54, s54, {QIMG}
buffer_load_dwordx4 {vr(Q1[0],4)}, v{L16}, {q4(SRD_WS)}, s54 offen
buffer_load_dword v{Q2[0]}, v{QA8}, {q4(SRD_WS)}, s54 offen offset:1024
buffer_load_dwordx4 {vr(Q1[1],4)}, v{L16}, {q4(SRD_WS)}, s54 offen offset:1280
buffer_load_dword v{Q2[1]}, v{QA8}, {q4(SRD_WS)}, s54 offen offset:2304
""")
        VM.extend(["qk"] * 4)
    a(f"""
s_mul_i32 s{S_WIN}, s{S_KH}, {32*2560}
s_add_u32 s{S_WIN}, s{S_WIN}, s{S_KVB}
buffer_load_dwordx4 {vr(K1[0],4)}, v{K16}, {q4(SRD_WS)}, s{S_KVB} offen
buffer_load_dword v{K2[0]}, v{K8}, {q4(SRD_WS)}, s{S_KVB} offen offset:1024
buffer_load_dwordx4 {vr(K1[1],4)}, v{K16}, {q4(SRD_WS)}, s{S_WIN} offen
buffer_load_dword v{K2[1]}, v{K8}, {q4(SRD_WS)}, s{S_WIN} offen offset:1024
s_add_u32 s{S_WIN}, s{S_WIN}, 1280
""")
    VM.extend(["qk"] * 4)
    kv_dma(a, 0)

def out_store(a, o, scale, head_s, tile_s, base):
    a(f"v_mov_b32 v{scale+1}, v{scale}")
    for i in range(0, 12, 2):
        a(f"v_pk_mul_f32 {vr(o+i,2)}, {vr(o+i,2)}, {vr(scale,2)}")
    for i in range(6):
        a(f"v_cvt_pk_bf16_f32 v{o+i}, v{o+2*i}, v{o+2*i+1}")
    a(f"""
s_mul_i32 s54, {tile_s}, 40960
s_add_u32 s54, s54, {base}
s_lshl_b32 s56, {head_s}, 9
s_add_u32 s56, s56, s54
s_lshl_b32 s57, {head_s}, 7
s_add_u32 s57, s57, s54
buffer_store_dwordx4 {vr(o,4)}, v{OA4}, {q4(SRD_WS)}, s56 offen sc1
buffer_store_dwordx2 {vr(o+4,2)}, v{OA2}, {q4(SRD_WS)}, s57 offen sc1
""")

PKR = 10
KV_AD = f"s_lshl_b32 s60, s{S_NT}, 10\ns_add_u32 s60, s60, {FL_KV}"
def p4_issue(a):
    a("s_waitcnt vmcnt(0)")
    flag_check(a, KV_AD, 64, PKR)
    a(f"""
s_lshl_b32 s54, s{S_NT}, 13
s_add_u32 s54, s54, {KVACC}
s_add_u32 s55, s54, 4096
v_mov_b32 v8, {OOB}
""")
    a(f"""v_cmp_ge_u32 vcc, 20, v{ROWM}
v_mul_u32_u24 v6, 160, v{ROWM}
v_lshl_add_u32 v6, v{VH}, 5, v6
v_cndmask_b32 v6, v8, v6, vcc
v_cmp_gt_u32 vcc, 32, v{VL}
s_nop 1
v_cndmask_b32 v7, v8, v6, vcc""")
    for hh in range(2):
        for u in range(3):
            for hf in range(2):
                a(f"buffer_load_dwordx4 {vr(RAW+24*hh+8*u+4*hf,4)}, v{7 if u == 2 else 6}, {q4(SRD_WS)}, s{54+hh} offen offset:{64*u + 16*hf} sc0 sc1")

def p4_compute(a):
    for f in range(6):
        for e in range(4):
            a(f"v_cvt_pk_bf16_f32 v{RAW+4*f+e}, v{RAW+8*f+2*e}, v{RAW+8*f+2*e+1}")
    a("s_nop 1")
    D = [192, 208]
    for hh in range(2):
        for u in range(3):
            a(f"v_mfma_f32_32x32x16_bf16 {vr(D[hh],16)}, {vr(RAW+12*hh+4*u,4)}, {vr(PHQ_R+8*u+4*hh,4)}, {'0' if u == 0 else vr(D[hh],16)}")
    a(f"s_lshl_b32 s58, s{S_NT}, 1\ns_nop 7")
    for hh in range(2):
        a(f"""v_add_f32 v6, {f32hex(1e-6)}, v{D[hh]+12}
v_rcp_f32 v6, v6
s_nop 0
v_mul_f32 v6, v6, v{OMG}""")
        out_store(a, D[hh], 6, "s58", f"s{S_T}", OBF)
        if hh == 0: a("s_add_u32 s58, s58, 1")

def max_init(a):
    a(f"""
v_mov_b32 v{K2[0]+1}, 0x3f803f80
v_mov_b32 v{K2[1]+1}, 0x3f803f80
v_mov_b32 v{Q2[0]+1}, 0
v_mov_b32 v{Q2[1]+1}, 0
v_mov_b32 v{MX[0]}, 0xff800000
v_mov_b32 v{MX[1]}, 0xff800000
v_mov_b64 {vr(V[1][1],2)}, 0
v_mov_b64 {vr(V[1][1]+2,2)}, 0
""")
def qk(a, kb):
    for q in range(2):
        a(f"""v_mfma_f32_32x32x16_bf16 {vr(S[q],16)}, {vr(K1[kb],4)}, {vr(Q1[q],4)}, 0
v_mfma_f32_32x32x8_bf16 {vr(S[q],16)}, {vr(K2[kb],2)}, {vr(Q2[q],2)}, {vr(S[q],16)}""")
def max_acc(a):
    for q in range(2):
        for e in range(8):
            a(f"v_max3_f32 v{MX[q]}, v{S[q]+2*e}, v{S[q]+2*e+1}, v{MX[q]}")
def max_fin(a):
    a(f"v_cmp_gt_u32 vcc, 32, v{VL}\nv_mov_b32 v176, v{MX[0]}\nv_mov_b32 v179, v{MX[1]}\ns_nop 0")
    a(f"v_permlane32_swap_b32 v176, v{MX[0]}\nv_permlane32_swap_b32 v179, v{MX[1]}\ns_nop 0")
    for q in range(2):
        t = 176 + 3*q
        a(f"""v_max_f32 v{t}, v{t}, v{MX[q]}
v_xor_b32 v{t}, 0x80000000, v{t}
v_and_b32 v{t+1}, 0xffff0000, v{t}
v_sub_f32 v{t}, v{t}, v{t+1}
v_and_b32 v{t+2}, 0xffff0000, v{t}
v_sub_f32 v{t}, v{t}, v{t+2}
v_lshrrev_b32 v{t+1}, 16, v{t+1}
v_or_b32 v{t+1}, v{t+1}, v{t+2}
v_lshrrev_b32 v{t}, 16, v{t}
v_cndmask_b32 v{Q2[q]+1}, v{t}, v{t+1}, vcc""")
    a("s_nop 1")
def static_setup(a):
    swap23(a, ROWM, VN, 6)
    for dst, src in ((QA8, VN), (K8, ROWM)):
        a(f"""v_bfe_u32 v6, v{src}, 2, 1
v_mul_u32_u24 v6, 7, v6
v_lshlrev_b32 v7, 1, v{src}
v_and_b32 v7, 6, v7
v_xor_b32 v6, v6, v7
v_and_b32 v7, 24, v{src}
v_add_u32 v6, v6, v7
v_lshlrev_b32 v6, 3, v6
v_lshl_add_u32 v{dst}, v{VH}, 2, v6""")
    a(f"""
v_lshlrev_b32 v{K16}, 4, v{ROWM}
v_lshl_add_u32 v{K16}, v{VH}, 9, v{K16}
s_mul_i32 s54, s{S_QP}, 5120
v_add_u32 v{DG}, s54, v{L16}
v_cmp_gt_u32 vcc, 20, v{VN}
v_and_b32 v6, 27, v{VN}
v_mov_b32 v7, 31
v_cndmask_b32 v{ROWM}, v7, v{ROWM}, vcc
v_cmp_eq_u32 vcc, 24, v6
v_bfe_u32 v6, v{VL}, 4, 1
v_mul_u32_u24 v6, 20480, v6
v_cndmask_b32 v{ROWM}, v{ROWM}, 20, vcc
v_and_b32 v7, 15, v{VL}
v_lshl_add_u32 v{OA4}, v7, 4, v6
v_lshl_add_u32 v{OA4}, v{VH}, 8, v{OA4}
v_lshl_add_u32 v6, v7, 3, v6
v_add_u32 v6, 16384, v6
v_cmp_gt_u32 vcc, 32, v{VL}
v_mov_b32 v7, {OOB}
v_mov_b32 v{IDX}, 0xdddddddd
v_cndmask_b32 v{OA2}, v7, v6, vcc
s_mul_i32 s55, s{S_KH}, {HALF}
v_add_u32 v{KA1}, s55, v{K16}
v_add_u32 v{KA2}, s55, v{K8}
v_mul_u32_u24 v7, 320, v{VH}
v_lshl_add_u32 v7, v{ROWM}, 4, v7
v_cmp_eq_u32 vcc, 20, v{ROWM}
v_mov_b32 v8, 10240
v_mov_b32 v9, 10256
v_cndmask_b32 v9, v9, v8, vcc
v_cmp_gt_u32 vcc, 20, v{ROWM}
v_mov_b32 v8, 640
v_mov_b32 v10, 1920
v_cndmask_b32 v7, v9, v7, vcc
v_cndmask_b32 v8, 0, v8, vcc
v_cndmask_b32 v10, 0, v10, vcc
v_add_u32 v{VA}, s55, v7
""")
    for i in range(1, 8):
        a(f"v_add_u32 v{VA+i}, v{VA+i-1}, v{8 if i & 1 else 10}")
    max_init(a)
def ones_addr(a):
    a(f"""
v_min_u32 v6, 11, v{VL}
v_lshrrev_b32 v7, 1, v6
v_mul_u32_u24 v7, {SLOT}, v7
v_and_b32 v6, 1, v6
v_lshl_add_u32 v7, v6, 4, v7
s_mul_i32 s55, s{S_KH}, {HALF}
s_add_u32 s55, s55, 10240
v_add_u32 v{ONEA}, s55, v7
v_add_u32 v6, -1, v6
v_and_b32 v8, 0x3f803f80, v6
v_mov_b32 v9, v8
v_mov_b32 v10, v8
v_mov_b32 v11, v8
""")
def ones_write(a, mask):
    a(f"s_mov_b64 exec, {mask}\nds_write_b128 v{ONEA}, v[8:11]\ns_mov_b64 exec, -1")
def o_zero(a):
    for q in range(2):
        a(f"v_mfma_f32_32x32x16_bf16 {vr(O[q],16)}, {vr(V[1][1],4)}, {vr(V[1][1],4)}, 0")
def G(a, rec):
    pos = (0, 1, 2, 0, 1)[rec >> 3]
    slot, j, p = (rec >> 2) & 1, rec & 3, rec & 1
    so = (2*pos + slot) * SLOT
    a(f"""ds_read_b128 {vr(K1[p],4)}, v{KA1} offset:{so + j*2560 + 1280}
ds_read_b32 v{K2[p]}, v{KA2} offset:{so + j*2560 + 2304}
ds_read_b128 {vr(V[p][0],4)}, v{VA+2*j} offset:{so}
ds_read_b128 {vr(V[p][1],4)}, v{VA+2*j+1} offset:{so}""")

def cond(a, test, fn):
    lb = a.newlabel("c")
    a(test + f"\ns_cbranch_scc1 {lb}")
    fn()
    a.label(lb)

def gen_attn(a):
    E = os.environ.get
    nonce_get(a)
    a(f"s_cmp_lg_u32 s61, 0\ns_cbranch_scc1 L_q_other\nv_mov_b32 v0, v38")
    flag_wait2(a, f"s{S_QF}", sleep=2)
    a(f"v_mov_b32 v36, s{S_NONCE}\nds_write_b32 v39, v36")
    a.label("L_q_other")
    a("ds_read_b32 v36, v39")
    ones_write(a, 15)
    a(f"""s_waitcnt lgkmcnt(0)
v_readfirstlane_b32 s63, v36
s_nop 3
s_sub_u32 s63, s63, s{S_NONCE}
s_cmp_lg_u32 s63, 0
s_cbranch_scc1 L_q_notyet""")
    attn_issue(a, True)
    a.label("L_q_notyet")
    f1.phi(a, f1.ACC, PHQ_R, 168, 188)
    a(f"""s_cmp_eq_u32 s63, 0
s_cbranch_scc1 L_q_done
s_mov_b32 s62, 0x4000000
L_q_spin:
ds_read_b32 v36, v39
s_waitcnt lgkmcnt(0)
v_readfirstlane_b32 s63, v36
s_cmp_eq_u32 s63, s{S_NONCE}
s_cbranch_scc1 L_q_go
s_sleep 1
s_sub_u32 s62, s62, 1
s_cmp_lg_u32 s62, 0
s_cbranch_scc1 L_q_spin
L_q_go:""")
    sv = list(VM)
    attn_issue(a, True)
    VM[:] = sv
    a.label("L_q_done")
    a(f"s_waitcnt vmcnt({vm_after('qk')})")
    qk(a, 0)
    f1.b_stage(a)
    max_acc(a); max_fin(a)
    qk(a, 1)
    o_zero(a)
    a(f"s_waitcnt vmcnt({vm_after(('kv', 0))}) lgkmcnt(0)")
    a("s_barrier")
    if DIAG:
        stamp_flush(a, 0, S_W, 8, keep=True); stamp_init(a); stamp(a, 0)
    G(a, 0)
    ones_write(a, 0xff0)
    f1.b_kv(a)
    a.label("L_at_go")
    a("s_setprio 3\ns_waitcnt lgkmcnt(0)")
    stamp(a, 2)
    def h_kvflag():
        a("s_waitcnt vmcnt(0)")
        a(f"s_lshl_b32 s60, s{S_NT}, 6\ns_add_u32 s60, s60, s{S_T}\ns_lshl_b32 s60, s60, 4\ns_add_u32 s60, s60, {FL_KV}")
        flag_set(a, "s60")
    def h_p4c():
        a("s_waitcnt vmcnt(0)")
        p4_compute(a)
    def h_obflag():
        a("s_waitcnt vmcnt(0)")
        a(f"s_lshl_b32 s60, s{S_T}, 4\ns_add_u32 s60, s60, s{S_NT}\ns_lshl_b32 s60, s60, 4\ns_add_u32 s60, s60, {FL_OB}")
        flag_set(a, "s60")
    def h_atom():
        cond(a, f"s_cmp_lg_u32 s{S_MODE}, 0", lambda: f1.b_atomics(a))
    def bar8():
        cond(a, f"s_cmp_lg_u32 s{S_KH}, 0", lambda: a("s_waitcnt vmcnt(0)"))
        a("s_barrier")
    def bar24():
        a("s_waitcnt vmcnt(0)")
        f3.wo_check(a)
        a("s_barrier")
    B1 = lambda p: (lambda: f3.p5_batch1(a, p))
    KD_ = lambda p: (lambda: kv_dma(a, p))
    both = {8: bar8, 24: bar24}
    hlo = {1: KD_(1), 3: KD_(2), 5: lambda: f3.p5_setup(a),
           8: KD_(0), 10: lambda: flag_peek(a, KV_AD, 64, PKR), 12: lambda: p4_issue(a), 15: h_p4c,
           18: h_obflag, 21: lambda: f3.p5_misc(a), 24: B1(0), 25: B1(1), 26: lambda: (B1(2)(), f3.ob_peek(a)), 27: lambda: f3.wo_touch(a), 28: lambda: f3.p5_ob_issue(a)}
    hhi = {2: h_atom, 3: KD_(1), 4: KD_(2), 6: lambda: f3.p5_setup(a), 7: h_kvflag,
           8: lambda: f3.wo_issue(a), 9: KD_(0), 11: lambda: f3.wo_move(a), 12: lambda: f3.wo_store(a), 14: lambda: f3.wo_flag(a),
           20: lambda: f3.p5_misc(a), 22: lambda: f3.wo_peek(a), 25: B1(0), 26: B1(1), 27: lambda: (B1(2)(), f3.ob_peek(a)), 29: lambda: f3.p5_ob_issue(a)}
    def mk(rec):
        def f():
            if rec in both: both[rec]()
            if rec in hlo and rec in hhi:
                l1, l2 = a.newlabel("h"), a.newlabel("h")
                a(f"s_cmp_lg_u32 s{S_KH}, 0\ns_cbranch_scc1 {l1}")
                hlo[rec](); a(f"s_branch {l2}"); a.label(l1); hhi[rec](); a.label(l2)
            elif rec in hlo: cond(a, f"s_cmp_lg_u32 s{S_KH}, 0", hlo[rec])
            elif rec in hhi: cond(a, f"s_cmp_eq_u32 s{S_KH}, 0", hhi[rec])
        return f
    hooks = {r: mk(r) for r in set(both) | set(hlo) | set(hhi)}
    PR = eval(E('PR', '{3: 2, 5: 1, 7: 0, 8: 3, 15: 2, 20: 1, 23: 0, 24: 3, 27: 2, 29: 1, 31: 0}'))
    for t in range(32):
        for q in range(2):
            i = (2*t + q) & 3
            X, W, Y = S[i], S[(i-1) & 3], S[(i+2) & 3]
            p = t & 1
            pw, qw = (p, 0) if q == 1 else (1 - p, 1)
            ex = [f"v_exp_f32 v{X+e}, v{X+e}" for e in range(16)]
            a("\n".join(ex[0:2]))
            if t + q: a(f"v_smfmac_f32_32x32x32_bf16 {vr(O[qw],16)}, {vr(V[pw][1],4)}, {vr(W+8,8)}, v{IDX}")
            if q == 0:
                rec = t + 1
                if rec in RST: stamp2(a, RST[rec])
                if rec in hooks: hooks[rec]()
                if rec in PR: a(f"s_setprio {PR[rec]}")
                if rec < 32: G(a, rec)
            a("\n".join(ex[2:6]))
            if t < 31: a(f"v_mfma_f32_32x32x16_bf16 {vr(Y,16)}, {vr(K1[p],4)}, {vr(Q1[q],4)}, 0")
            a("\n".join(ex[6:10]))
            a(f"v_smfmac_f32_32x32x32_bf16 {vr(O[q],16)}, {vr(V[p][0],4)}, {vr(X,8)}, v{IDX}")
            a("\n".join(ex[10:14]))
            if t < 31: a(f"v_mfma_f32_32x32x8_bf16 {vr(Y,16)}, {vr(K2[p],2)}, {vr(Q2[q],2)}, {vr(Y,16)}")
            a("\n".join(ex[14:16]))
            if q == 1 and t < 31:
                a("s_waitcnt lgkmcnt(0)")
    stamp(a, 3)
    a(f"""
s_lshl_b32 s54, s{S_QP}, 12
s_mul_i32 s55, s{S_KH}, {HALF}
v_smfmac_f32_32x32x32_bf16 {vr(O[1],16)}, {vr(V[1][1],4)}, {vr(S[3]+8,8)}, v{IDX}
s_add_u32 s56, s54, s55
s_sub_u32 s55, {HALF}, s55
s_add_u32 s55, s55, s54
v_add_u32 v6, s56, v{L16}
v_add_u32 v7, s55, v{L16}
s_waitcnt vmcnt(0)
s_barrier
""")
    for q in range(2):
        a(f"v_add_f32 v{8+q}, |v{O[q]}|, |v{O[q]+1}|")
        for i in range(2, 12):
            a(f"v_add_f32 v{8+q}, v{8+q}, |v{O[q]+i}|")
    a(f"""
v_add_f32 v8, v8, v9
v_add_f32 v9, v{O[0]+12}, v{O[1]+12}
v_mov_b32 v10, 0x0c800000
v_fmac_f32 v9, v8, v10
v_mov_b32 v10, 0x4b000000
v_cmp_nle_f32 vcc, v9, v10
s_lshl_b32 s55, s{S_W}, 2
s_add_u32 s55, s55, {FLG}
v_mov_b32 v9, s55
s_cmp_eq_u32 s{S_KH}, 0
s_cbranch_scc1 L_at_m0
""")
    def send(o):
        for i in range(3):
            a(f"ds_write_b128 v6, {vr(o+4*i,4)} offset:{i*1024}")
        a(f"ds_write_b32 v6, v{o+12} offset:3072")
    send(O[0])
    a("s_waitcnt lgkmcnt(0)")
    for i in range(0, 14, 2):
        a(f"v_mov_b64 {vr(O[0]+i,2)}, {vr(O[1]+i,2)}")
    a("s_branch L_at_m1")
    a.label("L_at_m0")
    send(O[1])
    a.label("L_at_m1")
    a(f"""s_cmp_lg_u64 vcc, 0
s_cselect_b32 s54, 1, 0
v_mov_b32 v8, s54
ds_write_b32 v9, v8
v_mov_b32 v9, {FLG}
s_waitcnt lgkmcnt(0)
s_barrier
ds_read_b128 v[32:35], v9
ds_read_b128 v[8:11], v9 offset:16
ds_read_b32 v{S[0]+12}, v7 offset:3072""")
    for i in range(3):
        a(f"ds_read_b128 {vr(S[0]+4*i,4)}, v7 offset:{i*1024}")
    o = O[0]
    a(f"""s_waitcnt lgkmcnt(3)
v_or3_b32 v8, v8, v9, v10
v_or3_b32 v8, v8, v11, v32
v_or3_b32 v8, v8, v33, v34
v_or_b32 v8, v8, v35
v_add_f32 v{o+12}, v{o+12}, v{S[0]+12}
v_readfirstlane_b32 s54, v8
v_rcp_f32 v6, v{o+12}
s_andn2_b32 s54, s54, s{S_MODE}
s_cmp_eq_u32 s54, 0
s_waitcnt lgkmcnt(0)
s_cbranch_scc1 L_at_fin
s_mov_b32 s{S_MODE}, 1
s_barrier
""")
    attn_issue(a, False)
    max_init(a)
    a(f"s_mov_b32 s56, s{S_KVB}\ns_mov_b32 s57, 64")
    a.label("L_at_max")
    a("s_waitcnt vmcnt(0)")
    qk(a, 0)
    a("s_nop 7\ns_nop 3")
    max_acc(a)
    a(f"""
s_add_u32 s56, s56, 2560
buffer_load_dwordx4 {vr(K1[0],4)}, v{K16}, {q4(SRD_WS)}, s56 offen
buffer_load_dword v{K2[0]}, v{K8}, {q4(SRD_WS)}, s56 offen offset:1024
s_sub_u32 s57, s57, 1
s_cmp_lg_u32 s57, 0
s_cbranch_scc1 L_at_max
""")
    max_fin(a)
    qk(a, 1)
    o_zero(a)
    ones_addr(a)
    ones_write(a, 0xfff)
    a("s_waitcnt vmcnt(0) lgkmcnt(0)\ns_barrier")
    G(a, 0)
    a("s_branch L_at_go")
    a.label("L_at_fin")
    stamp(a, 4)
    for i in range(0, 12, 2):
        a(f"v_pk_add_f32 {vr(o+i,2)}, {vr(o+i,2)}, {vr(S[0]+i,2)}")
    a(f"s_add_u32 s58, s{S_QT}, s{S_KH}")
    out_store(a, o, 6, f"s{S_HEAD}", "s58", OAF)
```

```python
from asmlib import *
from layout import *

NS = 4
TOP = NS * 32768
BROW = 272
STG = 126976
VL, L16, VN, VH = 2, 3, 4, 5
XG0, XG1, WG = 6, 7, 8
XA = 10
WA = 18
WB = 22
EA = 24
WFB = [40, 48, 248]
LA = 2
ACC = 56
XR = 88
DIST = 3
S_SEQ = 98
PREBAR = {}
FILL = {}
QST = int(os.environ.get('QST', '16'))
STG_STAMP = eval(os.environ.get('STG_STAMP', '{}'))
stamp2 = stamp
PRO = os.environ.get('PRO')
if STG_STAMP or PRO:
    def stamp(a, i): pass
def pstamp(a, i):
    if PRO: stamp2(a, i)
HOLD = [8, 12, 16, 32]
SPM = [4, 6, 74, 76]
STORE_AT = eval(os.environ.get('STORE_AT', '[40,44,48,52]'))
PHQ_R = 228
OMG = 252
S_XO, S_WO, S_KR, S_LB, S_T, S_PREP, S_WBB = 44, 45, 46, 47, 48, 49, 50

def common_init(a):
    a(f"""
s_and_b32 s{S_XCD}, s2, 7
s_lshr_b32 s{S_J}, s2, 3
v_lshrrev_b32 v1, 6, v0
v_and_b32 v{VL}, 63, v0
v_readfirstlane_b32 s{S_W}, v1
s_and_b32 s{S_MT}, s{S_XCD}, 1
s_lshl_b32 s{S_MT}, s{S_MT}, 3
s_and_b32 s52, s{S_J}, 7
s_add_u32 s{S_MT}, s{S_MT}, s52
s_lshr_b32 s{S_NT}, s{S_XCD}, 1
s_lshl_b32 s{S_NT}, s{S_NT}, 2
s_lshr_b32 s52, s{S_J}, 3
s_add_u32 s{S_NT}, s{S_NT}, s52
s_and_b32 s{S_TT}, s{S_W}, 3
s_lshr_b32 s{S_FH}, s{S_W}, 2
v_lshlrev_b32 v{L16}, 4, v{VL}
v_and_b32 v{VN}, 31, v{VL}
v_lshrrev_b32 v{VH}, 5, v{VL}
""")

def nonce_publish(a):
    lb = a.newlabel("np")
    a(f"""s_mov_b32 s{S_NONCE}, 0
s_xor_b32 s60, s{S_W}, 1
s_or_b32 s60, s2, s60
s_cmp_lg_u32 s60, 0
s_cbranch_scc1 {lb}
s_memrealtime s[60:61]
v_mov_b32 v9, 0
s_waitcnt lgkmcnt(0)
s_or_b32 s60, s60, 1
v_mov_b32 v1, s60
s_mov_b64 exec, 1
buffer_store_dword v1, v9, {q4(SRD_DBG)}, 0 offen sc0 sc1
s_mov_b64 exec, -1""")
    a.label(lb)

def nonce_clear(a):
    lb = a.newlabel("nc")
    a(f"""s_xor_b32 s60, s{S_W}, 4
s_or_b32 s60, s2, s60
s_cmp_lg_u32 s60, 0
s_cbranch_scc1 {lb}
v_mov_b32 v0, 0
s_mov_b64 exec, 1
buffer_store_dword v0, v0, {q4(SRD_DBG)}, 0 offen sc0 sc1
s_mov_b64 exec, -1""")
    a.label(lb)

def nonce_get(a):
    lp, dn = a.newlabel("ng"), a.newlabel("ngd")
    a(f"""s_cmp_lg_u32 s{S_NONCE}, 0
s_cbranch_scc1 {dn}
v_mov_b32 v0, 0
s_mov_b32 s62, 0x200000""")
    a.label(lp)
    a(f"""buffer_load_dword v1, v0, {q4(SRD_DBG)}, 0 offen sc0 sc1
s_waitcnt vmcnt(0)
v_readfirstlane_b32 s{S_NONCE}, v1
s_cmp_lg_u32 s{S_NONCE}, 0
s_cbranch_scc1 {dn}
s_sleep 8
s_sub_u32 s62, s62, 1
s_cmp_lg_u32 s62, 0
s_cbranch_scc1 {lp}""")
    a.label(dn)

def flag_set(a, off_sgpr):
    a(f"""v_mov_b32 v0, 0
v_mov_b32 v1, s{S_NONCE}
s_mov_b64 exec, 1
buffer_store_dword v1, v0, {q4(SRD_WS)}, {off_sgpr} offen sc0 sc1
s_mov_b64 exec, -1""")

def flag_wait(a, off_sgpr, nwords, sleep=10):
    lp, dn = a.newlabel("fw"), a.newlabel("fwd")
    if nwords <= 64:
        a(f"v_min_u32 v0, {nwords-1}, v{VL}\nv_lshlrev_b32 v0, 4, v0")
    a("s_mov_b32 s62, 0x200000")
    a.label(lp)
    if nwords <= 64:
        a(f"""buffer_load_dword v1, v0, {q4(SRD_WS)}, {off_sgpr} offen sc0 sc1
s_waitcnt vmcnt(0)
v_cmp_ne_u32 vcc, s{S_NONCE}, v1""")
    else:
        a(f"""buffer_load_dwordx4 v[36:39], v{L16}, {q4(SRD_WS)}, {off_sgpr} offen sc0 sc1
s_waitcnt vmcnt(0)
v_xor_b32 v36, s{S_NONCE}, v36
v_xor_b32 v37, s{S_NONCE}, v37
v_xor_b32 v38, s{S_NONCE}, v38
v_xor_b32 v39, s{S_NONCE}, v39
v_or3_b32 v36, v36, v37, v38
v_or_b32 v36, v36, v39
v_cmp_ne_u32 vcc, 0, v36""")
    a(f"""s_nop 3
s_cmp_eq_u64 vcc, 0
s_cbranch_scc1 {dn}
s_sleep {sleep}
s_sub_u32 s62, s62, 1
s_cmp_lg_u32 s62, 0
s_cbranch_scc1 {lp}""")
    a.label(dn)

def flag_peek(a, addr_code, nwords, dst):
    a(addr_code)
    a(f"""v_min_u32 v0, {nwords-1}, v{VL}
v_lshlrev_b32 v0, 4, v0
buffer_load_dword v{dst}, v0, {q4(SRD_WS)}, s60 offen sc0 sc1""")
def flag_check(a, addr_code, nwords, dst):
    lb = a.newlabel("fc")
    a(f"""v_cmp_ne_u32 vcc, s{S_NONCE}, v{dst}
s_nop 3
s_cmp_eq_u64 vcc, 0
s_cbranch_scc1 {lb}""")
    a(addr_code)
    flag_wait(a, "s60", nwords)
    a.label(lb)

def flag_wait2(a, off_sgpr, sleep=4):
    lp, dn = a.newlabel("fw"), a.newlabel("fwd")
    a("s_mov_b32 s62, 0x200000")
    a.label(lp)
    a(f"""buffer_load_dword v36, v0, {q4(SRD_WS)}, {off_sgpr} offen sc0 sc1
buffer_load_dword v37, v0, {q4(SRD_WS)}, {off_sgpr} offen offset:128 sc0 sc1
s_waitcnt vmcnt(0)
v_xor_b32 v36, s{S_NONCE}, v36
v_xor_b32 v37, s{S_NONCE}, v37
v_or_b32 v36, v36, v37
v_cmp_ne_u32 vcc, 0, v36
s_nop 3
s_cmp_eq_u64 vcc, 0
s_cbranch_scc1 {dn}
s_sleep {sleep}
s_sub_u32 s62, s62, 1
s_cmp_lg_u32 s62, 0
s_cbranch_scc1 {lp}""")
    a.label(dn)

def wb_flag_set(a):
    nonce_get(a)
    a(f"""s_lshl_b32 s60, s{S_P}, 5
s_add_u32 s60, s60, s{S_BLK}
s_lshl_b32 s60, s60, 4
s_add_u32 s60, s60, {FL_WB}""")
    flag_set(a, "s60")
def wb_flag_wait(a):
    nonce_get(a)
    a(f"""s_lshl_b32 s60, s{S_NT}, 9
s_add_u32 s60, s60, {FL_WB}""")
    flag_wait(a, "s60", 20)

VM = []
def vm_after(tag, prep=False):
    idx = max(i for i, t in enumerate(VM) if t == tag)
    return len([t for t in VM[idx+1:] if prep or not (isinstance(t, str) and t.startswith("p:"))])
P2SLOT = [131072, 147456, 65536, 82432, 98816, 0, 20608, 36992, 82432, 98816]
WBR = [20, 22, 23]
P2BAR = {10: 12, 11: None, 13: 15, 16: 17, 18: 19}

def dma_piece(a, st, i):
    slot = st % NS
    last = 3 if st < 10 else 1
    if st >= 10:
        if i == 0: a(f"s_lshl_b32 s{S_WO}, s{S_KR}, 14")
        a(f"s_add_u32 m0, s{S_LB}, {P2SLOT[st-10] + 1024*i}")
        a(f"s_add_u32 s{S_WO}, s{S_WO}, s{S_WBB}" if i == 0 else f"s_add_u32 s{S_WO}, s{S_WO}, 1024")
        a(f"buffer_load_dwordx4 v{L16}, {q4(SRD_WS)}, s{S_WO} offen lds")
    elif i < 2:
        a(f"""s_add_u32 m0, s{S_LB}, {slot*32768 + 1024*i}
s_lshl_b32 s{S_XO}, s{S_KR}, 7
buffer_load_dwordx4 v{XG0+i}, {q4(SRD_X)}, s{S_XO} offen lds""")
    else:
        a(f"s_add_u32 m0, s{S_LB}, {slot*32768 + 16384 + 1024*(i-2)}")
        a(f"s_mul_i32 s{S_WO}, s{S_KR}, {64*3840}" if i == 2 else f"s_add_u32 s{S_WO}, s{S_WO}, {4*3840}")
        a(f"buffer_load_dwordx4 v{WG}, {q4(SRD_WA)}, s{S_WO} offen lds")
    if i == last:
        if st == 9: a(f"s_mov_b64 s[{S_SEQ}:{S_SEQ+1}], s[{S_SEQ+2}:{S_SEQ+3}]")
        else: a(f"s_lshr_b64 s[{S_SEQ}:{S_SEQ+1}], s[{S_SEQ}:{S_SEQ+1}], 4")
        a(f"s_and_b32 s{S_KR}, s{S_SEQ}, 15")
    VM.append(("dma", st))
def dma_sched(ds, pc):
    if ds == 2: return [(2, 2*pc - 4), (2, 2*pc - 3)]
    if ds < 10: return [(ds, pc)]
    if ds == 10: return [(10 + pc, 0), (10 + pc, 1)] if pc < 3 else []
    if ds == 11: return [(13 + (pc >> 1), pc & 1)]
    if ds == 12: return [(15, pc)] if pc < 2 else []
    if ds == 13: return [(16 + (pc >> 1), pc & 1)]
    if ds == 18: return [(18 + pc, 0), (18 + pc, 1)] if pc < 2 else []
    return []
def dma(a, st):
    for i in range(4): dma_piece(a, st, i)

def reads(a, g, xonly=False):
    st, ks, wf = g >> 2, g & 3, WFB[g % 3]
    slot = st % NS
    hi = slot >= 2
    so = (slot & 1) * 32768
    if st < 10:
        a(f"ds_read_b128 {vr(XR+4*g,4)}, v{XA+4*hi+ks} offset:{so}")
        for ft in range(0 if xonly else 2):
            for aa in range(2):
                a(f"ds_read_b64_tr_b16 {vr(wf+4*ft+2*aa,2)}, v{WA+2*hi+ft} offset:{so + (16*ks+4*aa)*256}")
    elif st < 20:
        for ft in range(2):
            a(f"ds_read_b128 {vr(wf+4*ft,4)}, v{WBR[P2SLOT[st-10] >> 16]} offset:{(P2SLOT[st-10] & 65535) + ks*4096 + ft*1024}")
def nreads(g):
    return 5 if g < 40 else 2 if g < 80 else 0

def enter_stage(a, st):
    if st >= 10:
        if st == QST and st not in P2BAR:
            a(f"s_waitcnt vmcnt({vm_after('epi')})\ns_barrier")
            return
        if st not in P2BAR: return
    cov = P2BAR.get(st, st)
    if cov is None:
        a("s_barrier")
        return
    n, n2 = vm_after(("dma", cov)), vm_after(("dma", cov), True)
    assert st < 2 or n == n2
    if st == QST: n = min(n, vm_after("epi"))
    a(f"s_waitcnt vmcnt({n})")
    if st in PREBAR: PREBAR[st]()
    a("s_barrier")
    if st in STG_STAMP: stamp2(a, STG_STAMP[st])

def steps(a, g0, g1, swapped, hooks):
    for g in range(g0, g1):
        wf = WFB[g % 3]
        nst = (g + LA) >> 2
        if (g + LA) & 3 == 0 and nst < 20:
            enter_stage(a, nst)
        xonly = swapped == "x"
        reads(a, g + LA, xonly)
        if (g + LA) & 3 == 0 and nst in hooks: hooks[nst]()
        a(f"s_waitcnt lgkmcnt({LA if xonly else sum(nreads(g+i) for i in range(1, LA+1))})")
        for ft in range(0 if xonly else 2):
            A, B = vr(wf+4*ft,4), vr(XR+4*(g%40),4)
            if swapped: A, B = B, A
            c = "0" if g % 40 == 0 else vr(ACC+16*ft,16)
            a(f"v_mfma_f32_32x32x16_bf16 {vr(ACC+16*ft,16)}, {A}, {B}, {c}")
            for ln in FILL.get((g, ft), []): a.raw(ln)
        ds, pc = ((g + LA) >> 2) + DIST - 1, (g + LA) & 3
        for x in dma_sched(ds, pc): dma_piece(a, *x)
        for j in [j for j in range(4) if int(STORE_AT[j]) == g]:
            a(f"buffer_store_dwordx4 {vr(HOLD[j],4)}, v{EA+j}, {q4(SRD_WS)}, 0 offen sc1")
            VM.append("epi")

def set_fill(fn, g0, g1):
    t = Asm(); fn(t)
    lines = [l for l in t.lines if l.strip() and not l.strip().startswith(";")]
    slots = [(g, ft) for g in range(g0, g1) for ft in range(2)]
    per = -(-len(lines) // len(slots))
    for i, sl in enumerate(slots):
        FILL.setdefault(sl, []).extend(lines[i*per:(i+1)*per])

def set_block(fn, g):
    t = Asm(); fn(t)
    FILL.setdefault((g, 1), []).extend(t.lines)

def swap23(a, dst, src, tmp):
    a(f"""v_and_b32 v{dst}, 0x13, v{src}
v_bfe_u32 v{tmp}, v{src}, 2, 1
v_lshl_or_b32 v{dst}, v{tmp}, 3, v{dst}
v_bfe_u32 v{tmp}, v{src}, 3, 1
v_lshl_or_b32 v{dst}, v{tmp}, 2, v{dst}""")

AF, GT, PM, PL, IA, IB, D = 124, 160, 168, 180, 192, 204, 216
S_U, S_P, S_BLK = 51, 52, 53
def prep_addr(a):
    a(f"""
s_mul_i32 s57, s{S_P}, 1600
s_mul_i32 s55, s{S_W}, 10496
s_cmp_eq_u32 s{S_NT}, 15
s_cselect_b32 s55, s55, {TOP}
v_cmp_gt_u32 vcc, 36, v{VL}
v_mov_b32 v37, {OOB}
v_and_b32 v36, 15, v{VL}
v_cndmask_b32 v32, v37, v{L16}, vcc
v_cmp_gt_u32 vcc, 15, v36
v_mul_u32_u24 v38, 205, v36
v_lshrrev_b32 v38, 10, v38
v_mul_u32_u24 v38, 1200, v38
v_lshl_add_u32 v36, v36, 4, v38
v_lshrrev_b32 v38, 4, v{VL}
v_mul_u32_u24 v38, 3840, v38
v_add_u32 v36, v36, v38
v_cndmask_b32 v33, v37, v36, vcc
s_mul_i32 s58, s{S_BLK}, {32*3840}
s_mul_i32 s56, s{S_P}, 80
s_add_u32 s58, s58, s56
v_lshlrev_b32 v34, 4, v{VH}
s_lshl_b32 s59, s{S_BLK}, 6
""")
def prep_issue(a):
    a(f"""s_mov_b32 m0, s55
s_nop 0
buffer_load_dwordx4 v{L16}, {q4(SRD_PHI)}, s57 offen lds
buffer_load_dwordx4 v32, {q4(SRD_PHI)}, s57 offen offset:1024 lds""")
    for i in range(8):
        a(f"s_add_u32 m0, s55, {2048 + 1040*i}")
        a(f"s_add_u32 s58, s58, {4*3840}" if i else "s_nop 0")
        a(f"buffer_load_dwordx4 v33, {q4(SRD_WB)}, s58 offen lds")
    a(f"""buffer_load_dwordx4 {vr(GT,4)}, v34, {q4(SRD_GATE)}, s59 offen
buffer_load_dwordx4 {vr(GT+4,4)}, v34, {q4(SRD_GATE)}, s59 offen offset:32""")

def prep_compute(a, nyounger):
    a(f"""
v_bfe_u32 v36, v{VL}, 2, 2
v_lshl_add_u32 v36, v{VH}, 3, v36
v_and_b32 v37, 1, v{VL}
v_mul_u32_u24 v37, 20, v37
v_sub_u32 v38, v36, v37
v_bfe_u32 v39, v{VL}, 1, 1
v_bfe_u32 v1, v{VL}, 4, 1
v_lshl_add_u32 v39, v1, 1, v39
v_mul_u32_u24 v36, 40, v36
v_add_u32 v36, s55, v36
v_lshl_add_u32 v0, v39, 3, v36
v_cmp_eq_u32 s[58:59], 0, v39
s_add_u32 s57, s55, 1600
v_mov_b32 v37, s57
s_waitcnt vmcnt({nyounger + 10})
""")
    for u in range(3):
        for aa in range(2):
            k0 = 16*u + 4*aa
            a(f"""v_add_u32 v1, {k0}, v38
v_cmp_gt_u32 vcc, 20, v1
v_add_u32 v1, {k0*40}, v0
v_add_u32 v39, {k0*40 + 32}, v36
v_cndmask_b32 v1, v37, v1, vcc
s_and_b64 vcc, vcc, s[58:59]
ds_read_b64_tr_b16 {vr(PM+4*u+2*aa,2)}, v1
v_cndmask_b32 v39, v37, v39, vcc
ds_read_b64_tr_b16 {vr(PL+4*u+2*aa,2)}, v39""")
    a(f"""
v_and_b32 v0, 3, v{VN}
v_lshlrev_b32 v0, 4, v0
v_mov_b32 v36, 0x3f80
v_mov_b32 v37, 0
v_lshlrev_b64 v[36:37], v0, v[36:37]
v_bfe_u32 v0, v{VN}, 2, 1
v_mul_u32_u24 v0, 5, v0
v_lshrrev_b32 v1, 3, v{VN}
v_add_u32 v0, v0, v1
v_lshlrev_b32 v38, 1, v{VH}
v_sub_u32 v0, v0, v38
v_cmp_eq_u32 vcc, 0, v1
v_mov_b32 v38, 99
s_nop 0
v_cndmask_b32 v0, v0, v38, vcc
v_cmp_eq_u32 s[58:59], 3, v1
""")
    for u in range(3):
        for aa in range(2):
            kq = 4*u + aa
            a(f"""v_cmp_eq_u32 vcc, {kq+1}, v0
s_nop 1
v_cndmask_b32 v{IA+4*u+2*aa}, 0, v36, vcc
v_cndmask_b32 v{IA+4*u+2*aa+1}, 0, v37, vcc
v_cmp_eq_u32 vcc, {kq-2}, v0
s_nop 1
v_cndmask_b32 v{IB+4*u+2*aa}, 0, v36, vcc
v_cndmask_b32 v{IB+4*u+2*aa+1}, 0, v37, vcc""")
    a(f"""
s_mul_i32 s54, s{S_P}, {40*4096}
s_lshl_b32 s56, s{S_BLK}, 13
s_add_u32 s54, s54, s56
s_add_u32 s54, s54, {WBF}
s_add_u32 s56, s54, 4096
""")
    swap23(a, 36, VN, 38)
    a(f"""v_lshrrev_b32 v37, 2, v36
v_mul_u32_u24 v37, 1040, v37
v_and_b32 v36, 3, v36
v_lshl_add_u32 v36, v36, 8, v37
v_lshl_add_u32 v36, v{VH}, 4, v36
v_add_u32 v36, s55, v36
s_waitcnt vmcnt({nyounger})""")
    for seg in range(3):
        for u in range(3):
            a(f"ds_read_b128 {vr(AF+4*(3*seg+u),4)}, v36 offset:{2048 + 80*seg + 32*u}")
    a("s_waitcnt lgkmcnt(0)")

    plan = [[(0, PM)], [(0, PL), (2, IA)], [(1, PM)], [(1, PL), (2, IB)]]
    def mm(t):
        d = D + 16*(t & 1)
        first = True
        for seg, fr in plan[t]:
            for u in range(3):
                a(f"v_mfma_f32_32x32x16_bf16 {vr(d,16)}, {vr(AF+4*(3*seg+u),4)}, {vr(fr+4*u,4)}, {'0' if first else vr(d,16)}")
                first = False
    def fin(t):
        d = D + 16*(t & 1)
        for g in range(2):
            r = d + 8*g
            for e in range(4):
                a(f"v_cvt_pk_bf16_f32 v{r+e}, v{r+2*e}, v{r+2*e+1}")
            if t == 3:
                for e in range(4):
                    a(f"v_cndmask_b32 v{r+e}, v{r+e}, v{GT+4*g+e}, s[58:59]")
        a(f"""buffer_store_dwordx4 {vr(d,4)}, v{L16}, {q4(SRD_WS)}, s54 offen offset:{t*1024} sc1
buffer_store_dwordx4 {vr(d+8,4)}, v{L16}, {q4(SRD_WS)}, s56 offen offset:{t*1024} sc1""")
    mm(0); mm(1); a("s_waitcnt vmcnt(0)\ns_nop 6"); fin(0); a("s_nop 1"); mm(2); fin(1); a("s_nop 1"); mm(3); fin(2); a("s_nop 3"); fin(3)
    lb = a.newlabel("nz")
    a(f"""
s_cmp_lg_u32 s{S_BLK}, 0
s_cbranch_scc1 {lb}
s_lshl_b32 s54, s{S_P}, 13
s_add_u32 s54, s54, {KVACC}
s_add_u32 s56, s54, 4096
v_mov_b32 v{AF}, 0
v_mov_b32 v{AF+1}, 0
v_mov_b32 v{AF+2}, 0
v_mov_b32 v{AF+3}, 0
""")
    for i in range(4):
        a(f"""buffer_store_dwordx4 {vr(AF,4)}, v{L16}, {q4(SRD_WS)}, s54 offen offset:{i*1024} sc1
buffer_store_dwordx4 {vr(AF,4)}, v{L16}, {q4(SRD_WS)}, s56 offen offset:{i*1024} sc1""")
    a.label(lb)

def phi(a, u, dst, EP, T):
    mx, mn, sp, sn = T, T+2, T+2, T+4
    a(f"v_max3_f32 v{mx}, v{u}, v{u+1}, v{u+2}\nv_min3_f32 v{mn}, v{u}, v{u+1}, v{u+2}")
    for e in range(3, 19, 2):
        a(f"v_max3_f32 v{mx}, v{u+e}, v{u+e+1}, v{mx}\nv_min3_f32 v{mn}, v{u+e}, v{u+e+1}, v{mn}")
    a(f"v_max_f32 v{mx}, v{u+19}, v{mx}\nv_min_f32 v{mn}, v{u+19}, v{mn}")
    a(f"""s_mov_b32 s54, {f32hex(LOG2E)}
s_mov_b32 s55, s54
v_mul_f32 v{mx+1}, s54, v{mx}
v_mul_f32 v{mn+1}, s54, v{mn}
v_mul_f32 v{mx}, s54, v{mx}
v_mul_f32 v{mn}, s54, v{mn}""")
    for e in range(0, 20, 2):
        a(f"v_pk_fma_f32 {vr(EP+e,2)}, {vr(u+e,2)}, s[54:55], {vr(mn,2)} neg_lo:[1,0,0] neg_hi:[1,0,0]")
        a(f"v_pk_fma_f32 {vr(u+e,2)}, {vr(u+e,2)}, s[54:55], {vr(mx,2)} neg_lo:[0,0,1] neg_hi:[0,0,1]")
    for e in range(20):
        a(f"v_exp_f32 v{EP+e}, v{EP+e}\nv_exp_f32 v{u+e}, v{u+e}")
    a(f"v_pk_add_f32 {vr(sp,2)}, {vr(u,2)}, {vr(u+2,2)}\nv_pk_add_f32 {vr(sn,2)}, {vr(EP,2)}, {vr(EP+2,2)}")
    for e in range(4, 20, 2):
        a(f"v_pk_add_f32 {vr(sp,2)}, {vr(sp,2)}, {vr(u+e,2)}\nv_pk_add_f32 {vr(sn,2)}, {vr(sn,2)}, {vr(EP+e,2)}")
    a(f"""v_add_f32 v{sp}, v{sp}, v{sp+1}
v_add_f32 v{sn}, v{sn}, v{sn+1}
v_rcp_f32 v{sp}, v{sp}
v_rcp_f32 v{sn}, v{sn}
v_mov_b32 v{sp+1}, v{sp}
v_mov_b32 v{sn+1}, v{sn}""")
    for e in range(0, 20, 2):
        a(f"v_pk_mul_f32 {vr(u+e,2)}, {vr(u+e,2)}, {vr(sp,2)}")
        a(f"v_pk_mul_f32 {vr(EP+e,2)}, {vr(EP+e,2)}, {vr(sn,2)}")
    for e in range(10):
        a(f"v_cvt_pk_bf16_f32 v{dst+e}, v{u+2*e}, v{u+2*e+1}\nv_cvt_pk_bf16_f32 v{dst+10+e}, v{EP+2*e}, v{EP+2*e+1}")

def gen_p12(a, p2hooks):
    a(f"""
s_mov_b32 s{S_P}, s{S_NT}
s_mov_b32 s{S_BLK}, s{S_MT}
s_cmp_eq_u32 s{S_W}, 0
s_cselect_b32 s{S_PREP}, 1, 0
s_cbranch_scc1 L_p_sel
s_cmp_lg_u32 s{S_NT}, 15
s_cbranch_scc1 L_p_sel
s_and_b32 s{S_P}, s{S_MT}, 3
s_lshl_b32 s{S_P}, s{S_P}, 2
s_add_u32 s{S_P}, s{S_P}, s{S_W}
s_sub_u32 s{S_P}, s{S_P}, 1
s_lshr_b32 s{S_BLK}, s{S_MT}, 2
s_add_u32 s{S_BLK}, s{S_BLK}, 16
s_cmp_lt_u32 s{S_W}, 5
s_cselect_b32 s{S_PREP}, 1, 0
L_p_sel:
""")
    VM.clear()
    E = os.environ.get
    def do_prep(fn):
        lb = a.newlabel("pp")
        a(f"s_cmp_eq_u32 s{S_PREP}, 0\ns_cbranch_scc1 {lb}")
        fn(a)
        a.label(lb)
    do_prep(prep_addr)
    ROT = E("ROT", "sched")
    if ROT == "sched": seqs = eval(E("SEQS", "[[0,4,1,2,3,8,5,6,7,9],[1,0,5,2,3,4,9,6,7,8],[2,3,0,6,1,4,5,7,8,9],[3,2,0,1,7,4,5,6,8,9]]"))
    else: seqs = [[(o + i) % 10 for i in range(10)] for o in (0, 3, 5, 8)]
    pk = lambda q: sum(v << (4*i) for i, v in enumerate(q))
    a(f"s_lshr_b32 s54, s{S_J}, 3\ns_add_u32 s54, s54, s{S_J}\ns_and_b32 s54, s54, 3")
    for c in range(4):
        assert sorted(seqs[c]) == list(range(10))
        op = "s_mov_b32" if c == 0 else "s_cmov_b32"
        if c: a(f"s_cmp_eq_u32 s54, {c}")
        a(f"{op} s{S_SEQ}, {hex(pk(seqs[c]) & 0xffffffff)}\n{op} s{S_SEQ+1}, {hex(pk(seqs[c]) >> 32)}")
    a(f"s_mov_b64 s[{S_SEQ+2}:{S_SEQ+3}], s[{S_SEQ}:{S_SEQ+1}]\ns_and_b32 s{S_KR}, s{S_SEQ}, 15")
    a(f"""
v_lshrrev_b32 v36, 3, v{VL}
s_lshl_b32 s54, s{S_MT}, 7
s_lshl_b32 s56, s{S_W}, 4
s_add_u32 s54, s54, s56
v_add_u32 v36, s54, v36
v_mul_u32_u24 v36, 1280, v36
v_lshrrev_b32 v37, 4, v{VL}
v_and_b32 v38, 7, v{VL}
v_xor_b32 v38, v38, v37
v_lshlrev_b32 v38, 4, v38
v_add_u32 v{XG0}, v36, v38
v_xor_b32 v38, 64, v38
v_add_u32 v{XG1}, v36, v38
v_add_u32 v{XG1}, {8*1280}, v{XG1}
s_lshl_b32 s54, s{S_W}, 3
v_add_u32 v36, s54, v37
v_mul_u32_u24 v36, 3840, v36
v_and_b32 v38, 15, v{VL}
v_lshlrev_b32 v37, 2, v37
v_xor_b32 v38, v38, v37
v_lshlrev_b32 v38, 4, v38
v_add_u32 v36, v36, v38
s_lshl_b32 s54, s{S_NT}, 8
v_add_u32 v{WG}, s54, v36
s_lshl_b32 s{S_LB}, s{S_W}, 11
s_mul_i32 s{S_WBB}, s{S_NT}, {40*4096}
s_add_u32 s{S_WBB}, s{S_WBB}, s{S_LB}
s_add_u32 s{S_WBB}, s{S_WBB}, {WBF}
""")
    a("s_waitcnt lgkmcnt(0)")
    pstamp(a, 1)
    nonce_publish(a)
    do_prep(prep_issue)
    a(f"s_cmp_eq_u32 s{S_NT}, 15\ns_cbranch_scc1 L_p_nodma")
    dma(a, 0)
    pstamp(a, 2)
    a.label("L_p_nodma")
    a(f"""
s_lshl_b32 s54, s{S_TT}, 12
v_lshlrev_b32 v36, 7, v{VN}
v_add_u32 v36, s54, v36
v_bfe_u32 v37, v{VN}, 1, 3
v_xor_b32 v37, v37, v{VH}
""")
    for ks in range(4):
        a(f"""v_xor_b32 v38, {2*ks}, v37
v_lshl_add_u32 v{XA+ks}, v38, 4, v36
v_add_u32 v{XA+4+ks}, 0x10000, v{XA+ks}""")
    a(f"""
v_bfe_u32 v36, v{VL}, 2, 2
v_lshl_add_u32 v37, v{VH}, 3, v36
v_lshlrev_b32 v37, 8, v37
v_add_u32 v37, 16384, v37
v_and_b32 v38, 1, v{VL}
v_bfe_u32 v1, v{VL}, 1, 1
s_cmp_ge_u32 s{S_NT}, 10
s_cselect_b64 vcc, -1, 0
v_cndmask_b32 v0, v1, v38, vcc
v_cndmask_b32 v1, v38, v1, vcc
v_lshl_add_u32 v37, v0, 3, v37
v_bfe_u32 v38, v{VL}, 4, 1
v_lshl_add_u32 v38, v38, 1, v1
s_lshl_b32 s54, s{S_FH}, 3
v_add_u32 v38, s54, v38
v_lshlrev_b32 v36, 2, v36
v_xor_b32 v38, v38, v36
v_lshl_add_u32 v{WA}, v38, 4, v37
v_xor_b32 v38, 4, v38
v_lshl_add_u32 v{WA+1}, v38, 4, v37
v_add_u32 v{WA+2}, 0x10000, v{WA}
v_add_u32 v{WA+3}, 0x10000, v{WA+1}
s_lshl_b32 s54, s{S_FH}, 11
s_add_u32 s54, s54, 65536
v_add_u32 v{WB}, s54, v{L16}
v_add_u32 v{WB+1}, 0x10000, v{WB}
s_lshl_b32 s{S_T}, s{S_MT}, 2
s_add_u32 s{S_T}, s{S_T}, s{S_TT}
""")
    a(f"s_cmp_eq_u32 s{S_NT}, 15\ns_cbranch_scc1 L_p1_x")
    do_prep(lambda a: prep_compute(a, 4))
    pstamp(a, 3)
    VM0 = list(VM)
    a(f"""
s_cmp_ge_u32 s{S_NT}, 10
s_cbranch_scc1 L_p1_v
""")
    def h_pub():
        lb = a.newlabel("pa")
        a(f"s_cmp_eq_u32 s{S_PREP}, 0\ns_cbranch_scc1 {lb}")
        a(f"s_waitcnt vmcnt({vm_after('nonce', True)})\nv_readfirstlane_b32 s{S_NONCE}, v35")
        wb_flag_set(a)
        a.label(lb)
    def h_wb_issue():
        lb = a.newlabel("pw")
        a(f"""s_cmp_lg_u32 s{S_W}, 7
s_cbranch_scc1 {lb}
s_lshl_b32 s60, s{S_NT}, 9
s_add_u32 s60, s60, {FL_WB}
v_min_u32 v0, 19, v{VL}
v_lshlrev_b32 v0, 4, v0
buffer_load_dword v34, v0, {q4(SRD_WS)}, s60 offen sc0 sc1""")
        a.label(lb)
    def h_wb_check():
        lb = a.newlabel("pw")
        a(f"""s_cmp_lg_u32 s{S_W}, 7
s_cbranch_scc1 {lb}
v_cmp_ne_u32 vcc, s{S_NONCE}, v34
s_cmp_eq_u32 s{S_NONCE}, 0
s_cselect_b32 s60, 1, 0
s_nop 2
s_or_b32 s60, s60, vcc_lo
s_or_b32 s60, s60, vcc_hi
s_cbranch_scc0 {lb}""")
        wb_flag_wait(a)
        a.label(lb)
    PREBAR[8] = h_wb_check
    hooks1 = {1: h_pub, 2: lambda: a(f"v_readfirstlane_b32 s60, v35\ns_max_u32 s{S_NONCE}, s{S_NONCE}, s60"), 3: lambda: stamp(a, 2), 6: h_wb_issue, 9: lambda: stamp(a, 3)}
    def p1(swapped):
        VM[:] = VM0
        pstamp(a, 4)
        for half in range(2):
            lb = a.newlabel("pc")
            a(f"s_cmp_lg_u32 s{S_PREP}, 0\ns_cbranch_scc1 {lb}\ns_waitcnt vmcnt(2)")
            a.label(lb)
            dma_piece(a, 1, 2*half); dma_piece(a, 1, 2*half + 1)
            pstamp(a, 5 + half)
        a(f"v_mov_b32 v0, 0\nbuffer_load_dword v35, v0, {q4(SRD_DBG)}, 0 offen sc0 sc1\ns_barrier")
        VM.append("nonce")
        stamp(a, 1)
        for i in range(LA): reads(a, i, swapped == 'x')
        steps(a, 0, 40, swapped, hooks1)
    a(f"""
s_cmp_ge_u32 s{S_NT}, 5
s_cselect_b32 s54, 5, 0
s_sub_u32 s54, s{S_NT}, s54
s_lshl_b32 s54, s54, 4
s_lshl_b32 s56, s{S_FH}, 3
s_add_u32 s54, s54, s56
s_cmp_ge_u32 s{S_NT}, 5
s_mov_b32 s56, {64*1280}
s_cselect_b32 s58, {64*2560}, s56
s_mov_b32 s56, 1280
s_cselect_b32 s59, 2560, s56
s_mov_b32 s56, {QIMG}
s_cselect_b32 s63, {KVIMG}, s56
s_mov_b32 s56, {f32hex(QSCALE)}
s_cselect_b32 s64, 1.0, s56
s_mul_i32 s59, s59, s{S_T}
s_add_u32 s63, s63, s59
s_lshl_b32 s59, s58, 1
s_sub_u32 s65, s58, 1536
""")
    a(f"""
v_mov_b32 v36, v{VN}
v_add_u32 v38, s54, v{VH}
v_bfe_u32 v0, v{VN}, 2, 1
v_mul_u32_u24 v1, 3, v0
v_xor_b32 v1, v1, v{VN}
v_and_b32 v1, 3, v1
v_lshlrev_b32 v1, 4, v1
v_lshrrev_b32 v39, 3, v{VN}
v_lshl_add_u32 v39, v39, 6, v1
v_mul_lo_u32 v0, v0, s58
v_add_u32 v39, v39, v0
v_add_u32 v39, 1024, v39
""")
    for j in range(4):
        a(f"""v_add_u32 v0, {2*j}, v38
v_mul_u32_u24 v1, 205, v0
v_lshrrev_b32 v1, 10, v1
v_mul_u32_u24 v37, 5, v1
v_sub_u32 v0, v0, v37
v_mul_lo_u32 v1, v1, s59
v_add_u32 v1, s63, v1
v_cmp_lt_u32 vcc, 2, v0
v_lshl_add_u32 v37, v0, 9, v1
v_lshl_add_u32 v37, v36, 4, v37
v_add_u32 v{EA+j}, s65, v37
v_cndmask_b32 v37, v37, v{EA+j}, vcc
v_cmp_eq_u32 s[{SPM[j]}:{SPM[j]+1}], 2, v0
v_add_u32 v1, v1, v39
s_nop 0
v_cndmask_b32 v{EA+j}, v37, v1, s[{SPM[j]}:{SPM[j]+1}]""")
    p1(False)
    a("s_mov_b32 s65, s64\ns_nop 7\ns_nop 2")
    for j in range(4):
        r = ACC + 8*j
        for e in range(0, 8, 2):
            a(f"v_pk_mul_f32 {vr(r+e,2)}, {vr(r+e,2)}, s[64:65]")
        for e in range(4):
            a(f"v_cvt_pk_bf16_f32 v{HOLD[j]+e}, v{r+2*e}, v{r+2*e+1}")
    for j in range(4):
        h = HOLD[j]
        lb = a.newlabel("sp")
        a(f"""s_cmp_eq_u64 s[{SPM[j]}:{SPM[j]+1}], 0
s_cbranch_scc1 {lb}
s_mov_b64 exec, s[{SPM[j]}:{SPM[j]+1}]
v_mov_b64 v[0:1], {vr(h+2,2)}
v_mov_b32_dpp v{h+2}, v{h} row_half_mirror row_mask:0xf bank_mask:0x5
v_mov_b32_dpp v{h+3}, v{h+1} row_half_mirror row_mask:0xf bank_mask:0x5
v_mov_b32_dpp v{h}, v0 row_half_mirror row_mask:0xf bank_mask:0xa
v_mov_b32_dpp v{h+1}, v1 row_half_mirror row_mask:0xf bank_mask:0xa
s_mov_b64 exec, -1""")
        a.label(lb)
    a("s_branch L_p2")
    a.label("L_p1_x")
    a(f"s_cmp_eq_u32 s{S_PREP}, 0\ns_cbranch_scc1 L_x_ld")
    prep_compute(a, 0)
    a("s_barrier\ns_waitcnt vmcnt(0)")
    wb_flag_set(a)
    stamp(a, 6)
    a(f"""s_branch L_x_sync
L_x_ld:
s_barrier
s_sub_u32 s54, s{S_W}, 5
s_mul_i32 s54, s54, 3
s_sub_u32 s55, s54, s{S_W}
s_mul_i32 s55, s55, {16*1280}
v_add_u32 v36, s55, v{XG0}
v_add_u32 v37, s55, v{XG1}
s_lshl_b32 s54, s54, 11
s_mov_b32 s55, 0
L_x_loop:""")
    for i in range(3):
        if i == 2: a(f"s_cmp_eq_u32 s{S_W}, 7\ns_cbranch_scc1 L_x_next")
        a(f"""s_add_u32 m0, s54, {2048*i}
s_add_u32 s56, s55, {16*1280*i}
buffer_load_dwordx4 v36, {q4(SRD_X)}, s56 offen lds
s_add_u32 m0, s54, {2048*i + 1024}
s_nop 0
buffer_load_dwordx4 v37, {q4(SRD_X)}, s56 offen lds""")
    a(f"""L_x_next:
s_add_u32 s54, s54, 16384
s_add_u32 s55, s55, 128
s_cmp_lt_u32 s55, 1024
s_cbranch_scc1 L_x_loop
L_x_sync:
s_waitcnt vmcnt(0)
s_barrier""")
    stamp(a, 1)
    for st in (8, 9):
        for i in range(2):
            a(f"""s_add_u32 m0, s{S_LB}, {TOP + (st-8)*16384 + 1024*i}
s_movk_i32 s{S_XO}, {st*128}
buffer_load_dwordx4 v{XG0+i}, {q4(SRD_X)}, s{S_XO} offen lds""")
    for g in range(32):
        a(f"ds_read_b128 {vr(XR+4*g,4)}, v{XA+4*(g>>4)+(g&3)} offset:{((g>>2)&3)*16384}")
    for ks in range(4):
        a(f"v_add_u32 v{XA+ks}, 0x20000, v{XA+ks}")
    nonce_get(a)
    lb = a.newlabel("xw")
    a(f"s_cmp_lg_u32 s{S_W}, 7\ns_cbranch_scc1 {lb}")
    wb_flag_wait(a)
    a.label(lb)
    a("s_waitcnt vmcnt(0) lgkmcnt(0)\ns_barrier")
    stamp(a, 2)
    for g in range(32, 40):
        a(f"ds_read_b128 {vr(XR+4*g,4)}, v{XA+(g&3)} offset:{((g>>2)&1)*16384}")
    a(f"s_mov_b32 s{S_KR}, 2\ns_mov_b32 s{S_SEQ}, 0x76105432\ns_mov_b32 s{S_SEQ+1}, 0x98")
    for st in range(12, 16):
        for i in range(2): dma_piece(a, st, i)
    a("s_waitcnt lgkmcnt(0)\ns_barrier")
    for st in range(10, 12):
        for i in range(2): dma_piece(a, st, i)
    for i in range(4):
        a(f"v_mov_b32 v{EA+i}, {OOB}")
    a("s_waitcnt vmcnt(0)\ns_barrier")
    stamp(a, 3)
    reads(a, 40); reads(a, 41)
    a("s_branch L_p2")
    a.label("L_p1_v")
    a(f"""
s_sub_u32 s54, s{S_NT}, 10
s_lshl_b32 s54, s54, 7
s_lshl_b32 s56, s{S_FH}, 6
s_add_u32 s54, s54, s56
s_mul_i32 s63, s{S_T}, 2560
s_add_u32 s63, s63, {KVIMG + 1280}
s_mov_b32 s58, {64*2560}
v_mul_u32_u24 v36, 320, v{VH}
v_add_u32 v36, s63, v36
v_add_u32 v38, s54, v{VN}
""")
    for ft in range(2):
        a(f"""v_add_u32 v0, {32*ft}, v38
v_mul_u32_u24 v1, 3277, v0
v_lshrrev_b32 v1, 16, v1
v_mul_u32_u24 v37, 20, v1
v_sub_u32 v0, v0, v37
v_mul_lo_u32 v1, v1, s58
v_lshl_add_u32 v1, v0, 4, v1
v_add_u32 v{EA+2*ft}, v1, v36
v_add_u32 v{EA+2*ft+1}, 640, v{EA+2*ft}""")
    p1(True)
    a("s_nop 7\ns_nop 7")
    for j in range(4):
        for e in range(4):
            a(f"v_cvt_pk_bf16_f32 v{HOLD[j]+e}, v{ACC+8*j+2*e}, v{ACC+8*j+2*e+1}")
    a.label("L_p2")
    a(f"v_add_u32 v{WBR[0]}, 0xffff0000, v{WB}")
    def h_qkv():
        lb = a.newlabel("qa")
        a(f"s_cmp_lg_u32 s{S_W}, 7\ns_cbranch_scc1 {lb}")
        a(f"s_lshl_b32 s60, s{S_NT}, 4\ns_add_u32 s60, s60, s{S_MT}\ns_lshl_b32 s60, s60, 4\ns_add_u32 s60, s60, {FL_QKV}")
        flag_set(a, "s60")
        a.label(lb)
    stamp(a, 4)
    hooks2 = dict(p2hooks)
    hooks2[QST] = h_qkv
    steps(a, 40, 80, False, hooks2)
    stamp(a, 5)

T0, T1, T2, T3, T4, T5, T6, T7 = 194, 195, 196, 197, 198, 199, 216, 217
S_KVA = 79
def b_addr(a):
    a(f"""
s_lshl_b32 s54, s{S_TT}, 5
v_add_u32 v{T0}, s54, v{VN}
v_mul_u32_u24 v{T0}, {BROW}, v{T0}
v_add_u32 v{T0}, {STG}, v{T0}
v_mul_u32_u24 v{T2}, 48, v{VH}
v_add_u32 v{T2}, v{T2}, v{T0}
v_mul_u32_u24 v{T1}, 80, v{VH}
v_add_u32 v{T1}, v{T1}, v{T0}
s_and_b32 s57, s{S_W}, 1
s_bfe_u32 s58, s{S_W}, 0x10001
v_bfe_u32 v6, v{VL}, 2, 2
v_lshl_add_u32 v6, v{VH}, 3, v6
v_mul_u32_u24 v6, {BROW}, v6
v_bfe_u32 v7, v{VL}, 4, 1
v_lshl_add_u32 v6, v7, 5, v6
v_and_b32 v7, 3, v{VL}
v_lshl_add_u32 v6, v7, 3, v6
s_mul_i32 s54, s57, 48
s_add_u32 s54, s54, {160 + STG}
v_add_u32 v{T3}, s54, v6
s_mul_i32 s54, s57, 80
s_lshl_b32 s56, s58, 6
s_add_u32 s54, s54, s56
s_add_u32 s54, s54, {STG}
v_add_u32 v{T4}, s54, v6
s_lshl_b32 s{S_KVA}, s{S_NT}, 1
s_add_u32 s{S_KVA}, s{S_KVA}, s57
s_lshl_b32 s{S_KVA}, s{S_KVA}, 12
s_add_u32 s{S_KVA}, s{S_KVA}, {KVACC}
s_lshl_b32 s56, s58, 5
v_add_u32 v6, s56, v{VN}
v_cmp_gt_u32 vcc, 40, v6
v_lshlrev_b32 v6, 2, v6
v_mul_u32_u24 v7, 640, v{VH}
v_add_u32 v6, v6, v7
v_mov_b32 v7, {OOB}
v_cndmask_b32 v{T5}, v7, v6, vcc
v_cmp_gt_u32 vcc, 32, v{VL}
s_nop 1
v_cndmask_b32 v{T6}, v7, v{T5}, vcc
""")

def b_stage(a):
    for e in range(6):
        a(f"v_cvt_pk_bf16_f32 v{168+e}, v{ACC+20+2*e}, v{ACC+21+2*e}")
    a(f"""
s_cmp_eq_u32 s{S_FH}, 0
s_cbranch_scc0 L_b_k
ds_write_b128 v{T2}, v[168:171] offset:160
ds_write_b64 v{T2}, v[172:173] offset:176
v_mov_b64 {vr(PHQ_R+20,2)}, 0
v_mov_b64 {vr(PHQ_R+22,2)}, 0
""")
    for g in range(3):
        for e in range(4):
            a(f"v_permlane32_swap_b32 v{PHQ_R+8*g+e}, v{PHQ_R+8*g+4+e}")
    a(f"""
s_branch L_b_staged
L_b_k:
v_mul_f32 v{ACC+28}, {f32hex(-LOG2E)}, v{ACC+28}
v_exp_f32 v{ACC+28}, v{ACC+28}
v_mov_b32 v172, 0x3f80
v_add_f32 v{ACC+28}, 1.0, v{ACC+28}
v_rcp_f32 v174, v{ACC+28}
v_mov_b32 v173, 0
ds_write_b64 v{T2}, v[168:169] offset:184
ds_write_b128 v{T2}, v[170:173] offset:192
v_sub_f32 v175, 1.0, v174
""")
    for i in range(5):
        a(f"ds_write_b128 v{T1}, {vr(PHQ_R+4*i,4)} offset:{16*i}")
    a(f"""
ds_write_b32 v{T0}, v175 offset:256
s_cmp_lg_u32 s{S_NT}, 0
s_cbranch_scc1 L_b_staged
s_lshl_b32 s54, s{S_T}, 7
s_add_u32 s54, s54, {GATE}
v_lshlrev_b32 v0, 2, v{VN}
buffer_store_dword v174, v0, {q4(SRD_WS)}, s54 offen sc1
L_b_staged:
""")

def b_kv(a):
    a(f"""
s_cmp_eq_u32 s{S_FH}, 0
s_cbranch_scc0 L_b_k2
ds_read_b32 v{OMG}, v{T0} offset:256
s_branch L_b_done
L_b_k2:
""")
    KD, FR = 200, 168
    def kvreads(ks):
        b = FR + 8*(ks % 3)
        for aa in range(2):
            a(f"ds_read_b64_tr_b16 {vr(b+2*aa,2)}, v{T3} offset:{(16*ks+4*aa)*BROW}")
            a(f"ds_read_b64_tr_b16 {vr(b+4+2*aa,2)}, v{T4} offset:{(16*ks+4*aa)*BROW}")
    kvreads(0); kvreads(1)
    for ks in range(8):
        b = FR + 8*(ks % 3)
        if ks + 2 < 8: kvreads(ks + 2)
        a(f"s_waitcnt lgkmcnt({4*min(2, 7-ks)})")
        a(f"v_mfma_f32_32x32x16_bf16 {vr(KD,16)}, {vr(b,4)}, {vr(b+4,4)}, {'0' if ks == 0 else vr(KD,16)}")
    a.label("L_b_done")
def b_atomics(a):
    for r in range(12):
        ad = T6 if r > 8 else T5
        a(f"buffer_atomic_add_f32 v{200+r}, v{ad}, {q4(SRD_WS)}, s{S_KVA} offen offset:{(8*(r//4) + r%4)*160}")
```

```python
from asmlib import *
from layout import *
from f1 import VL, L16, VN, VH, flag_set, flag_wait, flag_peek, flag_check, nonce_get
if os.environ.get('RST'):
    def stamp(a, i): pass
SRD_WOA, SRD_WOB, SRD_OUT = SRD_X, SRD_WA, SRD_WB
S_MB, S_CT, S_T16 = 74, 75, 76
OL8 = 213
S_WOF = 73
GV = 221
OFB = 168
R1, R2, Z0, Z1 = 20608, 82432, 0, 61824
def lds_b(b): return R1 + 5120*b if b < 8 else R2 + 5120*(b-8) if b < 16 else R2 + 5120*(b-6)
def lds_a(b):
    if b < 2: return R2 + 5120*(8+b)
    if b < 6: return Z0 + 5120*(b-2)
    if b < 10: return Z1 + 5120*(b-6)
    if b < 18: return R1 + 5120*(b-10)
    return R2 + 5120*(b-18)
MB, LB = 40*1280, 160*1280

def p5_setup(a):
    a(f"""
s_load_dwordx2 s[54:55], s[0:1], 16
s_load_dwordx2 s[56:57], s[0:1], 48
s_load_dwordx2 s[58:59], s[0:1], 64
s_lshl_b32 s{S_MB}, s{S_XCD}, 2
s_and_b32 s60, s{S_J}, 3
s_add_u32 s{S_MB}, s{S_MB}, s60
s_lshr_b32 s{S_CT}, s{S_J}, 2
s_lshl_b32 s{S_T16}, s{S_MB}, 2
s_add_u32 s{S_T16}, s{S_T16}, s{S_TT}
s_mul_i32 s{S_WOF}, s{S_CT}, {40*5120}
s_add_u32 s{S_WOF}, s{S_WOF}, {WOF}
s_waitcnt lgkmcnt(0)
""")
    srd(a, SRD_WOA, 54, WO_BYTES); srd(a, SRD_WOB, 56, WO_BYTES); srd(a, SRD_OUT, 58, OUT_BYTES)

WSCR = 131072
def wo_sel(a, fn):
    lb = a.newlabel("wo")
    a(f"""s_sub_u32 s56, s{S_W}, 4
s_lshl_b32 s57, s56, 5
s_add_u32 s57, s57, s{S_MB}
s_cmp_ge_u32 s57, 40
s_cbranch_scc1 {lb}""")
    fn()
    a.label(lb)
def wo_issue(a):
    def f():
        l1, l2 = a.newlabel("wo"), a.newlabel("wo")
        a(f"""s_lshl_b32 s56, s56, 13
s_add_u32 s56, s56, {WSCR}
s_sub_u32 s58, s57, 20
s_cmp_ge_u32 s57, 20
s_cselect_b32 s58, s58, s57
s_sub_u32 s59, s58, 16
s_mul_i32 s59, s59, {LB}
s_add_u32 s59, s59, {16*1280}
s_mul_i32 s55, s58, {MB}
s_cmp_ge_u32 s58, 16
s_cselect_b32 s55, s59, s55
s_movk_i32 s59, {4*1280}
s_cselect_b32 s58, 0, s59
s_cselect_b32 s59, {20*1280}, s59
s_mul_i32 s54, s{S_CT}, 160
s_add_u32 s55, s55, s54
v_lshrrev_b32 v6, 4, v{VL}
v_mul_u32_u24 v6, 1280, v6
v_and_b32 v7, 15, v{VL}
v_min_u32 v7, 9, v7
v_lshl_add_u32 v6, v7, 4, v6
s_cmp_ge_u32 s57, 20
s_cbranch_scc1 {l1}""")
        for srd_, end in ((SRD_WOA, f"s_branch {l2}\n{l1}:"), (SRD_WOB, f"{l2}:")):
            for kq in range(8):
                i = (kq >> 1) + 4 * (kq & 1)
                a(f"s_add_u32 m0, s56, {i*1024}")
                a("s_add_u32 s55, s55, s58" if kq == 4 else "s_nop 0")
                a(f"buffer_load_dwordx4 v6, {q4(srd_)}, s55 offen lds")
                if kq < 7: a("s_add_u32 s55, s55, s59")
            a(end)
    wo_sel(a, f)
def wo_move(a):
    def f():
        a(f"""s_lshl_b32 s56, s56, 13
s_add_u32 s56, s56, {WSCR}
v_lshrrev_b32 v6, 2, v{VL}
v_and_b32 v7, 3, v{VL}
v_mul_u32_u24 v7, 40, v7
v_lshl_add_u32 v6, v6, 8, v7
v_add_u32 v6, s56, v6
s_waitcnt vmcnt(0)""")
        for t in range(5):
            for aa in range(2):
                a(f"ds_read_b64_tr_b16 {vr(168+4*t+2*aa,2)}, v6 offset:{aa*4096 + t*8}")
    wo_sel(a, f)
def wo_store(a):
    def f():
        a(f"""s_mul_i32 s55, s57, 5120
s_add_u32 s55, s55, s{S_WOF}
s_add_u32 s54, s55, 4096""")
        for t in range(5):
            a(f"buffer_store_dwordx4 {vr(168+4*t,4)}, v{L16}, {q4(SRD_WS)}, {'s55' if t < 4 else 's54'} offen offset:{(t&3)*1024} sc1")
    wo_sel(a, f)
def wo_flag(a):
    def f():
        a(f"""s_waitcnt vmcnt(0)
s_lshl_b32 s60, s{S_CT}, 6
s_add_u32 s60, s60, s57
s_lshl_b32 s60, s60, 4
s_add_u32 s60, s60, {FL_WO}""")
        flag_set(a, "s60")
    wo_sel(a, f)
WO_AD = f"s_lshl_b32 s60, s{S_CT}, 10\ns_add_u32 s60, s60, {FL_WO}"
OB_AD = f"s_lshr_b32 s60, s{S_T16}, 1\ns_lshl_b32 s60, s60, 8\ns_add_u32 s60, s60, {FL_OB}"
def only7(a, fn):
    lb = a.newlabel("w7")
    a(f"s_cmp_lg_u32 s{S_W}, 7\ns_cbranch_scc1 {lb}")
    fn()
    a.label(lb)
def wo_peek(a): only7(a, lambda: flag_peek(a, WO_AD, 40, 10))
def wo_check(a): only7(a, lambda: flag_check(a, WO_AD, 40, 10))
def ob_peek(a): flag_peek(a, OB_AD, 16, 10)
def wo_touch(a):
    lb = a.newlabel("wot")
    a(f"""s_cmp_ge_u32 s{S_W}, 3
s_cbranch_scc1 {lb}
s_and_b32 s54, s{S_MB}, 3
s_mul_i32 s54, s54, 3
s_add_u32 s54, s54, s{S_W}
s_mul_i32 s54, s54, {60*128}
s_add_u32 s54, s54, s{S_WOF}
s_add_u32 s54, s54, {2*5120}
v_min_u32 v6, 59, v{VL}
v_lshlrev_b32 v6, 7, v6
buffer_load_dword v11, v6, {q4(SRD_WS)}, s54 offen""")
    a.label(lb)

def blk_dma(a, s_lds, s_blk):
    a(f"""s_mul_i32 s60, {s_blk}, 5120
s_mov_b32 m0, {s_lds}
s_add_u32 s60, s60, s{S_WOF}
s_add_u32 s61, s60, 4096""")
    for i in range(4):
        a(f"buffer_load_dwordx4 v{L16}, {q4(SRD_WS)}, s60 offen offset:{i*1024} lds")
    a(f"s_add_u32 m0, {s_lds}, 4096\ns_nop 0\nbuffer_load_dwordx4 v{L16}, {q4(SRD_WS)}, s61 offen lds")

def p5_batch1(a, part):
    a(f"s_mul_i32 s54, s{S_W}, 5120")
    lb = a.newlabel("b1")
    if part == 0:
        a(f"s_add_u32 s56, s54, {R1}\ns_add_u32 s55, s{S_W}, 20")
    elif part == 1:
        a(f"s_add_u32 s56, s54, {R2}\ns_add_u32 s55, s{S_W}, 28")
    else:
        a(f"""s_add_u32 s56, s54, {R2 + 8*5120}
s_add_u32 s55, s{S_W}, 34
s_cmp_lt_u32 s{S_W}, 2
s_cselect_b32 s55, s{S_W}, s55
s_cmp_ge_u32 s{S_W}, 6
s_cbranch_scc1 {lb}""")
    blk_dma(a, "s56", "s55")
    a.label(lb)

def o_loads(a, base, dst):
    a(f"""s_mul_i32 s54, s{S_T16}, 20480
s_lshl_b32 s55, s{S_FH}, 10
s_add_u32 s54, s54, s55
s_add_u32 s54, s54, {base}""")
    for i in range(8):
        a(f"buffer_load_dwordx4 {vr(dst+4*i,4)}, v{L16}, {q4(SRD_WS)}, s54 offen offset:{(i&1)*2048} sc1")
        if i & 1: a("s_add_u32 s54, s54, 4096")
    for i in range(8, 10):
        for z in range(2):
            a(f"buffer_load_dwordx2 {vr(dst+4*i+2*z,2)}, v{OL8}, {q4(SRD_WS)}, s54 offen offset:{(i&1)*2048 + 128*z} sc1")

def p5_ob_issue(a):
    a("s_waitcnt vmcnt(0)")
    flag_check(a, OB_AD, 16, 10)
    o_loads(a, OBF, OFB)
    a(f"""s_lshl_b32 s54, s{S_T16}, 6
s_add_u32 s54, s54, {GATE}
v_and_b32 v6, 15, v{VL}
v_lshlrev_b32 v6, 2, v6
buffer_load_dword v{GV}, v6, {q4(SRD_WS)}, s54 offen sc1""")

OF = os.environ.get('OUTF', '')
GO2 = 159232 + 64
OUTA = 214
def p5_misc(a):
    a(f"""v_and_b32 v6, 15, v{VL}
s_lshl_b32 s54, s{S_T16}, 4
v_add_u32 v6, s54, v6
v_mul_u32_u24 v6, 1280, v6
v_lshrrev_b32 v7, 4, v{VL}
v_mul_u32_u24 v7, 40, v7
s_mul_i32 s54, s{S_CT}, 160
v_add3_u32 v{OUTA}, v6, v7, s54
v_lshrrev_b32 v6, 4, v{VL}
v_and_b32 v7, 15, v{VL}
v_lshlrev_b32 v7, 3, v7
v_lshl_add_u32 v{OL8}, v6, 8, v7
v_mov_b32 v6, {GO2}
v_mov_b32 v7, 0
ds_write_b32 v6, v7""")
    if os.environ.get("TLB"):
        a(f"s_mov_b64 exec, 1\nbuffer_load_dword v11, v{OUTA}, {q4(SRD_OUT)}, 0 offen\ns_mov_b64 exec, -1")

def gen_p5(a, s_qb_head_flag):
    P5ST = os.environ.get("P5ST")
    RB = 6
    ACA, ACB = 16, 36
    WF = [56, 76]
    OFA = 96
    PRE = [136, 156, 176, 222, 56, 76]
    NPRE = len(PRE)
    PUBI = int(os.environ.get('PUBI', '2'))
    o7 = lambda fn: only7(a, fn)
    a(f"""s_lshl_b32 s63, s{S_MB}, 10
s_add_u32 s63, s63, {FL_OA}
v_mov_b32 v9, {GO2}
s_barrier""")
    a(f"""s_mul_i32 s56, s{S_TT}, 5120
s_mul_i32 s57, s{S_FH}, {Z1}
s_add_u32 s56, s56, s57
s_add_u32 s59, s{S_W}, 2""")
    blk_dma(a, "s56", "s59")
    if P5ST == "2": stamp(a, 0)
    a(f"""
s_mul_i32 s56, s{S_FH}, 5120
v_add_u32 v{RB}, s56, v{L16}
v_add_u32 v{RB+1}, 57344, v{RB}
v_add_u32 v{RB+2}, 114688, v{RB}
""")
    def reads(addr, dst):
        k = addr // 57344
        for t in range(5):
            a(f"ds_read_b128 {vr(dst+4*t,4)}, v{RB+k} offset:{addr - k*57344 + t*1024}")
    def mm(acc, wf, of, first):
        for t in range(5):
            a(f"v_mfma_f32_16x16x32_bf16 {vr(acc+4*t,4)}, {vr(wf+4*t,4)}, {vr(of,4)}, {'0' if first else vr(acc+4*t,4)}")
    def partb(i0, i1, pre=None):
        reads(lds_b(2*i0), WF[i0 & 1])
        for i in range(i0, i1):
            if i + 1 < i1:
                reads(lds_b(2*i+2), WF[(i+1) & 1])
                a("s_waitcnt lgkmcnt(5)")
            else:
                a("s_waitcnt lgkmcnt(0)")
            if pre: pre(i)
            mm(ACB, WF[i & 1], OFB + 4*i, i == 0)
    def pub(i):
        if i == PUBI:
            a("s_waitcnt vmcnt(5)")
            flag_set(a, s_qb_head_flag)
            stamp(a, 5)
    partb(0, 5, pub)
    def chk():
        lb = a.newlabel("pk")
        a(f"""s_waitcnt vmcnt(0)
v_cmp_ne_u32 vcc, s{S_NONCE}, v12
v_mov_b32 v12, s{S_NONCE}
s_nop 2
s_cmp_lg_u64 vcc, 0
s_cbranch_scc1 {lb}
ds_write_b32 v9, v12
s_waitcnt lgkmcnt(0)""")
        a.label(lb)
    if P5ST == "2": stamp(a, 1)
    a("s_barrier")
    l2 = a.newlabel("b3")
    a(f"""s_mul_i32 s56, s{S_W}, 5120
s_add_u32 s56, s56, {R1}
s_add_u32 s55, s{S_W}, 10""")
    blk_dma(a, "s56", "s55")
    a(f"s_cmp_ge_u32 s{S_W}, 2\ns_cbranch_scc1 {l2}\ns_add_u32 s56, s56, {R2 - R1}\ns_add_u32 s55, s55, 8")
    blk_dma(a, "s56", "s55")
    a.label(l2)
    if P5ST == "2": stamp(a, 2)
    def peek(i):
        if i == 6: o7(lambda: a(f"buffer_load_dword v12, v{L16}, {q4(SRD_WS)}, s63 offen sc0 sc1"))
    partb(5, 10, peek)
    if P5ST: stamp(a, 3)
    o7(chk)
    a(f"""s_waitcnt vmcnt(0)
s_barrier
ds_read_b32 v12, v9
s_waitcnt lgkmcnt(0)
v_readfirstlane_b32 s58, v12
s_cmp_lg_u32 s58, s{S_NONCE}
s_cbranch_scc1 L_p5_late""")
    reads(lds_a(0), PRE[0]); reads(lds_a(2), PRE[1])
    o_loads(a, OAF, OFA)
    for i in range(2, NPRE):
        reads(lds_a(2*i), PRE[i])
    a("s_branch L_p5_go")
    a.label("L_p5_late")
    for i in range(NPRE):
        reads(lds_a(2*i), PRE[i])
    def poll():
        flag_wait(a, "s63", 64, sleep=1)
        a(f"v_mov_b32 v12, s{S_NONCE}\nds_write_b32 v9, v12")
    o7(poll)
    a(f"""s_mov_b32 s62, 0x4000000
L_p5_spin:
ds_read_b32 v12, v9
s_waitcnt lgkmcnt(0)
v_readfirstlane_b32 s58, v12
s_cmp_eq_u32 s58, s{S_NONCE}
s_cbranch_scc1 L_p5_ld
s_sub_u32 s62, s62, 1
s_cmp_lg_u32 s62, 0
s_cbranch_scc1 L_p5_spin
L_p5_ld:""")
    o_loads(a, OAF, OFA)
    a.label("L_p5_go")
    stamp(a, 6)
    outstanding = [10] * NPRE
    for i in range(10):
        later = sum(5 for j in range(i + 1, min(10, i + NPRE)))
        a(f"s_waitcnt vmcnt({11-i if i < 8 else 2*(9-i)}) lgkmcnt({min(15, later)})")
        if P5ST == "1" and i in (0, 4, 9): stamp(a, (0, 4, 9).index(i))
        mm(ACA, PRE[i % NPRE], OFA + 4*i, i == 0)
        if i + NPRE < 10: reads(lds_a(2*(i + NPRE)), PRE[i % NPRE])
    a(f"""
s_mul_i32 s54, s{S_TT}, 5120
s_add_u32 s54, s54, {R2 + 2*5120}
v_add_u32 v9, s54, v{L16}
s_nop 4
""")
    for i in range(20):
        a(f"v_fmac_f32 v{ACB+i}, v{ACA+i}, v{GV}")
    a(f"s_cmp_eq_u32 s{S_FH}, 0\ns_cbranch_scc1 L_p5_lo")
    for i in range(5):
        a(f"ds_write_b128 v9, {vr(ACB+4*i,4)} offset:{i*1024}")
    a("s_waitcnt lgkmcnt(0)\ns_barrier\ns_branch L_p5_end")
    a.label("L_p5_lo")
    a("s_barrier")
    for i in range(5):
        a(f"ds_read_b128 {vr(ACA+4*i,4)}, v9 offset:{i*1024}")
    a("s_waitcnt lgkmcnt(0)")
    for i in range(0, 20, 2):
        a(f"v_pk_add_f32 {vr(ACB+i,2)}, {vr(ACB+i,2)}, {vr(ACA+i,2)}")
    for e in range(10):
        a(f"v_cvt_pk_bf16_f32 v{ACA+e}, v{ACB+2*e}, v{ACB+2*e+1}")
    a(f"""
buffer_store_dwordx4 {vr(ACA,4)}, v{OUTA}, {q4(SRD_OUT)}, 0 offen {OF}
buffer_store_dwordx4 {vr(ACA+4,4)}, v{OUTA}, {q4(SRD_OUT)}, 0 offen offset:16 {OF}
buffer_store_dwordx2 {vr(ACA+8,2)}, v{OUTA}, {q4(SRD_OUT)}, 0 offen offset:32 {OF}
""")
    a.label("L_p5_end")
```

```python
from asmlib import *
from layout import *

NS = 4
TOP = NS * 32768
BROW = 272
STG = 126976
VL, L16, VN, VH = 2, 3, 4, 5
XG0, XG1, WG = 6, 7, 8
XA = 10
WA = 18
WB = 22
EA = 24
WFB = [40, 48, 248]
LA = 2
ACC = 56
XR = 88
DIST = 3
S_SEQ = 98
PREBAR = {}
FILL = {}
QST = int(os.environ.get('QST', '16'))
STG_STAMP = eval(os.environ.get('STG_STAMP', '{}'))
stamp2 = stamp
PRO = os.environ.get('PRO')
if STG_STAMP or PRO:
    def stamp(a, i): pass
def pstamp(a, i):
    if PRO: stamp2(a, i)
HOLD = [8, 12, 16, 32]
SPM = [4, 6, 74, 76]
STORE_AT = eval(os.environ.get('STORE_AT', '[40,44,48,52]'))
PHQ_R = 228
OMG = 252
S_XO, S_WO, S_KR, S_LB, S_T, S_PREP, S_WBB = 44, 45, 46, 47, 48, 49, 50

def common_init(a):
    a(f"""
s_and_b32 s{S_XCD}, s2, 7
s_lshr_b32 s{S_J}, s2, 3
v_lshrrev_b32 v1, 6, v0
v_and_b32 v{VL}, 63, v0
v_readfirstlane_b32 s{S_W}, v1
s_and_b32 s{S_MT}, s{S_XCD}, 1
s_lshl_b32 s{S_MT}, s{S_MT}, 3
s_and_b32 s52, s{S_J}, 7
s_add_u32 s{S_MT}, s{S_MT}, s52
s_lshr_b32 s{S_NT}, s{S_XCD}, 1
s_lshl_b32 s{S_NT}, s{S_NT}, 2
s_lshr_b32 s52, s{S_J}, 3
s_add_u32 s{S_NT}, s{S_NT}, s52
s_and_b32 s{S_TT}, s{S_W}, 3
s_lshr_b32 s{S_FH}, s{S_W}, 2
v_lshlrev_b32 v{L16}, 4, v{VL}
v_and_b32 v{VN}, 31, v{VL}
v_lshrrev_b32 v{VH}, 5, v{VL}
""")

def nonce_publish(a):
    lb = a.newlabel("np")
    a(f"""s_mov_b32 s{S_NONCE}, 0
s_xor_b32 s60, s{S_W}, 1
s_or_b32 s60, s2, s60
s_cmp_lg_u32 s60, 0
s_cbranch_scc1 {lb}
s_memrealtime s[60:61]
v_mov_b32 v9, 0
s_waitcnt lgkmcnt(0)
s_or_b32 s60, s60, 1
v_mov_b32 v1, s60
s_mov_b64 exec, 1
buffer_store_dword v1, v9, {q4(SRD_DBG)}, 0 offen sc0 sc1
s_mov_b64 exec, -1""")
    a.label(lb)

def nonce_clear(a):
    lb = a.newlabel("nc")
    a(f"""s_xor_b32 s60, s{S_W}, 4
s_or_b32 s60, s2, s60
s_cmp_lg_u32 s60, 0
s_cbranch_scc1 {lb}
v_mov_b32 v0, 0
s_mov_b64 exec, 1
buffer_store_dword v0, v0, {q4(SRD_DBG)}, 0 offen sc0 sc1
s_mov_b64 exec, -1""")
    a.label(lb)

def nonce_get(a):
    lp, dn = a.newlabel("ng"), a.newlabel("ngd")
    a(f"""s_cmp_lg_u32 s{S_NONCE}, 0
s_cbranch_scc1 {dn}
v_mov_b32 v0, 0
s_mov_b32 s62, 0x200000""")
    a.label(lp)
    a(f"""buffer_load_dword v1, v0, {q4(SRD_DBG)}, 0 offen sc0 sc1
s_waitcnt vmcnt(0)
v_readfirstlane_b32 s{S_NONCE}, v1
s_cmp_lg_u32 s{S_NONCE}, 0
s_cbranch_scc1 {dn}
s_sleep 8
s_sub_u32 s62, s62, 1
s_cmp_lg_u32 s62, 0
s_cbranch_scc1 {lp}""")
    a.label(dn)

def flag_set(a, off_sgpr):
    a(f"""v_mov_b32 v0, 0
v_mov_b32 v1, s{S_NONCE}
s_mov_b64 exec, 1
buffer_store_dword v1, v0, {q4(SRD_WS)}, {off_sgpr} offen sc0 sc1
s_mov_b64 exec, -1""")

def flag_wait(a, off_sgpr, nwords, sleep=10):
    lp, dn = a.newlabel("fw"), a.newlabel("fwd")
    if nwords <= 64:
        a(f"v_min_u32 v0, {nwords-1}, v{VL}\nv_lshlrev_b32 v0, 4, v0")
    a("s_mov_b32 s62, 0x200000")
    a.label(lp)
    if nwords <= 64:
        a(f"""buffer_load_dword v1, v0, {q4(SRD_WS)}, {off_sgpr} offen sc0 sc1
s_waitcnt vmcnt(0)
v_cmp_ne_u32 vcc, s{S_NONCE}, v1""")
    else:
        a(f"""buffer_load_dwordx4 v[36:39], v{L16}, {q4(SRD_WS)}, {off_sgpr} offen sc0 sc1
s_waitcnt vmcnt(0)
v_xor_b32 v36, s{S_NONCE}, v36
v_xor_b32 v37, s{S_NONCE}, v37
v_xor_b32 v38, s{S_NONCE}, v38
v_xor_b32 v39, s{S_NONCE}, v39
v_or3_b32 v36, v36, v37, v38
v_or_b32 v36, v36, v39
v_cmp_ne_u32 vcc, 0, v36""")
    a(f"""s_nop 3
s_cmp_eq_u64 vcc, 0
s_cbranch_scc1 {dn}
s_sleep {sleep}
s_sub_u32 s62, s62, 1
s_cmp_lg_u32 s62, 0
s_cbranch_scc1 {lp}""")
    a.label(dn)

def flag_peek(a, addr_code, nwords, dst):
    a(addr_code)
    a(f"""v_min_u32 v0, {nwords-1}, v{VL}
v_lshlrev_b32 v0, 4, v0
buffer_load_dword v{dst}, v0, {q4(SRD_WS)}, s60 offen sc0 sc1""")
def flag_check(a, addr_code, nwords, dst):
    lb = a.newlabel("fc")
    a(f"""v_cmp_ne_u32 vcc, s{S_NONCE}, v{dst}
s_nop 3
s_cmp_eq_u64 vcc, 0
s_cbranch_scc1 {lb}""")
    a(addr_code)
    flag_wait(a, "s60", nwords)
    a.label(lb)

def flag_wait2(a, off_sgpr, sleep=4):
    lp, dn = a.newlabel("fw"), a.newlabel("fwd")
    a("s_mov_b32 s62, 0x200000")
    a.label(lp)
    a(f"""buffer_load_dword v36, v0, {q4(SRD_WS)}, {off_sgpr} offen sc0 sc1
buffer_load_dword v37, v0, {q4(SRD_WS)}, {off_sgpr} offen offset:128 sc0 sc1
s_waitcnt vmcnt(0)
v_xor_b32 v36, s{S_NONCE}, v36
v_xor_b32 v37, s{S_NONCE}, v37
v_or_b32 v36, v36, v37
v_cmp_ne_u32 vcc, 0, v36
s_nop 3
s_cmp_eq_u64 vcc, 0
s_cbranch_scc1 {dn}
s_sleep {sleep}
s_sub_u32 s62, s62, 1
s_cmp_lg_u32 s62, 0
s_cbranch_scc1 {lp}""")
    a.label(dn)

def wb_flag_set(a):
    nonce_get(a)
    a(f"""s_lshl_b32 s60, s{S_P}, 5
s_add_u32 s60, s60, s{S_BLK}
s_lshl_b32 s60, s60, 4
s_add_u32 s60, s60, {FL_WB}""")
    flag_set(a, "s60")
def wb_flag_wait(a):
    nonce_get(a)
    a(f"""s_lshl_b32 s60, s{S_NT}, 9
s_add_u32 s60, s60, {FL_WB}""")
    flag_wait(a, "s60", 20)

VM = []
def vm_after(tag, prep=False):
    idx = max(i for i, t in enumerate(VM) if t == tag)
    return len([t for t in VM[idx+1:] if prep or not (isinstance(t, str) and t.startswith("p:"))])
P2SLOT = [131072, 147456, 65536, 82432, 98816, 0, 20608, 36992, 82432, 98816]
WBR = [20, 22, 23]
P2BAR = {10: 12, 11: None, 13: 15, 16: 17, 18: 19}

def dma_piece(a, st, i):
    slot = st % NS
    last = 3 if st < 10 else 1
    if st >= 10:
        if i == 0: a(f"s_lshl_b32 s{S_WO}, s{S_KR}, 14")
        a(f"s_add_u32 m0, s{S_LB}, {P2SLOT[st-10] + 1024*i}")
        a(f"s_add_u32 s{S_WO}, s{S_WO}, s{S_WBB}" if i == 0 else f"s_add_u32 s{S_WO}, s{S_WO}, 1024")
        a(f"buffer_load_dwordx4 v{L16}, {q4(SRD_WS)}, s{S_WO} offen lds")
    elif i < 2:
        a(f"""s_add_u32 m0, s{S_LB}, {slot*32768 + 1024*i}
s_lshl_b32 s{S_XO}, s{S_KR}, 7
buffer_load_dwordx4 v{XG0+i}, {q4(SRD_X)}, s{S_XO} offen lds""")
    else:
        a(f"s_add_u32 m0, s{S_LB}, {slot*32768 + 16384 + 1024*(i-2)}")
        a(f"s_mul_i32 s{S_WO}, s{S_KR}, {64*3840}" if i == 2 else f"s_add_u32 s{S_WO}, s{S_WO}, {4*3840}")
        a(f"buffer_load_dwordx4 v{WG}, {q4(SRD_WA)}, s{S_WO} offen lds")
    if i == last:
        if st == 9: a(f"s_mov_b64 s[{S_SEQ}:{S_SEQ+1}], s[{S_SEQ+2}:{S_SEQ+3}]")
        else: a(f"s_lshr_b64 s[{S_SEQ}:{S_SEQ+1}], s[{S_SEQ}:{S_SEQ+1}], 4")
        a(f"s_and_b32 s{S_KR}, s{S_SEQ}, 15")
    VM.append(("dma", st))
def dma_sched(ds, pc):
    if ds == 2: return [(2, 2*pc - 4), (2, 2*pc - 3)]
    if ds < 10: return [(ds, pc)]
    if ds == 10: return [(10 + pc, 0), (10 + pc, 1)] if pc < 3 else []
    if ds == 11: return [(13 + (pc >> 1), pc & 1)]
    if ds == 12: return [(15, pc)] if pc < 2 else []
    if ds == 13: return [(16 + (pc >> 1), pc & 1)]
    if ds == 18: return [(18 + pc, 0), (18 + pc, 1)] if pc < 2 else []
    return []
def dma(a, st):
    for i in range(4): dma_piece(a, st, i)

def reads(a, g, xonly=False):
    st, ks, wf = g >> 2, g & 3, WFB[g % 3]
    slot = st % NS
    hi = slot >= 2
    so = (slot & 1) * 32768
    if st < 10:
        a(f"ds_read_b128 {vr(XR+4*g,4)}, v{XA+4*hi+ks} offset:{so}")
        for ft in range(0 if xonly else 2):
            for aa in range(2):
                a(f"ds_read_b64_tr_b16 {vr(wf+4*ft+2*aa,2)}, v{WA+2*hi+ft} offset:{so + (16*ks+4*aa)*256}")
    elif st < 20:
        for ft in range(2):
            a(f"ds_read_b128 {vr(wf+4*ft,4)}, v{WBR[P2SLOT[st-10] >> 16]} offset:{(P2SLOT[st-10] & 65535) + ks*4096 + ft*1024}")
def nreads(g):
    return 5 if g < 40 else 2 if g < 80 else 0

def enter_stage(a, st):
    if st >= 10:
        if st == QST and st not in P2BAR:
            a(f"s_waitcnt vmcnt({vm_after('epi')})\ns_barrier")
            return
        if st not in P2BAR: return
    cov = P2BAR.get(st, st)
    if cov is None:
        a("s_barrier")
        return
    n, n2 = vm_after(("dma", cov)), vm_after(("dma", cov), True)
    assert st < 2 or n == n2
    if st == QST: n = min(n, vm_after("epi"))
    a(f"s_waitcnt vmcnt({n})")
    if st in PREBAR: PREBAR[st]()
    a("s_barrier")
    if st in STG_STAMP: stamp2(a, STG_STAMP[st])

def steps(a, g0, g1, swapped, hooks):
    for g in range(g0, g1):
        wf = WFB[g % 3]
        nst = (g + LA) >> 2
        if (g + LA) & 3 == 0 and nst < 20:
            enter_stage(a, nst)
        xonly = swapped == "x"
        reads(a, g + LA, xonly)
        if (g + LA) & 3 == 0 and nst in hooks: hooks[nst]()
        a(f"s_waitcnt lgkmcnt({LA if xonly else sum(nreads(g+i) for i in range(1, LA+1))})")
        for ft in range(0 if xonly else 2):
            A, B = vr(wf+4*ft,4), vr(XR+4*(g%40),4)
            if swapped: A, B = B, A
            c = "0" if g % 40 == 0 else vr(ACC+16*ft,16)
            a(f"v_mfma_f32_32x32x16_bf16 {vr(ACC+16*ft,16)}, {A}, {B}, {c}")
            for ln in FILL.get((g, ft), []): a.raw(ln)
        ds, pc = ((g + LA) >> 2) + DIST - 1, (g + LA) & 3
        for x in dma_sched(ds, pc): dma_piece(a, *x)
        for j in [j for j in range(4) if int(STORE_AT[j]) == g]:
            a(f"buffer_store_dwordx4 {vr(HOLD[j],4)}, v{EA+j}, {q4(SRD_WS)}, 0 offen sc1")
            VM.append("epi")

def set_fill(fn, g0, g1):
    t = Asm(); fn(t)
    lines = [l for l in t.lines if l.strip() and not l.strip().startswith(";")]
    slots = [(g, ft) for g in range(g0, g1) for ft in range(2)]
    per = -(-len(lines) // len(slots))
    for i, sl in enumerate(slots):
        FILL.setdefault(sl, []).extend(lines[i*per:(i+1)*per])

def set_block(fn, g):
    t = Asm(); fn(t)
    FILL.setdefault((g, 1), []).extend(t.lines)

def swap23(a, dst, src, tmp):
    a(f"""v_and_b32 v{dst}, 0x13, v{src}
v_bfe_u32 v{tmp}, v{src}, 2, 1
v_lshl_or_b32 v{dst}, v{tmp}, 3, v{dst}
v_bfe_u32 v{tmp}, v{src}, 3, 1
v_lshl_or_b32 v{dst}, v{tmp}, 2, v{dst}""")

AF, GT, PM, PL, IA, IB, D = 124, 160, 168, 180, 192, 204, 216
S_U, S_P, S_BLK = 51, 52, 53
def prep_addr(a):
    a(f"""
s_mul_i32 s57, s{S_P}, 1600
s_mul_i32 s55, s{S_W}, 10496
s_cmp_eq_u32 s{S_NT}, 15
s_cselect_b32 s55, s55, {TOP}
v_cmp_gt_u32 vcc, 36, v{VL}
v_mov_b32 v37, {OOB}
v_and_b32 v36, 15, v{VL}
v_cndmask_b32 v32, v37, v{L16}, vcc
v_cmp_gt_u32 vcc, 15, v36
v_mul_u32_u24 v38, 205, v36
v_lshrrev_b32 v38, 10, v38
v_mul_u32_u24 v38, 1200, v38
v_lshl_add_u32 v36, v36, 4, v38
v_lshrrev_b32 v38, 4, v{VL}
v_mul_u32_u24 v38, 3840, v38
v_add_u32 v36, v36, v38
v_cndmask_b32 v33, v37, v36, vcc
s_mul_i32 s58, s{S_BLK}, {32*3840}
s_mul_i32 s56, s{S_P}, 80
s_add_u32 s58, s58, s56
v_lshlrev_b32 v34, 4, v{VH}
s_lshl_b32 s59, s{S_BLK}, 6
""")
def prep_issue(a):
    a(f"""s_mov_b32 m0, s55
s_nop 0
buffer_load_dwordx4 v{L16}, {q4(SRD_PHI)}, s57 offen lds
buffer_load_dwordx4 v32, {q4(SRD_PHI)}, s57 offen offset:1024 lds""")
    for i in range(8):
        a(f"s_add_u32 m0, s55, {2048 + 1040*i}")
        a(f"s_add_u32 s58, s58, {4*3840}" if i else "s_nop 0")
        a(f"buffer_load_dwordx4 v33, {q4(SRD_WB)}, s58 offen lds")
    a(f"""buffer_load_dwordx4 {vr(GT,4)}, v34, {q4(SRD_GATE)}, s59 offen
buffer_load_dwordx4 {vr(GT+4,4)}, v34, {q4(SRD_GATE)}, s59 offen offset:32""")

def prep_compute(a, nyounger):
    a(f"""
v_bfe_u32 v36, v{VL}, 2, 2
v_lshl_add_u32 v36, v{VH}, 3, v36
v_and_b32 v37, 1, v{VL}
v_mul_u32_u24 v37, 20, v37
v_sub_u32 v38, v36, v37
v_bfe_u32 v39, v{VL}, 1, 1
v_bfe_u32 v1, v{VL}, 4, 1
v_lshl_add_u32 v39, v1, 1, v39
v_mul_u32_u24 v36, 40, v36
v_add_u32 v36, s55, v36
v_lshl_add_u32 v0, v39, 3, v36
v_cmp_eq_u32 s[58:59], 0, v39
s_add_u32 s57, s55, 1600
v_mov_b32 v37, s57
s_waitcnt vmcnt({nyounger + 10})
""")
    for u in range(3):
        for aa in range(2):
            k0 = 16*u + 4*aa
            a(f"""v_add_u32 v1, {k0}, v38
v_cmp_gt_u32 vcc, 20, v1
v_add_u32 v1, {k0*40}, v0
v_add_u32 v39, {k0*40 + 32}, v36
v_cndmask_b32 v1, v37, v1, vcc
s_and_b64 vcc, vcc, s[58:59]
ds_read_b64_tr_b16 {vr(PM+4*u+2*aa,2)}, v1
v_cndmask_b32 v39, v37, v39, vcc
ds_read_b64_tr_b16 {vr(PL+4*u+2*aa,2)}, v39""")
    a(f"""
v_and_b32 v0, 3, v{VN}
v_lshlrev_b32 v0, 4, v0
v_mov_b32 v36, 0x3f80
v_mov_b32 v37, 0
v_lshlrev_b64 v[36:37], v0, v[36:37]
v_bfe_u32 v0, v{VN}, 2, 1
v_mul_u32_u24 v0, 5, v0
v_lshrrev_b32 v1, 3, v{VN}
v_add_u32 v0, v0, v1
v_lshlrev_b32 v38, 1, v{VH}
v_sub_u32 v0, v0, v38
v_cmp_eq_u32 vcc, 0, v1
v_mov_b32 v38, 99
s_nop 0
v_cndmask_b32 v0, v0, v38, vcc
v_cmp_eq_u32 s[58:59], 3, v1
""")
    for u in range(3):
        for aa in range(2):
            kq = 4*u + aa
            a(f"""v_cmp_eq_u32 vcc, {kq+1}, v0
s_nop 1
v_cndmask_b32 v{IA+4*u+2*aa}, 0, v36, vcc
v_cndmask_b32 v{IA+4*u+2*aa+1}, 0, v37, vcc
v_cmp_eq_u32 vcc, {kq-2}, v0
s_nop 1
v_cndmask_b32 v{IB+4*u+2*aa}, 0, v36, vcc
v_cndmask_b32 v{IB+4*u+2*aa+1}, 0, v37, vcc""")
    a(f"""
s_mul_i32 s54, s{S_P}, {40*4096}
s_lshl_b32 s56, s{S_BLK}, 13
s_add_u32 s54, s54, s56
s_add_u32 s54, s54, {WBF}
s_add_u32 s56, s54, 4096
""")
    swap23(a, 36, VN, 38)
    a(f"""v_lshrrev_b32 v37, 2, v36
v_mul_u32_u24 v37, 1040, v37
v_and_b32 v36, 3, v36
v_lshl_add_u32 v36, v36, 8, v37
v_lshl_add_u32 v36, v{VH}, 4, v36
v_add_u32 v36, s55, v36
s_waitcnt vmcnt({nyounger})""")
    for seg in range(3):
        for u in range(3):
            a(f"ds_read_b128 {vr(AF+4*(3*seg+u),4)}, v36 offset:{2048 + 80*seg + 32*u}")
    a("s_waitcnt lgkmcnt(0)")

    plan = [[(0, PM)], [(0, PL), (2, IA)], [(1, PM)], [(1, PL), (2, IB)]]
    def mm(t):
        d = D + 16*(t & 1)
        first = True
        for seg, fr in plan[t]:
            for u in range(3):
                a(f"v_mfma_f32_32x32x16_bf16 {vr(d,16)}, {vr(AF+4*(3*seg+u),4)}, {vr(fr+4*u,4)}, {'0' if first else vr(d,16)}")
                first = False
    def fin(t):
        d = D + 16*(t & 1)
        for g in range(2):
            r = d + 8*g
            for e in range(4):
                a(f"v_cvt_pk_bf16_f32 v{r+e}, v{r+2*e}, v{r+2*e+1}")
            if t == 3:
                for e in range(4):
                    a(f"v_cndmask_b32 v{r+e}, v{r+e}, v{GT+4*g+e}, s[58:59]")
        a(f"""buffer_store_dwordx4 {vr(d,4)}, v{L16}, {q4(SRD_WS)}, s54 offen offset:{t*1024} sc1
buffer_store_dwordx4 {vr(d+8,4)}, v{L16}, {q4(SRD_WS)}, s56 offen offset:{t*1024} sc1""")
    mm(0); mm(1); a("s_waitcnt vmcnt(0)\ns_nop 6"); fin(0); a("s_nop 1"); mm(2); fin(1); a("s_nop 1"); mm(3); fin(2); a("s_nop 3"); fin(3)
    lb = a.newlabel("nz")
    a(f"""
s_cmp_lg_u32 s{S_BLK}, 0
s_cbranch_scc1 {lb}
s_lshl_b32 s54, s{S_P}, 13
s_add_u32 s54, s54, {KVACC}
s_add_u32 s56, s54, 4096
v_mov_b32 v{AF}, 0
v_mov_b32 v{AF+1}, 0
v_mov_b32 v{AF+2}, 0
v_mov_b32 v{AF+3}, 0
""")
    for i in range(4):
        a(f"""buffer_store_dwordx4 {vr(AF,4)}, v{L16}, {q4(SRD_WS)}, s54 offen offset:{i*1024} sc1
buffer_store_dwordx4 {vr(AF,4)}, v{L16}, {q4(SRD_WS)}, s56 offen offset:{i*1024} sc1""")
    a.label(lb)

def phi(a, u, dst, EP, T):
    mx, mn, sp, sn = T, T+2, T+2, T+4
    a(f"v_max3_f32 v{mx}, v{u}, v{u+1}, v{u+2}\nv_min3_f32 v{mn}, v{u}, v{u+1}, v{u+2}")
    for e in range(3, 19, 2):
        a(f"v_max3_f32 v{mx}, v{u+e}, v{u+e+1}, v{mx}\nv_min3_f32 v{mn}, v{u+e}, v{u+e+1}, v{mn}")
    a(f"v_max_f32 v{mx}, v{u+19}, v{mx}\nv_min_f32 v{mn}, v{u+19}, v{mn}")
    a(f"""s_mov_b32 s54, {f32hex(LOG2E)}
s_mov_b32 s55, s54
v_mul_f32 v{mx+1}, s54, v{mx}
v_mul_f32 v{mn+1}, s54, v{mn}
v_mul_f32 v{mx}, s54, v{mx}
v_mul_f32 v{mn}, s54, v{mn}""")
    for e in range(0, 20, 2):
        a(f"v_pk_fma_f32 {vr(EP+e,2)}, {vr(u+e,2)}, s[54:55], {vr(mn,2)} neg_lo:[1,0,0] neg_hi:[1,0,0]")
        a(f"v_pk_fma_f32 {vr(u+e,2)}, {vr(u+e,2)}, s[54:55], {vr(mx,2)} neg_lo:[0,0,1] neg_hi:[0,0,1]")
    for e in range(20):
        a(f"v_exp_f32 v{EP+e}, v{EP+e}\nv_exp_f32 v{u+e}, v{u+e}")
    a(f"v_pk_add_f32 {vr(sp,2)}, {vr(u,2)}, {vr(u+2,2)}\nv_pk_add_f32 {vr(sn,2)}, {vr(EP,2)}, {vr(EP+2,2)}")
    for e in range(4, 20, 2):
        a(f"v_pk_add_f32 {vr(sp,2)}, {vr(sp,2)}, {vr(u+e,2)}\nv_pk_add_f32 {vr(sn,2)}, {vr(sn,2)}, {vr(EP+e,2)}")
    a(f"""v_add_f32 v{sp}, v{sp}, v{sp+1}
v_add_f32 v{sn}, v{sn}, v{sn+1}
v_rcp_f32 v{sp}, v{sp}
v_rcp_f32 v{sn}, v{sn}
v_mov_b32 v{sp+1}, v{sp}
v_mov_b32 v{sn+1}, v{sn}""")
    for e in range(0, 20, 2):
        a(f"v_pk_mul_f32 {vr(u+e,2)}, {vr(u+e,2)}, {vr(sp,2)}")
        a(f"v_pk_mul_f32 {vr(EP+e,2)}, {vr(EP+e,2)}, {vr(sn,2)}")
    for e in range(10):
        a(f"v_cvt_pk_bf16_f32 v{dst+e}, v{u+2*e}, v{u+2*e+1}\nv_cvt_pk_bf16_f32 v{dst+10+e}, v{EP+2*e}, v{EP+2*e+1}")

def gen_p12(a, p2hooks):
    a(f"""
s_mov_b32 s{S_P}, s{S_NT}
s_mov_b32 s{S_BLK}, s{S_MT}
s_cmp_eq_u32 s{S_W}, 0
s_cselect_b32 s{S_PREP}, 1, 0
s_cbranch_scc1 L_p_sel
s_cmp_lg_u32 s{S_NT}, 15
s_cbranch_scc1 L_p_sel
s_and_b32 s{S_P}, s{S_MT}, 3
s_lshl_b32 s{S_P}, s{S_P}, 2
s_add_u32 s{S_P}, s{S_P}, s{S_W}
s_sub_u32 s{S_P}, s{S_P}, 1
s_lshr_b32 s{S_BLK}, s{S_MT}, 2
s_add_u32 s{S_BLK}, s{S_BLK}, 16
s_cmp_lt_u32 s{S_W}, 5
s_cselect_b32 s{S_PREP}, 1, 0
L_p_sel:
""")
    VM.clear()
    E = os.environ.get
    def do_prep(fn):
        lb = a.newlabel("pp")
        a(f"s_cmp_eq_u32 s{S_PREP}, 0\ns_cbranch_scc1 {lb}")
        fn(a)
        a.label(lb)
    do_prep(prep_addr)
    ROT = E("ROT", "sched")
    if ROT == "sched": seqs = eval(E("SEQS", "[[0,4,1,2,3,8,5,6,7,9],[1,0,5,2,3,4,9,6,7,8],[2,3,0,6,1,4,5,7,8,9],[3,2,0,1,7,4,5,6,8,9]]"))
    else: seqs = [[(o + i) % 10 for i in range(10)] for o in (0, 3, 5, 8)]
    pk = lambda q: sum(v << (4*i) for i, v in enumerate(q))
    a(f"s_lshr_b32 s54, s{S_J}, 3\ns_add_u32 s54, s54, s{S_J}\ns_and_b32 s54, s54, 3")
    for c in range(4):
        assert sorted(seqs[c]) == list(range(10))
        op = "s_mov_b32" if c == 0 else "s_cmov_b32"
        if c: a(f"s_cmp_eq_u32 s54, {c}")
        a(f"{op} s{S_SEQ}, {hex(pk(seqs[c]) & 0xffffffff)}\n{op} s{S_SEQ+1}, {hex(pk(seqs[c]) >> 32)}")
    a(f"s_mov_b64 s[{S_SEQ+2}:{S_SEQ+3}], s[{S_SEQ}:{S_SEQ+1}]\ns_and_b32 s{S_KR}, s{S_SEQ}, 15")
    a(f"""
v_lshrrev_b32 v36, 3, v{VL}
s_lshl_b32 s54, s{S_MT}, 7
s_lshl_b32 s56, s{S_W}, 4
s_add_u32 s54, s54, s56
v_add_u32 v36, s54, v36
v_mul_u32_u24 v36, 1280, v36
v_lshrrev_b32 v37, 4, v{VL}
v_and_b32 v38, 7, v{VL}
v_xor_b32 v38, v38, v37
v_lshlrev_b32 v38, 4, v38
v_add_u32 v{XG0}, v36, v38
v_xor_b32 v38, 64, v38
v_add_u32 v{XG1}, v36, v38
v_add_u32 v{XG1}, {8*1280}, v{XG1}
s_lshl_b32 s54, s{S_W}, 3
v_add_u32 v36, s54, v37
v_mul_u32_u24 v36, 3840, v36
v_and_b32 v38, 15, v{VL}
v_lshlrev_b32 v37, 2, v37
v_xor_b32 v38, v38, v37
v_lshlrev_b32 v38, 4, v38
v_add_u32 v36, v36, v38
s_lshl_b32 s54, s{S_NT}, 8
v_add_u32 v{WG}, s54, v36
s_lshl_b32 s{S_LB}, s{S_W}, 11
s_mul_i32 s{S_WBB}, s{S_NT}, {40*4096}
s_add_u32 s{S_WBB}, s{S_WBB}, s{S_LB}
s_add_u32 s{S_WBB}, s{S_WBB}, {WBF}
""")
    a("s_waitcnt lgkmcnt(0)")
    pstamp(a, 1)
    nonce_publish(a)
    do_prep(prep_issue)
    a(f"s_cmp_eq_u32 s{S_NT}, 15\ns_cbranch_scc1 L_p_nodma")
    dma(a, 0)
    pstamp(a, 2)
    a.label("L_p_nodma")
    if E("CODEPF"):
        lb = a.newlabel("cpf")
        a(f"""s_cmp_lg_u32 s{S_W}, 2
s_cbranch_scc1 {lb}
s_getpc_b64 s[60:61]
L_cpf_pc:
s_lshl_b32 s62, s{S_J}, 11
v_and_b32 v36, 15, v{VL}
v_lshlrev_b32 v36, 7, v36
v_add_u32 v36, s62, v36
v_min_u32 v36, L_end1-L_cpf_pc, v36
global_load_dword v9, v36, s[60:61]""")
        a.label(lb)
    a(f"""
s_lshl_b32 s54, s{S_TT}, 12
v_lshlrev_b32 v36, 7, v{VN}
v_add_u32 v36, s54, v36
v_bfe_u32 v37, v{VN}, 1, 3
v_xor_b32 v37, v37, v{VH}
""")
    for ks in range(4):
        a(f"""v_xor_b32 v38, {2*ks}, v37
v_lshl_add_u32 v{XA+ks}, v38, 4, v36
v_add_u32 v{XA+4+ks}, 0x10000, v{XA+ks}""")
    a(f"""
v_bfe_u32 v36, v{VL}, 2, 2
v_lshl_add_u32 v37, v{VH}, 3, v36
v_lshlrev_b32 v37, 8, v37
v_add_u32 v37, 16384, v37
v_and_b32 v38, 1, v{VL}
v_bfe_u32 v1, v{VL}, 1, 1
s_cmp_ge_u32 s{S_NT}, 10
s_cselect_b64 vcc, -1, 0
v_cndmask_b32 v0, v1, v38, vcc
v_cndmask_b32 v1, v38, v1, vcc
v_lshl_add_u32 v37, v0, 3, v37
v_bfe_u32 v38, v{VL}, 4, 1
v_lshl_add_u32 v38, v38, 1, v1
s_lshl_b32 s54, s{S_FH}, 3
v_add_u32 v38, s54, v38
v_lshlrev_b32 v36, 2, v36
v_xor_b32 v38, v38, v36
v_lshl_add_u32 v{WA}, v38, 4, v37
v_xor_b32 v38, 4, v38
v_lshl_add_u32 v{WA+1}, v38, 4, v37
v_add_u32 v{WA+2}, 0x10000, v{WA}
v_add_u32 v{WA+3}, 0x10000, v{WA+1}
s_lshl_b32 s54, s{S_FH}, 11
s_add_u32 s54, s54, 65536
v_add_u32 v{WB}, s54, v{L16}
v_add_u32 v{WB+1}, 0x10000, v{WB}
s_lshl_b32 s{S_T}, s{S_MT}, 2
s_add_u32 s{S_T}, s{S_T}, s{S_TT}
""")
    a(f"s_cmp_eq_u32 s{S_NT}, 15\ns_cbranch_scc1 L_p1_x")
    do_prep(lambda a: prep_compute(a, 4))
    pstamp(a, 3)
    VM0 = list(VM)
    a(f"""
s_cmp_ge_u32 s{S_NT}, 10
s_cbranch_scc1 L_p1_v
""")
    def h_pub():
        lb = a.newlabel("pa")
        a(f"s_cmp_eq_u32 s{S_PREP}, 0\ns_cbranch_scc1 {lb}")
        a(f"s_waitcnt vmcnt({vm_after('nonce', True)})\nv_readfirstlane_b32 s{S_NONCE}, v35")
        wb_flag_set(a)
        a.label(lb)
    def h_wb_issue():
        lb = a.newlabel("pw")
        a(f"""s_cmp_lg_u32 s{S_W}, 7
s_cbranch_scc1 {lb}
s_lshl_b32 s60, s{S_NT}, 9
s_add_u32 s60, s60, {FL_WB}
v_min_u32 v0, 19, v{VL}
v_lshlrev_b32 v0, 4, v0
buffer_load_dword v34, v0, {q4(SRD_WS)}, s60 offen sc0 sc1""")
        a.label(lb)
    def h_wb_check():
        lb = a.newlabel("pw")
        a(f"""s_cmp_lg_u32 s{S_W}, 7
s_cbranch_scc1 {lb}
v_cmp_ne_u32 vcc, s{S_NONCE}, v34
s_cmp_eq_u32 s{S_NONCE}, 0
s_cselect_b32 s60, 1, 0
s_nop 2
s_or_b32 s60, s60, vcc_lo
s_or_b32 s60, s60, vcc_hi
s_cbranch_scc0 {lb}""")
        wb_flag_wait(a)
        a.label(lb)
    PREBAR[8] = h_wb_check
    hooks1 = {1: h_pub, 2: lambda: a(f"v_readfirstlane_b32 s60, v35\ns_max_u32 s{S_NONCE}, s{S_NONCE}, s60"), 3: lambda: stamp(a, 2), 6: h_wb_issue, 9: lambda: stamp(a, 3)}
    def p1(swapped):
        VM[:] = VM0
        pstamp(a, 4)
        for half in range(2):
            lb = a.newlabel("pc")
            a(f"s_cmp_lg_u32 s{S_PREP}, 0\ns_cbranch_scc1 {lb}\ns_waitcnt vmcnt(2)")
            a.label(lb)
            dma_piece(a, 1, 2*half); dma_piece(a, 1, 2*half + 1)
            pstamp(a, 5 + half)
        a(f"v_mov_b32 v0, 0\nbuffer_load_dword v35, v0, {q4(SRD_DBG)}, 0 offen sc0 sc1\ns_barrier")
        VM.append("nonce")
        stamp(a, 1)
        for i in range(LA): reads(a, i, swapped == 'x')
        steps(a, 0, 40, swapped, hooks1)
    a(f"""
s_cmp_ge_u32 s{S_NT}, 5
s_cselect_b32 s54, 5, 0
s_sub_u32 s54, s{S_NT}, s54
s_lshl_b32 s54, s54, 4
s_lshl_b32 s56, s{S_FH}, 3
s_add_u32 s54, s54, s56
s_cmp_ge_u32 s{S_NT}, 5
s_mov_b32 s56, {64*1280}
s_cselect_b32 s58, {64*2560}, s56
s_mov_b32 s56, 1280
s_cselect_b32 s59, 2560, s56
s_mov_b32 s56, {QIMG}
s_cselect_b32 s63, {KVIMG}, s56
s_mov_b32 s56, {f32hex(QSCALE)}
s_cselect_b32 s64, 1.0, s56
s_mul_i32 s59, s59, s{S_T}
s_add_u32 s63, s63, s59
s_lshl_b32 s59, s58, 1
s_sub_u32 s65, s58, 1536
""")
    a(f"""
v_mov_b32 v36, v{VN}
v_add_u32 v38, s54, v{VH}
v_bfe_u32 v0, v{VN}, 2, 1
v_mul_u32_u24 v1, 3, v0
v_xor_b32 v1, v1, v{VN}
v_and_b32 v1, 3, v1
v_lshlrev_b32 v1, 4, v1
v_lshrrev_b32 v39, 3, v{VN}
v_lshl_add_u32 v39, v39, 6, v1
v_mul_lo_u32 v0, v0, s58
v_add_u32 v39, v39, v0
v_add_u32 v39, 1024, v39
""")
    for j in range(4):
        a(f"""v_add_u32 v0, {2*j}, v38
v_mul_u32_u24 v1, 205, v0
v_lshrrev_b32 v1, 10, v1
v_mul_u32_u24 v37, 5, v1
v_sub_u32 v0, v0, v37
v_mul_lo_u32 v1, v1, s59
v_add_u32 v1, s63, v1
v_cmp_lt_u32 vcc, 2, v0
v_lshl_add_u32 v37, v0, 9, v1
v_lshl_add_u32 v37, v36, 4, v37
v_add_u32 v{EA+j}, s65, v37
v_cndmask_b32 v37, v37, v{EA+j}, vcc
v_cmp_eq_u32 s[{SPM[j]}:{SPM[j]+1}], 2, v0
v_add_u32 v1, v1, v39
s_nop 0
v_cndmask_b32 v{EA+j}, v37, v1, s[{SPM[j]}:{SPM[j]+1}]""")
    p1(False)
    a("s_mov_b32 s65, s64\ns_nop 7\ns_nop 2")
    for j in range(4):
        r = ACC + 8*j
        for e in range(0, 8, 2):
            a(f"v_pk_mul_f32 {vr(r+e,2)}, {vr(r+e,2)}, s[64:65]")
        for e in range(4):
            a(f"v_cvt_pk_bf16_f32 v{HOLD[j]+e}, v{r+2*e}, v{r+2*e+1}")
    for j in range(4):
        h = HOLD[j]
        lb = a.newlabel("sp")
        a(f"""s_cmp_eq_u64 s[{SPM[j]}:{SPM[j]+1}], 0
s_cbranch_scc1 {lb}
s_mov_b64 exec, s[{SPM[j]}:{SPM[j]+1}]
v_mov_b64 v[0:1], {vr(h+2,2)}
v_mov_b32_dpp v{h+2}, v{h} row_half_mirror row_mask:0xf bank_mask:0x5
v_mov_b32_dpp v{h+3}, v{h+1} row_half_mirror row_mask:0xf bank_mask:0x5
v_mov_b32_dpp v{h}, v0 row_half_mirror row_mask:0xf bank_mask:0xa
v_mov_b32_dpp v{h+1}, v1 row_half_mirror row_mask:0xf bank_mask:0xa
s_mov_b64 exec, -1""")
        a.label(lb)
    a("s_branch L_p2")
    a.label("L_p1_x")
    a(f"s_cmp_eq_u32 s{S_PREP}, 0\ns_cbranch_scc1 L_x_ld")
    prep_compute(a, 0)
    a("s_barrier\ns_waitcnt vmcnt(0)")
    wb_flag_set(a)
    stamp(a, 6)
    a(f"""s_branch L_x_sync
L_x_ld:
s_barrier
s_sub_u32 s54, s{S_W}, 5
s_mul_i32 s54, s54, 3
s_sub_u32 s55, s54, s{S_W}
s_mul_i32 s55, s55, {16*1280}
v_add_u32 v36, s55, v{XG0}
v_add_u32 v37, s55, v{XG1}
s_lshl_b32 s54, s54, 11
s_mov_b32 s55, 0
L_x_loop:""")
    for i in range(3):
        if i == 2: a(f"s_cmp_eq_u32 s{S_W}, 7\ns_cbranch_scc1 L_x_next")
        a(f"""s_add_u32 m0, s54, {2048*i}
s_add_u32 s56, s55, {16*1280*i}
buffer_load_dwordx4 v36, {q4(SRD_X)}, s56 offen lds
s_add_u32 m0, s54, {2048*i + 1024}
s_nop 0
buffer_load_dwordx4 v37, {q4(SRD_X)}, s56 offen lds""")
    a(f"""L_x_next:
s_add_u32 s54, s54, 16384
s_add_u32 s55, s55, 128
s_cmp_lt_u32 s55, 1024
s_cbranch_scc1 L_x_loop
L_x_sync:
s_waitcnt vmcnt(0)
s_barrier""")
    stamp(a, 1)
    for st in (8, 9):
        for i in range(2):
            a(f"""s_add_u32 m0, s{S_LB}, {TOP + (st-8)*16384 + 1024*i}
s_movk_i32 s{S_XO}, {st*128}
buffer_load_dwordx4 v{XG0+i}, {q4(SRD_X)}, s{S_XO} offen lds""")
    for g in range(32):
        a(f"ds_read_b128 {vr(XR+4*g,4)}, v{XA+4*(g>>4)+(g&3)} offset:{((g>>2)&3)*16384}")
    for ks in range(4):
        a(f"v_add_u32 v{XA+ks}, 0x20000, v{XA+ks}")
    nonce_get(a)
    lb = a.newlabel("xw")
    a(f"s_cmp_lg_u32 s{S_W}, 7\ns_cbranch_scc1 {lb}")
    wb_flag_wait(a)
    a.label(lb)
    a("s_waitcnt vmcnt(0) lgkmcnt(0)\ns_barrier")
    stamp(a, 2)
    for g in range(32, 40):
        a(f"ds_read_b128 {vr(XR+4*g,4)}, v{XA+(g&3)} offset:{((g>>2)&1)*16384}")
    a(f"s_mov_b32 s{S_KR}, 2\ns_mov_b32 s{S_SEQ}, 0x76105432\ns_mov_b32 s{S_SEQ+1}, 0x98")
    for st in range(12, 16):
        for i in range(2): dma_piece(a, st, i)
    a("s_waitcnt lgkmcnt(0)\ns_barrier")
    for st in range(10, 12):
        for i in range(2): dma_piece(a, st, i)
    for i in range(4):
        a(f"v_mov_b32 v{EA+i}, {OOB}")
    a("s_waitcnt vmcnt(0)\ns_barrier")
    stamp(a, 3)
    reads(a, 40); reads(a, 41)
    a("s_branch L_p2")
    a.label("L_p1_v")
    a(f"""
s_sub_u32 s54, s{S_NT}, 10
s_lshl_b32 s54, s54, 7
s_lshl_b32 s56, s{S_FH}, 6
s_add_u32 s54, s54, s56
s_mul_i32 s63, s{S_T}, 2560
s_add_u32 s63, s63, {KVIMG + 1280}
s_mov_b32 s58, {64*2560}
v_mul_u32_u24 v36, 320, v{VH}
v_add_u32 v36, s63, v36
v_add_u32 v38, s54, v{VN}
""")
    for ft in range(2):
        a(f"""v_add_u32 v0, {32*ft}, v38
v_mul_u32_u24 v1, 3277, v0
v_lshrrev_b32 v1, 16, v1
v_mul_u32_u24 v37, 20, v1
v_sub_u32 v0, v0, v37
v_mul_lo_u32 v1, v1, s58
v_lshl_add_u32 v1, v0, 4, v1
v_add_u32 v{EA+2*ft}, v1, v36
v_add_u32 v{EA+2*ft+1}, 640, v{EA+2*ft}""")
    p1(True)
    a("s_nop 7\ns_nop 7")
    for j in range(4):
        for e in range(4):
            a(f"v_cvt_pk_bf16_f32 v{HOLD[j]+e}, v{ACC+8*j+2*e}, v{ACC+8*j+2*e+1}")
    a.label("L_p2")
    a(f"v_add_u32 v{WBR[0]}, 0xffff0000, v{WB}")
    def h_qkv():
        lb = a.newlabel("qa")
        a(f"s_cmp_lg_u32 s{S_W}, 7\ns_cbranch_scc1 {lb}")
        a(f"s_lshl_b32 s60, s{S_NT}, 4\ns_add_u32 s60, s60, s{S_MT}\ns_lshl_b32 s60, s60, 4\ns_add_u32 s60, s60, {FL_QKV}")
        flag_set(a, "s60")
        a.label(lb)
    stamp(a, 4)
    hooks2 = dict(p2hooks)
    hooks2[QST] = h_qkv
    steps(a, 40, 80, False, hooks2)
    stamp(a, 5)

T0, T1, T2, T3, T4, T5, T6, T7 = 194, 195, 196, 197, 198, 199, 216, 217
S_KVA = 79
def b_addr(a):
    a(f"""
s_lshl_b32 s54, s{S_TT}, 5
v_add_u32 v{T0}, s54, v{VN}
v_mul_u32_u24 v{T0}, {BROW}, v{T0}
v_add_u32 v{T0}, {STG}, v{T0}
v_mul_u32_u24 v{T2}, 48, v{VH}
v_add_u32 v{T2}, v{T2}, v{T0}
v_mul_u32_u24 v{T1}, 80, v{VH}
v_add_u32 v{T1}, v{T1}, v{T0}
s_and_b32 s57, s{S_W}, 1
s_bfe_u32 s58, s{S_W}, 0x10001
v_bfe_u32 v6, v{VL}, 2, 2
v_lshl_add_u32 v6, v{VH}, 3, v6
v_mul_u32_u24 v6, {BROW}, v6
v_bfe_u32 v7, v{VL}, 4, 1
v_lshl_add_u32 v6, v7, 5, v6
v_and_b32 v7, 3, v{VL}
v_lshl_add_u32 v6, v7, 3, v6
s_mul_i32 s54, s57, 48
s_add_u32 s54, s54, {160 + STG}
v_add_u32 v{T3}, s54, v6
s_mul_i32 s54, s57, 80
s_lshl_b32 s56, s58, 6
s_add_u32 s54, s54, s56
s_add_u32 s54, s54, {STG}
v_add_u32 v{T4}, s54, v6
s_lshl_b32 s{S_KVA}, s{S_NT}, 1
s_add_u32 s{S_KVA}, s{S_KVA}, s57
s_lshl_b32 s{S_KVA}, s{S_KVA}, 12
s_add_u32 s{S_KVA}, s{S_KVA}, {KVACC}
s_lshl_b32 s56, s58, 5
v_add_u32 v6, s56, v{VN}
v_cmp_gt_u32 vcc, 40, v6
v_lshlrev_b32 v6, 2, v6
v_mul_u32_u24 v7, 640, v{VH}
v_add_u32 v6, v6, v7
v_mov_b32 v7, {OOB}
v_cndmask_b32 v{T5}, v7, v6, vcc
v_cmp_gt_u32 vcc, 32, v{VL}
s_nop 1
v_cndmask_b32 v{T6}, v7, v{T5}, vcc
""")

def b_stage(a):
    for e in range(6):
        a(f"v_cvt_pk_bf16_f32 v{168+e}, v{ACC+20+2*e}, v{ACC+21+2*e}")
    a(f"""
s_cmp_eq_u32 s{S_FH}, 0
s_cbranch_scc0 L_b_k
ds_write_b128 v{T2}, v[168:171] offset:160
ds_write_b64 v{T2}, v[172:173] offset:176
v_mov_b64 {vr(PHQ_R+20,2)}, 0
v_mov_b64 {vr(PHQ_R+22,2)}, 0
""")
    for g in range(3):
        for e in range(4):
            a(f"v_permlane32_swap_b32 v{PHQ_R+8*g+e}, v{PHQ_R+8*g+4+e}")
    a(f"""
s_branch L_b_staged
L_b_k:
v_mul_f32 v{ACC+28}, {f32hex(-LOG2E)}, v{ACC+28}
v_exp_f32 v{ACC+28}, v{ACC+28}
v_mov_b32 v172, 0x3f80
v_add_f32 v{ACC+28}, 1.0, v{ACC+28}
v_rcp_f32 v174, v{ACC+28}
v_mov_b32 v173, 0
ds_write_b64 v{T2}, v[168:169] offset:184
ds_write_b128 v{T2}, v[170:173] offset:192
v_sub_f32 v175, 1.0, v174
""")
    for i in range(5):
        a(f"ds_write_b128 v{T1}, {vr(PHQ_R+4*i,4)} offset:{16*i}")
    a(f"""
ds_write_b32 v{T0}, v175 offset:256
s_cmp_lg_u32 s{S_NT}, 0
s_cbranch_scc1 L_b_staged
s_lshl_b32 s54, s{S_T}, 7
s_add_u32 s54, s54, {GATE}
v_lshlrev_b32 v0, 2, v{VN}
buffer_store_dword v174, v0, {q4(SRD_WS)}, s54 offen sc1
L_b_staged:
""")

def b_kv(a):
    a(f"""
s_cmp_eq_u32 s{S_FH}, 0
s_cbranch_scc0 L_b_k2
ds_read_b32 v{OMG}, v{T0} offset:256
s_branch L_b_done
L_b_k2:
""")
    KD, FR = 200, 168
    def kvreads(ks):
        b = FR + 8*(ks % 3)
        for aa in range(2):
            a(f"ds_read_b64_tr_b16 {vr(b+2*aa,2)}, v{T3} offset:{(16*ks+4*aa)*BROW}")
            a(f"ds_read_b64_tr_b16 {vr(b+4+2*aa,2)}, v{T4} offset:{(16*ks+4*aa)*BROW}")
    kvreads(0); kvreads(1)
    for ks in range(8):
        b = FR + 8*(ks % 3)
        if ks + 2 < 8: kvreads(ks + 2)
        a(f"s_waitcnt lgkmcnt({4*min(2, 7-ks)})")
        a(f"v_mfma_f32_32x32x16_bf16 {vr(KD,16)}, {vr(b,4)}, {vr(b+4,4)}, {'0' if ks == 0 else vr(KD,16)}")
    a.label("L_b_done")
def b_atomics(a):
    for r in range(12):
        ad = T6 if r > 8 else T5
        a(f"buffer_atomic_add_f32 v{200+r}, v{ad}, {q4(SRD_WS)}, s{S_KVA} offen offset:{(8*(r//4) + r%4)*160}")
```

```python
class Asm:
    def __init__(self):
        self.lines = []
        self.nlabel = 0
    def __call__(self, s):
        for ln in s.strip("\n").split("\n"):
            self.lines.append("    " + ln.strip() if not ln.strip().endswith(":") else ln.strip())
    def raw(self, s):
        self.lines.append(s)
    def label(self, name):
        self.lines.append(name + ":")
    def newlabel(self, base):
        self.nlabel += 1
        return f"L_{base}_{self.nlabel}"
    def text(self):
        return "\n".join(self.lines) + "\n"

def vr(b, n=1):
    return f"v{b}" if n == 1 else f"v[{b}:{b+n-1}]"
def sr(b, n=1):
    return f"s{b}" if n == 1 else f"s[{b}:{b+n-1}]"

def srd(a, d, base, nbytes):
    a(f"""s_mov_b32 s{d}, s{base}
s_mov_b32 s{d+1}, s{base+1}
s_mov_b32 s{d+2}, {hex(nbytes)}
s_mov_b32 s{d+3}, 0x20000""")

def kernel_begin(a, name):
    a.raw(f".globl {name}\n.p2align 8\n.type {name},@function\n{name}:")

def kernel_desc(name, vgpr, sgpr=102):
    acc = (vgpr + 3) // 4 * 4
    return f""".p2align 6
.amdhsa_kernel {name}
  .amdhsa_next_free_vgpr {vgpr}
  .amdhsa_next_free_sgpr {sgpr}
  .amdhsa_accum_offset {acc}
  .amdhsa_group_segment_fixed_size 0
  .amdhsa_kernarg_size 88
  .amdhsa_user_sgpr_count 2
  .amdhsa_user_sgpr_kernarg_segment_ptr 1
  .amdhsa_system_sgpr_workgroup_id_x 1
  .amdhsa_float_denorm_mode_32 3
  .amdhsa_float_denorm_mode_16_64 3
.end_amdhsa_kernel
"""

import os
DIAG = bool(os.environ.get("DIAG"))
from layout import STAMP_BASE
def stamp(a, i):
    if DIAG:
        a(f"{'s_memtime' if os.environ.get('CYC') else 's_memrealtime'} s[{80+2*i}:{81+2*i}]")
def cstamp(a, i):
    if DIAG:
        a(f"s_memtime s[{80+2*i}:{81+2*i}]")
def stamp_init(a):
    if DIAG:
        for i in range(8):
            a(f"s_mov_b64 s[{80+2*i}:{81+2*i}], 0")
def stamp_flush(a, kidx, wave_sgpr, nw, srd_ws=16, keep=False):
    if not DIAG: return
    if os.environ.get("TODBG"):
        lb = a.newlabel("dbg")
        if not keep: a("s_waitcnt vmcnt(0)")
        a(f"""s_memrealtime s[94:95]
s_memtime s[98:99]
s_waitcnt lgkmcnt(0)
s_cmp_lg_u32 s2, 9
s_cbranch_scc1 {lb}
s_cmp_lg_u32 s{wave_sgpr}, 0
s_cbranch_scc1 {lb}
s_mov_b64 exec, 1
v_mov_b32 v6, 0""")
        if kidx == 0: a("s_mov_b32 s97, s80\ns_mov_b32 s96, s98")
        else: a("s_sub_u32 s80, s98, s96\ns_add_u32 s80, s80, s97")
        for i in range(0 if kidx else 1, 8):
            a(f"s_sub_u32 s{80+2*i}, s{80+2*i}, s97\nv_mov_b32 v8, s{80+2*i}\nbuffer_store_dword v8, v6, s[20:23], 0 offen offset:{32*kidx+4*i}")
        a("s_mov_b64 exec, -1")
        a.label(lb)
        return
    if not keep: a("s_waitcnt vmcnt(0)")
    a(f"""{'s_memtime' if os.environ.get('CYC') else 's_memrealtime'} s[94:95]
s_waitcnt lgkmcnt(0)
s_mul_i32 s96, s2, {nw}
s_add_u32 s96, s96, s{wave_sgpr}
s_lshl_b32 s96, s96, 5
s_add_u32 s96, s96, {STAMP_BASE + kidx*0x40000}
s_mov_b64 exec, 1
v_mov_b32 v184, 0""")
    for i in range(8):
        a(f"v_mov_b32 v{176+i}, s{80+2*i}")
    a(f"""buffer_store_dwordx4 v[176:179], v184, s[{srd_ws}:{srd_ws+3}], s96 offen
buffer_store_dwordx4 v[180:183], v184, s[{srd_ws}:{srd_ws+3}], s96 offen offset:16
s_mov_b64 exec, -1
s_nop 1""")
```

```python
from asmlib import *
from layout import *

NS = 4
TOP = NS * 32768
BROW = 272
STG = 126976
VL, L16, VN, VH = 2, 3, 4, 5
XG0, XG1, WG = 6, 7, 8
XA = 10
WA = 18
WB = 22
EA = 24
WFB = [40, 48, 248]
LA = 2
ACC = 56
XR = 88
DIST = 3
S_SEQ = 98
PREBAR = {}
FILL = {}
QST = int(os.environ.get('QST', '16'))
STG_STAMP = eval(os.environ.get('STG_STAMP', '{}'))
stamp2 = stamp
PRO = os.environ.get('PRO')
if STG_STAMP or PRO:
    def stamp(a, i): pass
def pstamp(a, i):
    if PRO == '1': stamp2(a, i)
def qstamp(a, i):
    if PRO == '2': stamp2(a, i)
HOLD = [8, 12, 16, 32]
SPM = [4, 6, 74, 76]
STORE_AT = eval(os.environ.get('STORE_AT', '[40,44,48,52]'))
PHQ_R = 228
OMG = 252
S_XO, S_WO, S_KR, S_LB, S_T, S_PREP, S_WBB = 44, 45, 46, 47, 48, 49, 50

def code_prefetch(a):
    a(f"""s_cmp_lg_u32 s{S_W}, 2
s_cbranch_scc1 L_cpf_done
s_getpc_b64 s[60:61]
L_cpf_pc:
s_lshl_b32 s62, s{S_J}, 11
v_and_b32 v36, 15, v{VL}
v_lshlrev_b32 v36, 7, v36
v_add_u32 v36, s62, v36
v_min_u32 v36, L_end1-L_cpf_pc, v36
global_load_dword v9, v36, s[60:61]
L_cpf_done:""")

def code_prefetch0(a, n):
    a(f"""s_getpc_b64 s[60:61]
v_cmp_gt_u32 vcc, {n}, v0
s_and_saveexec_b64 s[62:63], vcc
s_cbranch_execz L_cpf0_done
v_lshlrev_b32 v36, 7, v0
global_load_dword v9, v36, s[60:61]
L_cpf0_done:
s_mov_b64 exec, s[62:63]""")

def common_init(a):
    a(f"""
s_and_b32 s{S_XCD}, s2, 7
s_lshr_b32 s{S_J}, s2, 3
v_lshrrev_b32 v1, 6, v0
v_and_b32 v{VL}, 63, v0
v_readfirstlane_b32 s{S_W}, v1
s_and_b32 s{S_MT}, s{S_XCD}, 1
s_lshl_b32 s{S_MT}, s{S_MT}, 3
s_and_b32 s52, s{S_J}, 7
s_add_u32 s{S_MT}, s{S_MT}, s52
s_lshr_b32 s{S_NT}, s{S_XCD}, 1
s_lshl_b32 s{S_NT}, s{S_NT}, 2
s_lshr_b32 s52, s{S_J}, 3
s_add_u32 s{S_NT}, s{S_NT}, s52
s_and_b32 s{S_TT}, s{S_W}, 3
s_lshr_b32 s{S_FH}, s{S_W}, 2
v_lshlrev_b32 v{L16}, 4, v{VL}
v_and_b32 v{VN}, 31, v{VL}
v_lshrrev_b32 v{VH}, 5, v{VL}
""")

def nonce_publish(a):
    lb = a.newlabel("np")
    a(f"""s_mov_b32 s{S_NONCE}, 0
s_xor_b32 s60, s{S_W}, 1
s_or_b32 s60, s2, s60
s_cmp_lg_u32 s60, 0
s_cbranch_scc1 {lb}
s_memrealtime s[60:61]
v_mov_b32 v9, 0
s_waitcnt lgkmcnt(0)
s_or_b32 s60, s60, 1
v_mov_b32 v1, s60
s_mov_b64 exec, 1
buffer_store_dword v1, v9, {q4(SRD_DBG)}, 0 offen sc0 sc1
s_mov_b64 exec, -1""")
    a.label(lb)

def nonce_clear(a):
    lb = a.newlabel("nc")
    a(f"""s_xor_b32 s60, s{S_W}, 4
s_or_b32 s60, s2, s60
s_cmp_lg_u32 s60, 0
s_cbranch_scc1 {lb}
v_mov_b32 v0, 0
s_mov_b64 exec, 1
buffer_store_dword v0, v0, {q4(SRD_DBG)}, 0 offen sc0 sc1
s_mov_b64 exec, -1""")
    a.label(lb)

def nonce_get(a):
    lp, dn = a.newlabel("ng"), a.newlabel("ngd")
    a(f"""s_cmp_lg_u32 s{S_NONCE}, 0
s_cbranch_scc1 {dn}
v_mov_b32 v0, 0
s_mov_b32 s62, 0x200000""")
    a.label(lp)
    a(f"""buffer_load_dword v1, v0, {q4(SRD_DBG)}, 0 offen sc0 sc1
s_waitcnt vmcnt(0)
v_readfirstlane_b32 s{S_NONCE}, v1
s_cmp_lg_u32 s{S_NONCE}, 0
s_cbranch_scc1 {dn}
s_sleep 8
s_sub_u32 s62, s62, 1
s_cmp_lg_u32 s62, 0
s_cbranch_scc1 {lp}""")
    a.label(dn)

def flag_set(a, off_sgpr):
    a(f"""v_mov_b32 v0, 0
v_mov_b32 v1, s{S_NONCE}
s_mov_b64 exec, 1
buffer_store_dword v1, v0, {q4(SRD_WS)}, {off_sgpr} offen sc0 sc1
s_mov_b64 exec, -1""")

def flag_wait(a, off_sgpr, nwords, sleep=10):
    lp, dn = a.newlabel("fw"), a.newlabel("fwd")
    if nwords <= 64:
        a(f"v_min_u32 v0, {nwords-1}, v{VL}\nv_lshlrev_b32 v0, 4, v0")
    a("s_mov_b32 s62, 0x200000")
    a.label(lp)
    if nwords <= 64:
        a(f"""buffer_load_dword v1, v0, {q4(SRD_WS)}, {off_sgpr} offen sc0 sc1
s_waitcnt vmcnt(0)
v_cmp_ne_u32 vcc, s{S_NONCE}, v1""")
    else:
        a(f"""buffer_load_dwordx4 v[36:39], v{L16}, {q4(SRD_WS)}, {off_sgpr} offen sc0 sc1
s_waitcnt vmcnt(0)
v_xor_b32 v36, s{S_NONCE}, v36
v_xor_b32 v37, s{S_NONCE}, v37
v_xor_b32 v38, s{S_NONCE}, v38
v_xor_b32 v39, s{S_NONCE}, v39
v_or3_b32 v36, v36, v37, v38
v_or_b32 v36, v36, v39
v_cmp_ne_u32 vcc, 0, v36""")
    a(f"""s_nop 3
s_cmp_eq_u64 vcc, 0
s_cbranch_scc1 {dn}
s_sleep {sleep}
s_sub_u32 s62, s62, 1
s_cmp_lg_u32 s62, 0
s_cbranch_scc1 {lp}""")
    a.label(dn)

def flag_peek(a, addr_code, nwords, dst):
    a(addr_code)
    a(f"""v_min_u32 v0, {nwords-1}, v{VL}
v_lshlrev_b32 v0, 4, v0
buffer_load_dword v{dst}, v0, {q4(SRD_WS)}, s60 offen sc0 sc1""")
def flag_check(a, addr_code, nwords, dst):
    lb = a.newlabel("fc")
    a(f"""v_cmp_ne_u32 vcc, s{S_NONCE}, v{dst}
s_nop 3
s_cmp_eq_u64 vcc, 0
s_cbranch_scc1 {lb}""")
    a(addr_code)
    flag_wait(a, "s60", nwords)
    a.label(lb)

def flag_wait2(a, off_sgpr, sleep=4):
    lp, dn = a.newlabel("fw"), a.newlabel("fwd")
    a("s_mov_b32 s62, 0x200000")
    a.label(lp)
    a(f"""buffer_load_dword v36, v0, {q4(SRD_WS)}, {off_sgpr} offen sc0 sc1
buffer_load_dword v37, v0, {q4(SRD_WS)}, {off_sgpr} offen offset:128 sc0 sc1
s_waitcnt vmcnt(0)
v_xor_b32 v36, s{S_NONCE}, v36
v_xor_b32 v37, s{S_NONCE}, v37
v_or_b32 v36, v36, v37
v_cmp_ne_u32 vcc, 0, v36
s_nop 3
s_cmp_eq_u64 vcc, 0
s_cbranch_scc1 {dn}
s_sleep {sleep}
s_sub_u32 s62, s62, 1
s_cmp_lg_u32 s62, 0
s_cbranch_scc1 {lp}""")
    a.label(dn)

def wb_flag_set(a):
    nonce_get(a)
    a(f"""s_lshl_b32 s60, s{S_P}, 5
s_add_u32 s60, s60, s{S_BLK}
s_lshl_b32 s60, s60, 4
s_add_u32 s60, s60, {FL_WB}""")
    flag_set(a, "s60")
def wb_flag_wait(a):
    nonce_get(a)
    a(f"""s_lshl_b32 s60, s{S_NT}, 9
s_add_u32 s60, s60, {FL_WB}""")
    flag_wait(a, "s60", 20)

VM = []
def vm_after(tag, prep=False):
    idx = max(i for i, t in enumerate(VM) if t == tag)
    return len([t for t in VM[idx+1:] if prep or not (isinstance(t, str) and t.startswith("p:"))])
P2SLOT = [131072, 147456, 65536, 82432, 98816, 0, 20608, 36992, 82432, 98816]
WBR = [20, 22, 23]
P2BAR = {10: 12, 11: None, 13: 15, 16: 17, 18: 19}

def dma_piece(a, st, i):
    slot = st % NS
    last = 3 if st < 10 else 1
    if st >= 10:
        if i == 0: a(f"s_lshl_b32 s{S_WO}, s{S_KR}, 14")
        a(f"s_add_u32 m0, s{S_LB}, {P2SLOT[st-10] + 1024*i}")
        a(f"s_add_u32 s{S_WO}, s{S_WO}, s{S_WBB}" if i == 0 else f"s_add_u32 s{S_WO}, s{S_WO}, 1024")
        a(f"buffer_load_dwordx4 v{L16}, {q4(SRD_WS)}, s{S_WO} offen lds")
    elif i < 2:
        a(f"""s_add_u32 m0, s{S_LB}, {slot*32768 + 1024*i}
s_lshl_b32 s{S_XO}, s{S_KR}, 7
buffer_load_dwordx4 v{XG0+i}, {q4(SRD_X)}, s{S_XO} offen lds""")
    else:
        a(f"s_add_u32 m0, s{S_LB}, {slot*32768 + 16384 + 1024*(i-2)}")
        a(f"s_mul_i32 s{S_WO}, s{S_KR}, {64*3840}" if i == 2 else f"s_add_u32 s{S_WO}, s{S_WO}, {4*3840}")
        a(f"buffer_load_dwordx4 v{WG}, {q4(SRD_WA)}, s{S_WO} offen lds")
    if i == last:
        if st == 9: a(f"s_mov_b64 s[{S_SEQ}:{S_SEQ+1}], s[{S_SEQ+2}:{S_SEQ+3}]")
        else: a(f"s_lshr_b64 s[{S_SEQ}:{S_SEQ+1}], s[{S_SEQ}:{S_SEQ+1}], 4")
        a(f"s_and_b32 s{S_KR}, s{S_SEQ}, 15")
    VM.append(("dma", st))
def dma_sched(ds, pc):
    if ds == 2: return [(2, 2*pc - 4), (2, 2*pc - 3)]
    if ds < 10 and os.environ.get("DM") == "2": return [(ds, 2*pc), (ds, 2*pc+1)] if pc < 2 else []
    if ds < 10 and os.environ.get("DM") == "4": return [(ds, i) for i in range(4)] if pc == 0 else []
    if ds < 10: return [(ds, pc)]
    if ds == 10: return [(10 + pc, 0), (10 + pc, 1)] if pc < 3 else []
    if ds == 11: return [(13 + (pc >> 1), pc & 1)]
    if ds == 12: return [(15, pc)] if pc < 2 else []
    if ds == 13: return [(16 + (pc >> 1), pc & 1)]
    if ds == 18: return [(18 + pc, 0), (18 + pc, 1)] if pc < 2 else []
    return []
def dma(a, st):
    for i in range(4): dma_piece(a, st, i)

def reads(a, g, xonly=False):
    st, ks, wf = g >> 2, g & 3, WFB[g % 3]
    slot = st % NS
    hi = slot >= 2
    so = (slot & 1) * 32768
    if st < 10:
        a(f"ds_read_b128 {vr(XR+4*g,4)}, v{XA+4*hi+ks} offset:{so}")
        for ft in range(0 if xonly else 2):
            for aa in range(2):
                a(f"ds_read_b64_tr_b16 {vr(wf+4*ft+2*aa,2)}, v{WA+2*hi+ft} offset:{so + (16*ks+4*aa)*256}")
    elif st < 20:
        for ft in range(2):
            a(f"ds_read_b128 {vr(wf+4*ft,4)}, v{WBR[P2SLOT[st-10] >> 16]} offset:{(P2SLOT[st-10] & 65535) + ks*4096 + ft*1024}")
def nreads(g):
    return 5 if g < 40 else 2 if g < 80 else 0

def enter_stage(a, st):
    if st >= 10:
        if st == QST and st not in P2BAR:
            a(f"s_waitcnt vmcnt({vm_after('epi')})\ns_barrier")
            return
        if st not in P2BAR: return
    cov = P2BAR.get(st, st)
    if cov is None:
        a("s_barrier")
        if st in STG_STAMP: stamp2(a, STG_STAMP[st])
        return
    n, n2 = vm_after(("dma", cov)), vm_after(("dma", cov), True)
    if st == QST: n = min(n, vm_after("epi"))
    if n2 != n and st < 10:
        l1, l2 = a.newlabel("es"), a.newlabel("es")
        a(f"s_cmp_eq_u32 s{S_PREP}, 0\ns_cbranch_scc1 {l1}\ns_waitcnt vmcnt({n2})\ns_branch {l2}")
        a.label(l1); a(f"s_waitcnt vmcnt({n})"); a.label(l2)
    else:
        a(f"s_waitcnt vmcnt({n})")
    if st in PREBAR: PREBAR[st]()
    a("s_barrier")
    if st in STG_STAMP: stamp2(a, STG_STAMP[st])

def steps(a, g0, g1, swapped, hooks):
    for g in range(g0, g1):
        wf = WFB[g % 3]
        nst = (g + LA) >> 2
        if (g + LA) & 3 == 0 and nst < 20:
            enter_stage(a, nst)
        xonly = swapped == "x"
        reads(a, g + LA, xonly)
        if (g + LA) & 3 == 0 and nst in hooks: hooks[nst]()
        a(f"s_waitcnt lgkmcnt({LA if xonly else sum(nreads(g+i) for i in range(1, LA+1))})")
        for ft in range(0 if xonly else 2):
            A, B = vr(wf+4*ft,4), vr(XR+4*(g%40),4)
            if swapped: A, B = B, A
            c = "0" if g % 40 == 0 else vr(ACC+16*ft,16)
            a(f"v_mfma_f32_32x32x16_bf16 {vr(ACC+16*ft,16)}, {A}, {B}, {c}")
            for ln in FILL.get((g, ft), []): a.raw(ln)
        ds, pc = ((g + LA) >> 2) + DIST - 1, (g + LA) & 3
        for x in dma_sched(ds, pc): dma_piece(a, *x)
        for j in [j for j in range(4) if int(STORE_AT[j]) == g]:
            a(f"buffer_store_dwordx4 {vr(HOLD[j],4)}, v{EA+j}, {q4(SRD_WS)}, 0 offen sc1")
            VM.append("epi")

def set_fill(fn, g0, g1):
    t = Asm(); fn(t)
    lines = [l for l in t.lines if l.strip() and not l.strip().startswith(";")]
    slots = [(g, ft) for g in range(g0, g1) for ft in range(2)]
    per = -(-len(lines) // len(slots))
    for i, sl in enumerate(slots):
        FILL.setdefault(sl, []).extend(lines[i*per:(i+1)*per])

def set_block(fn, g):
    t = Asm(); fn(t)
    FILL.setdefault((g, 1), []).extend(t.lines)

def swap23(a, dst, src, tmp):
    a(f"""v_and_b32 v{dst}, 0x13, v{src}
v_bfe_u32 v{tmp}, v{src}, 2, 1
v_lshl_or_b32 v{dst}, v{tmp}, 3, v{dst}
v_bfe_u32 v{tmp}, v{src}, 3, 1
v_lshl_or_b32 v{dst}, v{tmp}, 2, v{dst}""")

AF, GT, PM, PL, IA, IB, D = 124, 160, 168, 180, 192, 204, 216
S_U, S_P, S_BLK = 51, 52, 53
def prep_addr(a):
    a(f"""
s_mul_i32 s57, s{S_P}, 1600
s_mul_i32 s55, s{S_W}, 10496
s_cmp_eq_u32 s{S_NT}, 15
s_cselect_b32 s55, s55, {TOP}
v_cmp_gt_u32 vcc, 36, v{VL}
v_mov_b32 v37, {OOB}
v_and_b32 v36, 15, v{VL}
v_cndmask_b32 v32, v37, v{L16}, vcc
v_cmp_gt_u32 vcc, 15, v36
v_mul_u32_u24 v38, 205, v36
v_lshrrev_b32 v38, 10, v38
v_mul_u32_u24 v38, 1200, v38
v_lshl_add_u32 v36, v36, 4, v38
v_lshrrev_b32 v38, 4, v{VL}
v_mul_u32_u24 v38, 3840, v38
v_add_u32 v36, v36, v38
v_cndmask_b32 v33, v37, v36, vcc
s_mul_i32 s58, s{S_BLK}, {32*3840}
s_mul_i32 s56, s{S_P}, 80
s_add_u32 s58, s58, s56
v_lshlrev_b32 v34, 4, v{VH}
s_lshl_b32 s59, s{S_BLK}, 6
""")
def prep_issue(a):
    a(f"""s_mov_b32 m0, s55
s_nop 0
buffer_load_dwordx4 v{L16}, {q4(SRD_PHI)}, s57 offen lds
buffer_load_dwordx4 v32, {q4(SRD_PHI)}, s57 offen offset:1024 lds""")
    for i in range(8):
        a(f"s_add_u32 m0, s55, {2048 + 1040*i}")
        a(f"s_add_u32 s58, s58, {4*3840}" if i else "s_nop 0")
        a(f"buffer_load_dwordx4 v33, {q4(SRD_WB)}, s58 offen lds")
    a(f"""buffer_load_dwordx4 {vr(GT,4)}, v34, {q4(SRD_GATE)}, s59 offen
buffer_load_dwordx4 {vr(GT+4,4)}, v34, {q4(SRD_GATE)}, s59 offen offset:32""")

def prep_compute(a, nyounger):
    qstamp(a, 1)
    a(f"""
v_bfe_u32 v36, v{VL}, 2, 2
v_lshl_add_u32 v36, v{VH}, 3, v36
v_and_b32 v37, 1, v{VL}
v_mul_u32_u24 v37, 20, v37
v_sub_u32 v38, v36, v37
v_bfe_u32 v39, v{VL}, 1, 1
v_bfe_u32 v1, v{VL}, 4, 1
v_lshl_add_u32 v39, v1, 1, v39
v_mul_u32_u24 v36, 40, v36
v_add_u32 v36, s55, v36
v_lshl_add_u32 v0, v39, 3, v36
v_cmp_eq_u32 s[58:59], 0, v39
s_add_u32 s57, s55, 1600
v_mov_b32 v37, s57
s_waitcnt vmcnt({nyounger + 10})
""")
    qstamp(a, 2)
    for u in range(3):
        for aa in range(2):
            k0 = 16*u + 4*aa
            a(f"""v_add_u32 v1, {k0}, v38
v_cmp_gt_u32 vcc, 20, v1
v_add_u32 v1, {k0*40}, v0
v_add_u32 v39, {k0*40 + 32}, v36
v_cndmask_b32 v1, v37, v1, vcc
s_and_b64 vcc, vcc, s[58:59]
ds_read_b64_tr_b16 {vr(PM+4*u+2*aa,2)}, v1
v_cndmask_b32 v39, v37, v39, vcc
ds_read_b64_tr_b16 {vr(PL+4*u+2*aa,2)}, v39""")
    a(f"""
v_and_b32 v0, 3, v{VN}
v_lshlrev_b32 v0, 4, v0
v_mov_b32 v36, 0x3f80
v_mov_b32 v37, 0
v_lshlrev_b64 v[36:37], v0, v[36:37]
v_bfe_u32 v0, v{VN}, 2, 1
v_mul_u32_u24 v0, 5, v0
v_lshrrev_b32 v1, 3, v{VN}
v_add_u32 v0, v0, v1
v_lshlrev_b32 v38, 1, v{VH}
v_sub_u32 v0, v0, v38
v_cmp_eq_u32 vcc, 0, v1
v_mov_b32 v38, 99
s_nop 0
v_cndmask_b32 v0, v0, v38, vcc
v_cmp_eq_u32 s[58:59], 3, v1
""")
    for u in range(3):
        for aa in range(2):
            kq = 4*u + aa
            a(f"""v_cmp_eq_u32 vcc, {kq+1}, v0
s_nop 1
v_cndmask_b32 v{IA+4*u+2*aa}, 0, v36, vcc
v_cndmask_b32 v{IA+4*u+2*aa+1}, 0, v37, vcc
v_cmp_eq_u32 vcc, {kq-2}, v0
s_nop 1
v_cndmask_b32 v{IB+4*u+2*aa}, 0, v36, vcc
v_cndmask_b32 v{IB+4*u+2*aa+1}, 0, v37, vcc""")
    a(f"""
s_mul_i32 s54, s{S_P}, {40*4096}
s_lshl_b32 s56, s{S_BLK}, 13
s_add_u32 s54, s54, s56
s_add_u32 s54, s54, {WBF}
s_add_u32 s56, s54, 4096
""")
    swap23(a, 36, VN, 38)
    a(f"""v_lshrrev_b32 v37, 2, v36
v_mul_u32_u24 v37, 1040, v37
v_and_b32 v36, 3, v36
v_lshl_add_u32 v36, v36, 8, v37
v_lshl_add_u32 v36, v{VH}, 4, v36
v_add_u32 v36, s55, v36
""")
    qstamp(a, 3)
    a(f"s_waitcnt vmcnt({nyounger})")
    qstamp(a, 4)
    for seg in range(3):
        for u in range(3):
            a(f"ds_read_b128 {vr(AF+4*(3*seg+u),4)}, v36 offset:{2048 + 80*seg + 32*u}")
    a("s_waitcnt lgkmcnt(0)")

    qstamp(a, 5)
    plan = [[(0, PM)], [(0, PL), (2, IA)], [(1, PM)], [(1, PL), (2, IB)]]
    def mm(t):
        d = D + 16*(t & 1)
        first = True
        for seg, fr in plan[t]:
            for u in range(3):
                a(f"v_mfma_f32_32x32x16_bf16 {vr(d,16)}, {vr(AF+4*(3*seg+u),4)}, {vr(fr+4*u,4)}, {'0' if first else vr(d,16)}")
                first = False
    def fin(t):
        d = D + 16*(t & 1)
        for g in range(2):
            r = d + 8*g
            for e in range(4):
                a(f"v_cvt_pk_bf16_f32 v{r+e}, v{r+2*e}, v{r+2*e+1}")
            if t == 3:
                for e in range(4):
                    a(f"v_cndmask_b32 v{r+e}, v{r+e}, v{GT+4*g+e}, s[58:59]")
        a(f"""buffer_store_dwordx4 {vr(d,4)}, v{L16}, {q4(SRD_WS)}, s54 offen offset:{t*1024} sc1
buffer_store_dwordx4 {vr(d+8,4)}, v{L16}, {q4(SRD_WS)}, s56 offen offset:{t*1024} sc1""")
    mm(0); mm(1); a("s_waitcnt vmcnt(0)\ns_nop 6" if nyounger < 10 else "s_nop 7"); fin(0); a("s_nop 1"); mm(2); fin(1); a("s_nop 1"); mm(3); fin(2); a("s_nop 3"); fin(3)
    qstamp(a, 6)
    lb = a.newlabel("nz")
    a(f"""
s_cmp_lg_u32 s{S_BLK}, 0
s_cbranch_scc1 {lb}
s_lshl_b32 s54, s{S_P}, 13
s_add_u32 s54, s54, {KVACC}
s_add_u32 s56, s54, 4096
v_mov_b32 v{AF}, 0
v_mov_b32 v{AF+1}, 0
v_mov_b32 v{AF+2}, 0
v_mov_b32 v{AF+3}, 0
""")
    for i in range(4):
        a(f"""buffer_store_dwordx4 {vr(AF,4)}, v{L16}, {q4(SRD_WS)}, s54 offen offset:{i*1024} sc1
buffer_store_dwordx4 {vr(AF,4)}, v{L16}, {q4(SRD_WS)}, s56 offen offset:{i*1024} sc1""")
    a.label(lb)

def phi(a, u, dst, EP, T):
    mx, mn, sp, sn = T, T+2, T+2, T+4
    a(f"v_max3_f32 v{mx}, v{u}, v{u+1}, v{u+2}\nv_min3_f32 v{mn}, v{u}, v{u+1}, v{u+2}")
    for e in range(3, 19, 2):
        a(f"v_max3_f32 v{mx}, v{u+e}, v{u+e+1}, v{mx}\nv_min3_f32 v{mn}, v{u+e}, v{u+e+1}, v{mn}")
    a(f"v_max_f32 v{mx}, v{u+19}, v{mx}\nv_min_f32 v{mn}, v{u+19}, v{mn}")
    a(f"""s_mov_b32 s54, {f32hex(LOG2E)}
s_mov_b32 s55, s54
v_mul_f32 v{mx+1}, s54, v{mx}
v_mul_f32 v{mn+1}, s54, v{mn}
v_mul_f32 v{mx}, s54, v{mx}
v_mul_f32 v{mn}, s54, v{mn}""")
    for e in range(0, 20, 2):
        a(f"v_pk_fma_f32 {vr(EP+e,2)}, {vr(u+e,2)}, s[54:55], {vr(mn,2)} neg_lo:[1,0,0] neg_hi:[1,0,0]")
        a(f"v_pk_fma_f32 {vr(u+e,2)}, {vr(u+e,2)}, s[54:55], {vr(mx,2)} neg_lo:[0,0,1] neg_hi:[0,0,1]")
    for e in range(20):
        a(f"v_exp_f32 v{EP+e}, v{EP+e}\nv_exp_f32 v{u+e}, v{u+e}")
    a(f"v_pk_add_f32 {vr(sp,2)}, {vr(u,2)}, {vr(u+2,2)}\nv_pk_add_f32 {vr(sn,2)}, {vr(EP,2)}, {vr(EP+2,2)}")
    for e in range(4, 20, 2):
        a(f"v_pk_add_f32 {vr(sp,2)}, {vr(sp,2)}, {vr(u+e,2)}\nv_pk_add_f32 {vr(sn,2)}, {vr(sn,2)}, {vr(EP+e,2)}")
    a(f"""v_add_f32 v{sp}, v{sp}, v{sp+1}
v_add_f32 v{sn}, v{sn}, v{sn+1}
v_rcp_f32 v{sp}, v{sp}
v_rcp_f32 v{sn}, v{sn}
v_mov_b32 v{sp+1}, v{sp}
v_mov_b32 v{sn+1}, v{sn}""")
    for e in range(0, 20, 2):
        a(f"v_pk_mul_f32 {vr(u+e,2)}, {vr(u+e,2)}, {vr(sp,2)}")
        a(f"v_pk_mul_f32 {vr(EP+e,2)}, {vr(EP+e,2)}, {vr(sn,2)}")
    for e in range(10):
        a(f"v_cvt_pk_bf16_f32 v{dst+e}, v{u+2*e}, v{u+2*e+1}\nv_cvt_pk_bf16_f32 v{dst+10+e}, v{EP+2*e}, v{EP+2*e+1}")

def gen_p12(a, p2hooks):
    a(f"""
s_mov_b32 s{S_P}, s{S_NT}
s_mov_b32 s{S_BLK}, s{S_MT}
s_cmp_eq_u32 s{S_W}, 0
s_cselect_b32 s{S_PREP}, 1, 0
s_cbranch_scc1 L_p_sel
s_cmp_lg_u32 s{S_NT}, 15
s_cbranch_scc1 L_p_sel
s_and_b32 s{S_P}, s{S_MT}, 3
s_lshl_b32 s{S_P}, s{S_P}, 2
s_add_u32 s{S_P}, s{S_P}, s{S_W}
s_sub_u32 s{S_P}, s{S_P}, 1
s_lshr_b32 s{S_BLK}, s{S_MT}, 2
s_add_u32 s{S_BLK}, s{S_BLK}, 16
s_cmp_lt_u32 s{S_W}, 5
s_cselect_b32 s{S_PREP}, 1, 0
L_p_sel:
""")
    VM.clear()
    E = os.environ.get
    def do_prep(fn):
        lb = a.newlabel("pp")
        a(f"s_cmp_eq_u32 s{S_PREP}, 0\ns_cbranch_scc1 {lb}")
        fn(a)
        a.label(lb)
    do_prep(prep_addr)
    ROT = E("ROT", "sched")
    if ROT == "sched": seqs = eval(E("SEQS", "[[0,4,1,2,3,8,5,6,7,9],[1,0,5,2,3,4,9,6,7,8],[2,3,0,6,1,4,5,7,8,9],[3,2,0,1,7,4,5,6,8,9]]"))
    else: seqs = [[(o + i) % 10 for i in range(10)] for o in (0, 3, 5, 8)]
    pk = lambda q: sum(v << (4*i) for i, v in enumerate(q))
    a(f"s_lshr_b32 s54, s{S_J}, 3\ns_add_u32 s54, s54, s{S_J}\ns_and_b32 s54, s54, 3")
    for c in range(4):
        assert sorted(seqs[c]) == list(range(10))
        op = "s_mov_b32" if c == 0 else "s_cmov_b32"
        if c: a(f"s_cmp_eq_u32 s54, {c}")
        a(f"{op} s{S_SEQ}, {hex(pk(seqs[c]) & 0xffffffff)}\n{op} s{S_SEQ+1}, {hex(pk(seqs[c]) >> 32)}")
    a(f"s_mov_b64 s[{S_SEQ+2}:{S_SEQ+3}], s[{S_SEQ}:{S_SEQ+1}]\ns_and_b32 s{S_KR}, s{S_SEQ}, 15")
    a(f"""
; global DMA addresses
v_lshrrev_b32 v36, 3, v{VL}
s_lshl_b32 s54, s{S_MT}, 7
s_lshl_b32 s56, s{S_W}, 4
s_add_u32 s54, s54, s56
v_add_u32 v36, s54, v36
v_mul_u32_u24 v36, 1280, v36
v_lshrrev_b32 v37, 4, v{VL}
v_and_b32 v38, 7, v{VL}
v_xor_b32 v38, v38, v37
v_lshlrev_b32 v38, 4, v38
v_add_u32 v{XG0}, v36, v38
v_xor_b32 v38, 64, v38
v_add_u32 v{XG1}, v36, v38
v_add_u32 v{XG1}, {8*1280}, v{XG1}
s_lshl_b32 s54, s{S_W}, 3
v_add_u32 v36, s54, v37
v_mul_u32_u24 v36, 3840, v36
v_and_b32 v38, 15, v{VL}
v_lshlrev_b32 v37, 2, v37
v_xor_b32 v38, v38, v37
v_lshlrev_b32 v38, 4, v38
v_add_u32 v36, v36, v38
s_lshl_b32 s54, s{S_NT}, 8
v_add_u32 v{WG}, s54, v36
s_lshl_b32 s{S_LB}, s{S_W}, 11
s_mul_i32 s{S_WBB}, s{S_NT}, {40*4096}
s_add_u32 s{S_WBB}, s{S_WBB}, s{S_LB}
s_add_u32 s{S_WBB}, s{S_WBB}, {WBF}
""")
    a("s_waitcnt lgkmcnt(0)")
    pstamp(a, 1)
    nonce_publish(a)
    do_prep(prep_issue)
    if E("PBAR"): a("s_barrier")
    a(f"s_cmp_eq_u32 s{S_NT}, 15\ns_cbranch_scc1 L_p_nodma")
    dma(a, 0)
    pstamp(a, 2)
    a.label("L_p_nodma")
    code_prefetch(a)
    a(f"""
s_lshl_b32 s54, s{S_TT}, 12
v_lshlrev_b32 v36, 7, v{VN}
v_add_u32 v36, s54, v36
v_bfe_u32 v37, v{VN}, 1, 3
v_xor_b32 v37, v37, v{VH}
""")
    for ks in range(4):
        a(f"""v_xor_b32 v38, {2*ks}, v37
v_lshl_add_u32 v{XA+ks}, v38, 4, v36
v_add_u32 v{XA+4+ks}, 0x10000, v{XA+ks}""")
    a(f"""
v_bfe_u32 v36, v{VL}, 2, 2
v_lshl_add_u32 v37, v{VH}, 3, v36
v_lshlrev_b32 v37, 8, v37
v_add_u32 v37, 16384, v37
v_and_b32 v38, 1, v{VL}
v_bfe_u32 v1, v{VL}, 1, 1
s_cmp_ge_u32 s{S_NT}, 10
s_cselect_b64 vcc, -1, 0
v_cndmask_b32 v0, v1, v38, vcc
v_cndmask_b32 v1, v38, v1, vcc
v_lshl_add_u32 v37, v0, 3, v37
v_bfe_u32 v38, v{VL}, 4, 1
v_lshl_add_u32 v38, v38, 1, v1
s_lshl_b32 s54, s{S_FH}, 3
v_add_u32 v38, s54, v38
v_lshlrev_b32 v36, 2, v36
v_xor_b32 v38, v38, v36
v_lshl_add_u32 v{WA}, v38, 4, v37
v_xor_b32 v38, 4, v38
v_lshl_add_u32 v{WA+1}, v38, 4, v37
v_add_u32 v{WA+2}, 0x10000, v{WA}
v_add_u32 v{WA+3}, 0x10000, v{WA+1}
s_lshl_b32 s54, s{S_FH}, 11
s_add_u32 s54, s54, 65536
v_add_u32 v{WB}, s54, v{L16}
v_add_u32 v{WB+1}, 0x10000, v{WB}
s_lshl_b32 s{S_T}, s{S_MT}, 2
s_add_u32 s{S_T}, s{S_T}, s{S_TT}
""")
    a(f"s_cmp_eq_u32 s{S_NT}, 15\ns_cbranch_scc1 L_p1_x")
    PL = int(E("PREPL", "0"))
    if not PL: do_prep(lambda a: prep_compute(a, 4))
    pstamp(a, 3)
    VM0 = list(VM)
    a(f"""
s_cmp_ge_u32 s{S_NT}, 10
s_cbranch_scc1 L_p1_v
""")
    def h_pub():
        lb = a.newlabel("pa")
        a(f"s_cmp_eq_u32 s{S_PREP}, 0\ns_cbranch_scc1 {lb}")
        a(f"s_waitcnt vmcnt({vm_after('nonce', True)})\nv_readfirstlane_b32 s{S_NONCE}, v35")
        wb_flag_set(a)
        a.label(lb)
    def h_wb_issue():
        lb = a.newlabel("pw")
        a(f"""s_cmp_lg_u32 s{S_W}, 7
s_cbranch_scc1 {lb}
s_lshl_b32 s60, s{S_NT}, 9
s_add_u32 s60, s60, {FL_WB}
v_min_u32 v0, 19, v{VL}
v_lshlrev_b32 v0, 4, v0
buffer_load_dword v34, v0, {q4(SRD_WS)}, s60 offen sc0 sc1""")
        a.label(lb)
    def h_wb_check():
        lb = a.newlabel("pw")
        a(f"""s_cmp_lg_u32 s{S_W}, 7
s_cbranch_scc1 {lb}
v_cmp_ne_u32 vcc, s{S_NONCE}, v34
s_cmp_eq_u32 s{S_NONCE}, 0
s_cselect_b32 s60, 1, 0
s_nop 2
s_or_b32 s60, s60, vcc_lo
s_or_b32 s60, s60, vcc_hi
s_cbranch_scc0 {lb}""")
        wb_flag_wait(a)
        a.label(lb)
    PREBAR[8] = h_wb_check
    def h_pub2():
        lb = a.newlabel("pa")
        a(f"s_cmp_eq_u32 s{S_PREP}, 0\ns_cbranch_scc1 {lb}")
        wb_flag_set(a)
        a.label(lb)
    hooks1 = {1: h_pub, 2: lambda: a(f"v_readfirstlane_b32 s60, v35\ns_max_u32 s{S_NONCE}, s{S_NONCE}, s60"), 3: lambda: stamp(a, 2), 6: h_wb_issue, 9: lambda: stamp(a, 3)}
    if PL:
        hn = hooks1[2]
        del hooks1[1]
        if PL == 1: hooks1[1] = lambda: (do_prep(lambda a: prep_compute(a, 40)), VM.extend(["p:st"] * 8))
        else: hooks1[2] = lambda: (hn(), do_prep(lambda a: prep_compute(a, 40)), VM.extend(["p:st"] * 8))
        hooks1[4] = h_pub2
    def p1(swapped):
        VM[:] = VM0
        pstamp(a, 4)
        for half in range(2):
            lb = a.newlabel("pc")
            if not PL: a(f"s_cmp_lg_u32 s{S_PREP}, 0\ns_cbranch_scc1 {lb}")
            a("s_waitcnt vmcnt(2)")
            a.label(lb)
            dma_piece(a, 1, 2*half); dma_piece(a, 1, 2*half + 1)
            pstamp(a, 5 + half)
        a(f"v_mov_b32 v0, 0\nbuffer_load_dword v35, v0, {q4(SRD_DBG)}, 0 offen sc0 sc1\ns_barrier")
        VM.append("nonce")
        stamp(a, 1)
        for i in range(LA): reads(a, i, swapped == 'x')
        steps(a, 0, 40, swapped, hooks1)
    a(f"""
s_cmp_ge_u32 s{S_NT}, 5
s_cselect_b32 s54, 5, 0
s_sub_u32 s54, s{S_NT}, s54
s_lshl_b32 s54, s54, 4
s_lshl_b32 s56, s{S_FH}, 3
s_add_u32 s54, s54, s56
s_cmp_ge_u32 s{S_NT}, 5
s_mov_b32 s56, {64*1280}
s_cselect_b32 s58, {64*2560}, s56
s_mov_b32 s56, 1280
s_cselect_b32 s59, 2560, s56
s_mov_b32 s56, {QIMG}
s_cselect_b32 s63, {KVIMG}, s56
s_mov_b32 s56, {f32hex(QSCALE)}
s_cselect_b32 s64, 1.0, s56
s_mul_i32 s59, s59, s{S_T}
s_add_u32 s63, s63, s59
s_lshl_b32 s59, s58, 1
s_sub_u32 s65, s58, 1536
""")
    a(f"""
v_mov_b32 v36, v{VN}
v_add_u32 v38, s54, v{VH}
v_bfe_u32 v0, v{VN}, 2, 1
v_mul_u32_u24 v1, 3, v0
v_xor_b32 v1, v1, v{VN}
v_and_b32 v1, 3, v1
v_lshlrev_b32 v1, 4, v1
v_lshrrev_b32 v39, 3, v{VN}
v_lshl_add_u32 v39, v39, 6, v1
v_mul_lo_u32 v0, v0, s58
v_add_u32 v39, v39, v0
v_add_u32 v39, 1024, v39
""")
    for j in range(4):
        a(f"""v_add_u32 v0, {2*j}, v38
v_mul_u32_u24 v1, 205, v0
v_lshrrev_b32 v1, 10, v1
v_mul_u32_u24 v37, 5, v1
v_sub_u32 v0, v0, v37
v_mul_lo_u32 v1, v1, s59
v_add_u32 v1, s63, v1
v_cmp_lt_u32 vcc, 2, v0
v_lshl_add_u32 v37, v0, 9, v1
v_lshl_add_u32 v37, v36, 4, v37
v_add_u32 v{EA+j}, s65, v37
v_cndmask_b32 v37, v37, v{EA+j}, vcc
v_cmp_eq_u32 s[{SPM[j]}:{SPM[j]+1}], 2, v0
v_add_u32 v1, v1, v39
s_nop 0
v_cndmask_b32 v{EA+j}, v37, v1, s[{SPM[j]}:{SPM[j]+1}]""")
    p1(False)
    a("s_mov_b32 s65, s64\ns_nop 7\ns_nop 2")
    for j in range(4):
        r = ACC + 8*j
        for e in range(0, 8, 2):
            a(f"v_pk_mul_f32 {vr(r+e,2)}, {vr(r+e,2)}, s[64:65]")
        for e in range(4):
            a(f"v_cvt_pk_bf16_f32 v{HOLD[j]+e}, v{r+2*e}, v{r+2*e+1}")
    for j in range(4):
        h = HOLD[j]
        lb = a.newlabel("sp")
        a(f"""s_cmp_eq_u64 s[{SPM[j]}:{SPM[j]+1}], 0
s_cbranch_scc1 {lb}
s_mov_b64 exec, s[{SPM[j]}:{SPM[j]+1}]
v_mov_b64 v[0:1], {vr(h+2,2)}
v_mov_b32_dpp v{h+2}, v{h} row_half_mirror row_mask:0xf bank_mask:0x5
v_mov_b32_dpp v{h+3}, v{h+1} row_half_mirror row_mask:0xf bank_mask:0x5
v_mov_b32_dpp v{h}, v0 row_half_mirror row_mask:0xf bank_mask:0xa
v_mov_b32_dpp v{h+1}, v1 row_half_mirror row_mask:0xf bank_mask:0xa
s_mov_b64 exec, -1""")
        a.label(lb)
    a("s_branch L_p2")
    a.label("L_p1_x")
    a(f"s_cmp_eq_u32 s{S_PREP}, 0\ns_cbranch_scc1 L_x_ld")
    prep_compute(a, 0)
    a("s_barrier\ns_waitcnt vmcnt(0)")
    wb_flag_set(a)
    stamp(a, 6)
    a(f"""s_branch L_x_sync
L_x_ld:
s_barrier
s_sub_u32 s54, s{S_W}, 5
s_mul_i32 s54, s54, 3
s_sub_u32 s55, s54, s{S_W}
s_mul_i32 s55, s55, {16*1280}
v_add_u32 v36, s55, v{XG0}
v_add_u32 v37, s55, v{XG1}
s_lshl_b32 s54, s54, 11
s_mov_b32 s55, 0
L_x_loop:""")
    for i in range(3):
        if i == 2: a(f"s_cmp_eq_u32 s{S_W}, 7\ns_cbranch_scc1 L_x_next")
        a(f"""s_add_u32 m0, s54, {2048*i}
s_add_u32 s56, s55, {16*1280*i}
buffer_load_dwordx4 v36, {q4(SRD_X)}, s56 offen lds
s_add_u32 m0, s54, {2048*i + 1024}
s_nop 0
buffer_load_dwordx4 v37, {q4(SRD_X)}, s56 offen lds""")
    a(f"""L_x_next:
s_add_u32 s54, s54, 16384
s_add_u32 s55, s55, 128
s_cmp_lt_u32 s55, 1024
s_cbranch_scc1 L_x_loop
L_x_sync:
s_waitcnt vmcnt(0)
s_barrier""")
    stamp(a, 1)
    for st in (8, 9):
        for i in range(2):
            a(f"""s_add_u32 m0, s{S_LB}, {TOP + (st-8)*16384 + 1024*i}
s_movk_i32 s{S_XO}, {st*128}
buffer_load_dwordx4 v{XG0+i}, {q4(SRD_X)}, s{S_XO} offen lds""")
    for g in range(32):
        a(f"ds_read_b128 {vr(XR+4*g,4)}, v{XA+4*(g>>4)+(g&3)} offset:{((g>>2)&3)*16384}")
    for ks in range(4):
        a(f"v_add_u32 v{XA+ks}, 0x20000, v{XA+ks}")
    nonce_get(a)
    lb = a.newlabel("xw")
    a(f"s_cmp_lg_u32 s{S_W}, 7\ns_cbranch_scc1 {lb}")
    wb_flag_wait(a)
    a.label(lb)
    a("s_waitcnt vmcnt(0) lgkmcnt(0)\ns_barrier")
    stamp(a, 2)
    for g in range(32, 40):
        a(f"ds_read_b128 {vr(XR+4*g,4)}, v{XA+(g&3)} offset:{((g>>2)&1)*16384}")
    a(f"s_mov_b32 s{S_KR}, 2\ns_mov_b32 s{S_SEQ}, 0x76105432\ns_mov_b32 s{S_SEQ+1}, 0x98")
    for st in range(12, 16):
        for i in range(2): dma_piece(a, st, i)
    a("s_waitcnt lgkmcnt(0)\ns_barrier")
    for st in range(10, 12):
        for i in range(2): dma_piece(a, st, i)
    for i in range(4):
        a(f"v_mov_b32 v{EA+i}, {OOB}")
    a("s_waitcnt vmcnt(0)\ns_barrier")
    stamp(a, 3)
    reads(a, 40); reads(a, 41)
    a("s_branch L_p2")
    a.label("L_p1_v")
    a(f"""
s_sub_u32 s54, s{S_NT}, 10
s_lshl_b32 s54, s54, 7
s_lshl_b32 s56, s{S_FH}, 6
s_add_u32 s54, s54, s56
s_mul_i32 s63, s{S_T}, 2560
s_add_u32 s63, s63, {KVIMG + 1280}
s_mov_b32 s58, {64*2560}
v_mul_u32_u24 v36, 320, v{VH}
v_add_u32 v36, s63, v36
v_add_u32 v38, s54, v{VN}
""")
    for ft in range(2):
        a(f"""v_add_u32 v0, {32*ft}, v38
v_mul_u32_u24 v1, 3277, v0
v_lshrrev_b32 v1, 16, v1
v_mul_u32_u24 v37, 20, v1
v_sub_u32 v0, v0, v37
v_mul_lo_u32 v1, v1, s58
v_lshl_add_u32 v1, v0, 4, v1
v_add_u32 v{EA+2*ft}, v1, v36
v_add_u32 v{EA+2*ft+1}, 640, v{EA+2*ft}""")
    p1(True)
    a("s_nop 7\ns_nop 7")
    for j in range(4):
        for e in range(4):
            a(f"v_cvt_pk_bf16_f32 v{HOLD[j]+e}, v{ACC+8*j+2*e}, v{ACC+8*j+2*e+1}")
    a.label("L_p2")
    a(f"v_add_u32 v{WBR[0]}, 0xffff0000, v{WB}")
    def h_qkv():
        lb = a.newlabel("qa")
        a(f"s_cmp_lg_u32 s{S_W}, 7\ns_cbranch_scc1 {lb}")
        a(f"s_lshl_b32 s60, s{S_NT}, 4\ns_add_u32 s60, s60, s{S_MT}\ns_lshl_b32 s60, s60, 4\ns_add_u32 s60, s60, {FL_QKV}")
        flag_set(a, "s60")
        a.label(lb)
    stamp(a, 4)
    hooks2 = dict(p2hooks)
    hooks2[QST] = h_qkv
    steps(a, 40, 80, False, hooks2)
    stamp(a, 5)

T0, T1, T2, T3, T4, T5, T6, T7 = 194, 195, 196, 197, 198, 199, 216, 217
S_KVA = 79
def b_addr(a):
    a(f"""
s_lshl_b32 s54, s{S_TT}, 5
v_add_u32 v{T0}, s54, v{VN}
v_mul_u32_u24 v{T0}, {BROW}, v{T0}
v_add_u32 v{T0}, {STG}, v{T0}
v_mul_u32_u24 v{T2}, 48, v{VH}
v_add_u32 v{T2}, v{T2}, v{T0}
v_mul_u32_u24 v{T1}, 80, v{VH}
v_add_u32 v{T1}, v{T1}, v{T0}
s_and_b32 s57, s{S_W}, 1
s_bfe_u32 s58, s{S_W}, 0x10001
v_bfe_u32 v6, v{VL}, 2, 2
v_lshl_add_u32 v6, v{VH}, 3, v6
v_mul_u32_u24 v6, {BROW}, v6
v_bfe_u32 v7, v{VL}, 4, 1
v_lshl_add_u32 v6, v7, 5, v6
v_and_b32 v7, 3, v{VL}
v_lshl_add_u32 v6, v7, 3, v6
s_mul_i32 s54, s57, 48
s_add_u32 s54, s54, {160 + STG}
v_add_u32 v{T3}, s54, v6
s_mul_i32 s54, s57, 80
s_lshl_b32 s56, s58, 6
s_add_u32 s54, s54, s56
s_add_u32 s54, s54, {STG}
v_add_u32 v{T4}, s54, v6
s_lshl_b32 s{S_KVA}, s{S_NT}, 1
s_add_u32 s{S_KVA}, s{S_KVA}, s57
s_lshl_b32 s{S_KVA}, s{S_KVA}, 12
s_add_u32 s{S_KVA}, s{S_KVA}, {KVACC}
s_lshl_b32 s56, s58, 5
v_add_u32 v6, s56, v{VN}
v_cmp_gt_u32 vcc, 40, v6
v_lshlrev_b32 v6, 2, v6
v_mul_u32_u24 v7, 640, v{VH}
v_add_u32 v6, v6, v7
v_mov_b32 v7, {OOB}
v_cndmask_b32 v{T5}, v7, v6, vcc
v_cmp_gt_u32 vcc, 32, v{VL}
s_nop 1
v_cndmask_b32 v{T6}, v7, v{T5}, vcc
""")

def b_stage(a):
    for e in range(6):
        a(f"v_cvt_pk_bf16_f32 v{168+e}, v{ACC+20+2*e}, v{ACC+21+2*e}")
    a(f"""
s_cmp_eq_u32 s{S_FH}, 0
s_cbranch_scc0 L_b_k
ds_write_b128 v{T2}, v[168:171] offset:160
ds_write_b64 v{T2}, v[172:173] offset:176
v_mov_b64 {vr(PHQ_R+20,2)}, 0
v_mov_b64 {vr(PHQ_R+22,2)}, 0
""")
    for g in range(3):
        for e in range(4):
            a(f"v_permlane32_swap_b32 v{PHQ_R+8*g+e}, v{PHQ_R+8*g+4+e}")
    a(f"""
s_branch L_b_staged
L_b_k:
v_mul_f32 v{ACC+28}, {f32hex(-LOG2E)}, v{ACC+28}
v_exp_f32 v{ACC+28}, v{ACC+28}
v_mov_b32 v172, 0x3f80
v_add_f32 v{ACC+28}, 1.0, v{ACC+28}
v_rcp_f32 v174, v{ACC+28}
v_mov_b32 v173, 0
ds_write_b64 v{T2}, v[168:169] offset:184
ds_write_b128 v{T2}, v[170:173] offset:192
v_sub_f32 v175, 1.0, v174
""")
    for i in range(5):
        a(f"ds_write_b128 v{T1}, {vr(PHQ_R+4*i,4)} offset:{16*i}")
    a(f"""
ds_write_b32 v{T0}, v175 offset:256
s_cmp_lg_u32 s{S_NT}, 0
s_cbranch_scc1 L_b_staged
s_lshl_b32 s54, s{S_T}, 7
s_add_u32 s54, s54, {GATE}
v_lshlrev_b32 v0, 2, v{VN}
buffer_store_dword v174, v0, {q4(SRD_WS)}, s54 offen sc1
L_b_staged:
""")

def b_kv(a):
    a(f"""
s_cmp_eq_u32 s{S_FH}, 0
s_cbranch_scc0 L_b_k2
ds_read_b32 v{OMG}, v{T0} offset:256
s_branch L_b_done
L_b_k2:
""")
    KD, FR = 200, 168
    def kvreads(ks):
        b = FR + 8*(ks % 3)
        for aa in range(2):
            a(f"ds_read_b64_tr_b16 {vr(b+2*aa,2)}, v{T3} offset:{(16*ks+4*aa)*BROW}")
            a(f"ds_read_b64_tr_b16 {vr(b+4+2*aa,2)}, v{T4} offset:{(16*ks+4*aa)*BROW}")
    kvreads(0); kvreads(1)
    for ks in range(8):
        b = FR + 8*(ks % 3)
        if ks + 2 < 8: kvreads(ks + 2)
        a(f"s_waitcnt lgkmcnt({4*min(2, 7-ks)})")
        a(f"v_mfma_f32_32x32x16_bf16 {vr(KD,16)}, {vr(b,4)}, {vr(b+4,4)}, {'0' if ks == 0 else vr(KD,16)}")
    a.label("L_b_done")
def b_atomics(a):
    for r in range(12):
        ad = T6 if r > 8 else T5
        a(f"buffer_atomic_add_f32 v{200+r}, v{ad}, {q4(SRD_WS)}, s{S_KVA} offen offset:{(8*(r//4) + r%4)*160}")
```

```python
from asmlib import *
from layout import *
import f1
from f1 import VL, L16, VN, VH, PHQ_R, OMG, swap23, flag_set, flag_wait, flag_wait2, flag_peek, flag_check, nonce_get, S_T, VM, vm_after
SLOT = 10304
RST = eval(os.environ.get('RST', '{}'))
stamp2 = stamp
if RST:
    def stamp(a, i): pass
HALF = 6 * SLOT
FLG = 159232
import f3
S = [16, 32, 48, 64]; O = [80, 96]
Q1 = [112, 116]; Q2 = [120, 122]
K1 = [124, 128]; K2 = [132, 134]
V = [[136, 140], [144, 148]]
VA = 152; KA1 = 160; KA2 = 161; IDX = 162; DG = 163; K16 = 164; K8 = 165; MX = [166, 167]
QA8, OA4, OA2, ROWM = 12, 13, 14, 15
ONEA = f1.T7
RAW = 168
S_HEAD, S_QT, S_MODE, S_WIN, S_M0, S_KVB = 66, 67, 68, 69, 70, 71
S_QP, S_KH = S_TT, S_FH

def kv_dma(a, pos):
    a(f"""s_add_u32 m0, s{S_M0}, {pos*2*SLOT}
s_add_u32 s54, s{S_WIN}, 4096
buffer_load_dwordx4 v{DG}, {q4(SRD_WS)}, s{S_WIN} offen lds
buffer_load_dwordx4 v{DG}, {q4(SRD_WS)}, s{S_WIN} offen offset:1024 lds
buffer_load_dwordx4 v{DG}, {q4(SRD_WS)}, s{S_WIN} offen offset:2048 lds
buffer_load_dwordx4 v{DG}, {q4(SRD_WS)}, s{S_WIN} offen offset:3072 lds
s_add_u32 m0, s{S_M0}, {pos*2*SLOT + 4096}
s_add_u32 s{S_WIN}, s{S_WIN}, 20480
buffer_load_dwordx4 v{DG}, {q4(SRD_WS)}, s54 offen lds""")
    VM.extend([("kv", pos)] * 5)

def attn_scalars(a):
    a(f"""
s_lshr_b32 s54, s{S_J}, 3
s_lshl_b32 s{S_HEAD}, s{S_XCD}, 2
s_add_u32 s{S_HEAD}, s{S_HEAD}, s54
s_and_b32 s54, s{S_J}, 7
s_lshl_b32 s54, s54, 3
s_lshl_b32 s{S_QT}, s{S_QP}, 1
s_add_u32 s{S_QT}, s{S_QT}, s54
s_mul_i32 s{S_KVB}, s{S_HEAD}, {64*2560}
s_add_u32 s{S_KVB}, s{S_KVB}, {KVIMG}
s_mul_i32 s54, s{S_QP}, 5120
s_lshr_b32 s{S_M0}, s{S_QP}, 1
s_mul_i32 s{S_M0}, s{S_M0}, {SLOT - 10240}
s_add_u32 s{S_M0}, s{S_M0}, s54
s_mul_i32 s54, s{S_KH}, {HALF}
s_add_u32 s{S_M0}, s{S_M0}, s54
s_mov_b32 s{S_MODE}, 0
""")

S_QF = 78
QGO = 163832
def qkv_addr(a):
    a(f"""s_mul_i32 s54, s{S_HEAD}, 20
s_lshr_b32 s55, s54, 7
s_add_u32 s54, s54, 19
s_lshr_b32 s54, s54, 7
s_sub_u32 s54, s54, s55
s_lshl_b32 s54, s54, 8
s_lshl_b32 s{S_QF}, s55, 8
s_add_u32 s{S_QF}, s{S_QF}, {FL_QKV}
v_min_u32 v6, 47, v{VL}
v_lshrrev_b32 v38, 4, v6
v_mul_u32_u24 v38, 1280, v38
v_bfe_u32 v7, v6, 3, 1
v_mul_u32_u24 v7, s54, v7
v_and_b32 v6, 7, v6
v_lshlrev_b32 v6, 4, v6
v_add3_u32 v38, v38, v7, v6""")
S_POLL, S_TODO = 72, 63
_uid = [0]
def ulabel(b):
    _uid[0] += 1
    return f"L_{b}_u{_uid[0]}"
def go_init(a):
    a(f"""v_mov_b32 v39, {QGO}
v_mov_b32 v36, 0
ds_write_b32 v39, v36
s_min_u32 s{S_POLL}, s{S_W}, 1
s_xor_b32 s{S_POLL}, s{S_POLL}, 1
s_mov_b32 s{S_TODO}, 1""")
def qkv_peek(a):
    lb = ulabel("pk")
    a(f"""s_cmp_eq_u32 s{S_POLL}, 0
s_cbranch_scc1 {lb}
buffer_load_dword v36, v38, {q4(SRD_WS)}, s{S_QF} offen sc0 sc1
buffer_load_dword v37, v38, {q4(SRD_WS)}, s{S_QF} offen offset:128 sc0 sc1
{lb}:""")
def qkv_check(a):
    lb = ulabel("pk")
    a(f"""s_cmp_eq_u32 s{S_POLL}, 0
s_cbranch_scc1 {lb}
s_waitcnt vmcnt(0)
v_xor_b32 v36, s{S_NONCE}, v36
v_xor_b32 v37, s{S_NONCE}, v37
v_or_b32 v36, v36, v37
v_cmp_ne_u32 s[60:61], 0, v36
v_mov_b32 v36, 1
s_nop 3
s_or_b32 s61, s60, s61
s_cbranch_scc1 {lb}
ds_write_b32 v39, v36
s_mov_b32 s{S_POLL}, 0
s_waitcnt lgkmcnt(0)
{lb}:""")
def go_read(a): a("ds_read_b32 v35, v39")
def go_try(a, wait=True):
    lb = ulabel("gt")
    if wait: a("s_waitcnt lgkmcnt(0)")
    a(f"""v_readfirstlane_b32 s60, v35
s_and_b32 s60, s60, s{S_TODO}
s_cbranch_scc0 {lb}
s_mov_b32 s{S_TODO}, 0""")
    sv = list(VM)
    attn_issue(a, True)
    VM[:] = sv
    a.label(lb)

def attn_issue(a, first):
    if first:
        a(f"""
s_mul_i32 s54, s{S_QT}, 1280
s_mul_i32 s55, s{S_HEAD}, {64*1280}
s_add_u32 s54, s54, s55
s_add_u32 s54, s54, {QIMG}
buffer_load_dwordx4 {vr(Q1[0],4)}, v{L16}, {q4(SRD_WS)}, s54 offen
buffer_load_dword v{Q2[0]}, v{QA8}, {q4(SRD_WS)}, s54 offen offset:1024
buffer_load_dwordx4 {vr(Q1[1],4)}, v{L16}, {q4(SRD_WS)}, s54 offen offset:1280
buffer_load_dword v{Q2[1]}, v{QA8}, {q4(SRD_WS)}, s54 offen offset:2304
""")
        VM.extend(["qk"] * 4)
    a(f"""
s_mul_i32 s{S_WIN}, s{S_KH}, {32*2560}
s_add_u32 s{S_WIN}, s{S_WIN}, s{S_KVB}
buffer_load_dwordx4 {vr(K1[0],4)}, v{K16}, {q4(SRD_WS)}, s{S_KVB} offen
buffer_load_dword v{K2[0]}, v{K8}, {q4(SRD_WS)}, s{S_KVB} offen offset:1024
buffer_load_dwordx4 {vr(K1[1],4)}, v{K16}, {q4(SRD_WS)}, s{S_WIN} offen
buffer_load_dword v{K2[1]}, v{K8}, {q4(SRD_WS)}, s{S_WIN} offen offset:1024
s_add_u32 s{S_WIN}, s{S_WIN}, 1280
""")
    VM.extend(["qk"] * 4)
    kv_dma(a, 0)

def out_store(a, o, scale, head_s, tile_s, base):
    a(f"v_mov_b32 v{scale+1}, v{scale}")
    for i in range(0, 12, 2):
        a(f"v_pk_mul_f32 {vr(o+i,2)}, {vr(o+i,2)}, {vr(scale,2)}")
    for i in range(6):
        a(f"v_cvt_pk_bf16_f32 v{o+i}, v{o+2*i}, v{o+2*i+1}")
    a(f"""
s_mul_i32 s54, {tile_s}, 40960
s_add_u32 s54, s54, {base}
s_lshl_b32 s56, {head_s}, 9
s_add_u32 s56, s56, s54
s_lshl_b32 s57, {head_s}, 7
s_add_u32 s57, s57, s54
buffer_store_dwordx4 {vr(o,4)}, v{OA4}, {q4(SRD_WS)}, s56 offen sc1
buffer_store_dwordx2 {vr(o+4,2)}, v{OA2}, {q4(SRD_WS)}, s57 offen sc1
""")

PKR = 10
KV_AD = f"s_lshl_b32 s60, s{S_NT}, 10\ns_add_u32 s60, s60, {FL_KV}"
def p4_issue(a):
    a("s_waitcnt vmcnt(0)")
    flag_check(a, KV_AD, 64, PKR)
    a(f"""
s_lshl_b32 s54, s{S_NT}, 13
s_add_u32 s54, s54, {KVACC}
s_add_u32 s55, s54, 4096
v_mov_b32 v8, {OOB}
""")
    a(f"""v_cmp_ge_u32 vcc, 20, v{ROWM}
v_mul_u32_u24 v6, 160, v{ROWM}
v_lshl_add_u32 v6, v{VH}, 5, v6
v_cndmask_b32 v6, v8, v6, vcc
v_cmp_gt_u32 vcc, 32, v{VL}
s_nop 1
v_cndmask_b32 v7, v8, v6, vcc""")
    for hh in range(2):
        for u in range(3):
            for hf in range(2):
                a(f"buffer_load_dwordx4 {vr(RAW+24*hh+8*u+4*hf,4)}, v{7 if u == 2 else 6}, {q4(SRD_WS)}, s{54+hh} offen offset:{64*u + 16*hf} sc0 sc1")

def p4_compute(a):
    for f in range(6):
        for e in range(4):
            a(f"v_cvt_pk_bf16_f32 v{RAW+4*f+e}, v{RAW+8*f+2*e}, v{RAW+8*f+2*e+1}")
    a("s_nop 1")
    D = [192, 208]
    for hh in range(2):
        for u in range(3):
            a(f"v_mfma_f32_32x32x16_bf16 {vr(D[hh],16)}, {vr(RAW+12*hh+4*u,4)}, {vr(PHQ_R+8*u+4*hh,4)}, {'0' if u == 0 else vr(D[hh],16)}")
    a(f"s_lshl_b32 s58, s{S_NT}, 1\ns_nop 7")
    for hh in range(2):
        a(f"""v_add_f32 v6, {f32hex(1e-6)}, v{D[hh]+12}
v_rcp_f32 v6, v6
s_nop 0
v_mul_f32 v6, v6, v{OMG}""")
        out_store(a, D[hh], 6, "s58", f"s{S_T}", OBF)
        if hh == 0: a("s_add_u32 s58, s58, 1")

def max_init(a):
    a(f"""
v_mov_b32 v{K2[0]+1}, 0x3f803f80
v_mov_b32 v{K2[1]+1}, 0x3f803f80
v_mov_b32 v{Q2[0]+1}, 0
v_mov_b32 v{Q2[1]+1}, 0
v_mov_b32 v{MX[0]}, 0xff800000
v_mov_b32 v{MX[1]}, 0xff800000
v_mov_b64 {vr(V[1][1],2)}, 0
v_mov_b64 {vr(V[1][1]+2,2)}, 0
""")
def qk(a, kb):
    for q in range(2):
        a(f"""v_mfma_f32_32x32x16_bf16 {vr(S[q],16)}, {vr(K1[kb],4)}, {vr(Q1[q],4)}, 0
v_mfma_f32_32x32x8_bf16 {vr(S[q],16)}, {vr(K2[kb],2)}, {vr(Q2[q],2)}, {vr(S[q],16)}""")
def max_acc(a):
    for q in range(2):
        for e in range(8):
            a(f"v_max3_f32 v{MX[q]}, v{S[q]+2*e}, v{S[q]+2*e+1}, v{MX[q]}")
def max_fin(a):
    a(f"v_cmp_gt_u32 vcc, 32, v{VL}\nv_mov_b32 v176, v{MX[0]}\nv_mov_b32 v179, v{MX[1]}\ns_nop 0")
    a(f"v_permlane32_swap_b32 v176, v{MX[0]}\nv_permlane32_swap_b32 v179, v{MX[1]}\ns_nop 0")
    for q in range(2):
        t = 176 + 3*q
        a(f"""v_max_f32 v{t}, v{t}, v{MX[q]}
v_xor_b32 v{t}, 0x80000000, v{t}
v_and_b32 v{t+1}, 0xffff0000, v{t}
v_sub_f32 v{t}, v{t}, v{t+1}
v_and_b32 v{t+2}, 0xffff0000, v{t}
v_sub_f32 v{t}, v{t}, v{t+2}
v_lshrrev_b32 v{t+1}, 16, v{t+1}
v_or_b32 v{t+1}, v{t+1}, v{t+2}
v_lshrrev_b32 v{t}, 16, v{t}
v_cndmask_b32 v{Q2[q]+1}, v{t}, v{t+1}, vcc""")
    a("s_nop 1")
def static_setup(a):
    swap23(a, ROWM, VN, 6)
    for dst, src in ((QA8, VN), (K8, ROWM)):
        a(f"""v_bfe_u32 v6, v{src}, 2, 1
v_mul_u32_u24 v6, 7, v6
v_lshlrev_b32 v7, 1, v{src}
v_and_b32 v7, 6, v7
v_xor_b32 v6, v6, v7
v_and_b32 v7, 24, v{src}
v_add_u32 v6, v6, v7
v_lshlrev_b32 v6, 3, v6
v_lshl_add_u32 v{dst}, v{VH}, 2, v6""")
    a(f"""
v_lshlrev_b32 v{K16}, 4, v{ROWM}
v_lshl_add_u32 v{K16}, v{VH}, 9, v{K16}
s_mul_i32 s54, s{S_QP}, 5120
v_add_u32 v{DG}, s54, v{L16}
v_cmp_gt_u32 vcc, 20, v{VN}
v_and_b32 v6, 27, v{VN}
v_mov_b32 v7, 31
v_cndmask_b32 v{ROWM}, v7, v{ROWM}, vcc
v_cmp_eq_u32 vcc, 24, v6
v_bfe_u32 v6, v{VL}, 4, 1
v_mul_u32_u24 v6, 20480, v6
v_cndmask_b32 v{ROWM}, v{ROWM}, 20, vcc
v_and_b32 v7, 15, v{VL}
v_lshl_add_u32 v{OA4}, v7, 4, v6
v_lshl_add_u32 v{OA4}, v{VH}, 8, v{OA4}
v_lshl_add_u32 v6, v7, 3, v6
v_add_u32 v6, 16384, v6
v_cmp_gt_u32 vcc, 32, v{VL}
v_mov_b32 v7, {OOB}
v_mov_b32 v{IDX}, 0xdddddddd
v_cndmask_b32 v{OA2}, v7, v6, vcc
s_mul_i32 s55, s{S_KH}, {HALF}
v_add_u32 v{KA1}, s55, v{K16}
v_add_u32 v{KA2}, s55, v{K8}
v_mul_u32_u24 v7, 320, v{VH}
v_lshl_add_u32 v7, v{ROWM}, 4, v7
v_cmp_eq_u32 vcc, 20, v{ROWM}
v_mov_b32 v8, 10240
v_mov_b32 v9, 10256
v_cndmask_b32 v9, v9, v8, vcc
v_cmp_gt_u32 vcc, 20, v{ROWM}
v_mov_b32 v8, 640
v_mov_b32 v10, 1920
v_cndmask_b32 v7, v9, v7, vcc
v_cndmask_b32 v8, 0, v8, vcc
v_cndmask_b32 v10, 0, v10, vcc
v_add_u32 v{VA}, s55, v7
""")
    for i in range(1, 8):
        a(f"v_add_u32 v{VA+i}, v{VA+i-1}, v{8 if i & 1 else 10}")
    max_init(a)
def ones_addr(a):
    a(f"""
v_min_u32 v6, 11, v{VL}
v_lshrrev_b32 v7, 1, v6
v_mul_u32_u24 v7, {SLOT}, v7
v_and_b32 v6, 1, v6
v_lshl_add_u32 v7, v6, 4, v7
s_mul_i32 s55, s{S_KH}, {HALF}
s_add_u32 s55, s55, 10240
v_add_u32 v{ONEA}, s55, v7
v_add_u32 v6, -1, v6
v_and_b32 v8, 0x3f803f80, v6
v_mov_b32 v9, v8
v_mov_b32 v10, v8
v_mov_b32 v11, v8
""")
def ones_write(a, mask):
    a(f"s_mov_b64 exec, {mask}\nds_write_b128 v{ONEA}, v[8:11]\ns_mov_b64 exec, -1")
def o_zero(a):
    for q in range(2):
        a(f"v_mfma_f32_32x32x16_bf16 {vr(O[q],16)}, {vr(V[1][1],4)}, {vr(V[1][1],4)}, 0")
def G(a, rec):
    pos = (0, 1, 2, 0, 1)[rec >> 3]
    slot, j, p = (rec >> 2) & 1, rec & 3, rec & 1
    so = (2*pos + slot) * SLOT
    a(f"""ds_read_b128 {vr(K1[p],4)}, v{KA1} offset:{so + j*2560 + 1280}
ds_read_b32 v{K2[p]}, v{KA2} offset:{so + j*2560 + 2304}
ds_read_b128 {vr(V[p][0],4)}, v{VA+2*j} offset:{so}
ds_read_b128 {vr(V[p][1],4)}, v{VA+2*j+1} offset:{so}""")

def cond(a, test, fn):
    lb = a.newlabel("c")
    a(test + f"\ns_cbranch_scc1 {lb}")
    fn()
    a.label(lb)

def gen_attn(a):
    E = os.environ.get
    nonce_get(a)
    a(f"s_cmp_eq_u32 s{S_POLL}, 0\ns_cbranch_scc1 L_q_other\nv_mov_b32 v0, v38")
    flag_wait2(a, f"s{S_QF}", sleep=2)
    a("v_mov_b32 v36, 1\nds_write_b32 v39, v36\nL_q_other:")
    go_read(a)
    ones_write(a, 15)
    go_try(a)
    a("s_nop 1")
    f1.phi(a, f1.ACC, PHQ_R, 168, 188)
    a(f"""s_cmp_eq_u32 s{S_TODO}, 0
s_cbranch_scc1 L_q_done
s_mov_b32 s62, 0x4000000
L_q_spin:
ds_read_b32 v35, v39
s_waitcnt lgkmcnt(0)
v_readfirstlane_b32 s60, v35
s_cmp_lg_u32 s60, 0
s_cbranch_scc1 L_q_go
s_sleep 1
s_sub_u32 s62, s62, 1
s_cmp_lg_u32 s62, 0
s_cbranch_scc1 L_q_spin
L_q_go:""")
    attn_issue(a, True)
    a.label("L_q_done")
    a(f"s_waitcnt vmcnt({vm_after('qk')})")
    qk(a, 0)
    f1.b_stage(a)
    max_acc(a); max_fin(a)
    qk(a, 1)
    o_zero(a)
    a(f"s_waitcnt vmcnt({vm_after(('kv', 0))}) lgkmcnt(0)")
    a("s_barrier")
    if DIAG:
        stamp_flush(a, 0, S_W, 8, keep=True); stamp_init(a); stamp(a, 0)
    G(a, 0)
    ones_write(a, 0xff0)
    f1.b_kv(a)
    a.label("L_at_go")
    a("s_setprio 3\ns_waitcnt lgkmcnt(0)")
    stamp(a, 2)
    def h_kvflag():
        a("s_waitcnt vmcnt(0)")
        a(f"s_lshl_b32 s60, s{S_NT}, 6\ns_add_u32 s60, s60, s{S_T}\ns_lshl_b32 s60, s60, 4\ns_add_u32 s60, s60, {FL_KV}")
        flag_set(a, "s60")
    def h_p4c():
        a("s_waitcnt vmcnt(0)")
        p4_compute(a)
    def h_obflag():
        a("s_waitcnt vmcnt(0)")
        a(f"s_lshl_b32 s60, s{S_T}, 4\ns_add_u32 s60, s60, s{S_NT}\ns_lshl_b32 s60, s60, 4\ns_add_u32 s60, s60, {FL_OB}")
        flag_set(a, "s60")
    def h_atom():
        cond(a, f"s_cmp_lg_u32 s{S_MODE}, 0", lambda: f1.b_atomics(a))
    def bar8():
        cond(a, f"s_cmp_lg_u32 s{S_KH}, 0", lambda: a("s_waitcnt vmcnt(0)"))
        a("s_barrier")
    def bar24():
        a("s_waitcnt vmcnt(0)")
        f3.wo_check(a)
        a("s_barrier")
    B1 = lambda p: (lambda: f3.p5_batch1(a, p))
    KD_ = lambda p: (lambda: kv_dma(a, p))
    both = {8: bar8, 24: bar24, 32: lambda: a("s_waitcnt vmcnt(0)\ns_barrier")}
    hlo = {1: KD_(1), 3: KD_(2), 5: lambda: f3.p5_setup(a),
           8: KD_(0), 10: lambda: flag_peek(a, KV_AD, 64, PKR), 12: lambda: p4_issue(a), 15: h_p4c,
           18: h_obflag, 21: lambda: f3.p5_misc(a), 24: B1(0), 25: B1(1), 26: lambda: (B1(2)(), f3.ob_peek(a)), 27: lambda: f3.wo_touch(a), 28: lambda: f3.p5_ob_issue(a)}
    hhi = {2: h_atom, 3: KD_(1), 4: KD_(2), 6: lambda: f3.p5_setup(a), 7: h_kvflag,
           8: lambda: f3.wo_issue(a), 9: KD_(0), 11: lambda: f3.wo_move(a), 12: lambda: f3.wo_store(a), 14: lambda: f3.wo_flag(a),
           20: lambda: f3.p5_misc(a), 22: lambda: f3.wo_peek(a), 25: B1(0), 26: B1(1), 27: lambda: (B1(2)(), f3.ob_peek(a)), 29: lambda: f3.p5_ob_issue(a)}
    def mk(rec):
        def f():
            if rec in both: both[rec]()
            if rec in hlo and rec in hhi:
                l1, l2 = a.newlabel("h"), a.newlabel("h")
                a(f"s_cmp_lg_u32 s{S_KH}, 0\ns_cbranch_scc1 {l1}")
                hlo[rec](); a(f"s_branch {l2}"); a.label(l1); hhi[rec](); a.label(l2)
            elif rec in hlo: cond(a, f"s_cmp_lg_u32 s{S_KH}, 0", hlo[rec])
            elif rec in hhi: cond(a, f"s_cmp_eq_u32 s{S_KH}, 0", hhi[rec])
        return f
    hooks = {r: mk(r) for r in set(both) | set(hlo) | set(hhi)}
    PR = eval(E('PR', '{3: 2, 5: 1, 7: 0, 8: 3, 15: 2, 20: 1, 23: 0, 24: 3, 27: 2, 29: 1, 31: 0}'))
    for t in range(32):
        for q in range(2):
            i = (2*t + q) & 3
            X, W, Y = S[i], S[(i-1) & 3], S[(i+2) & 3]
            p = t & 1
            pw, qw = (p, 0) if q == 1 else (1 - p, 1)
            ex = [f"v_exp_f32 v{X+e}, v{X+e}" for e in range(16)]
            a("\n".join(ex[0:2]))
            if t + q: a(f"v_smfmac_f32_32x32x32_bf16 {vr(O[qw],16)}, {vr(V[pw][1],4)}, {vr(W+8,8)}, v{IDX}")
            if q == 0:
                rec = t + 1
                if rec in RST: stamp2(a, RST[rec])
                if rec in hooks: hooks[rec]()
                if rec in PR: a(f"s_setprio {PR[rec]}")
                if rec < 32: G(a, rec)
            a("\n".join(ex[2:6]))
            if t < 31: a(f"v_mfma_f32_32x32x16_bf16 {vr(Y,16)}, {vr(K1[p],4)}, {vr(Q1[q],4)}, 0")
            a("\n".join(ex[6:10]))
            a(f"v_smfmac_f32_32x32x32_bf16 {vr(O[q],16)}, {vr(V[p][0],4)}, {vr(X,8)}, v{IDX}")
            a("\n".join(ex[10:14]))
            if t < 31: a(f"v_mfma_f32_32x32x8_bf16 {vr(Y,16)}, {vr(K2[p],2)}, {vr(Q2[q],2)}, {vr(Y,16)}")
            a("\n".join(ex[14:16]))
            if q == 1 and t < 31:
                a("s_waitcnt lgkmcnt(0)")
    stamp(a, 3)
    a(f"""
s_lshl_b32 s54, s{S_QP}, 12
s_mul_i32 s55, s{S_KH}, {HALF}
v_smfmac_f32_32x32x32_bf16 {vr(O[1],16)}, {vr(V[1][1],4)}, {vr(S[3]+8,8)}, v{IDX}
s_add_u32 s56, s54, s55
s_sub_u32 s55, {HALF}, s55
s_add_u32 s55, s55, s54
v_add_u32 v6, s56, v{L16}
v_add_u32 v7, s55, v{L16}
""")
    for q in range(2):
        a(f"v_add_f32 v{8+q}, |v{O[q]}|, |v{O[q]+1}|")
        for i in range(2, 12):
            a(f"v_add_f32 v{8+q}, v{8+q}, |v{O[q]+i}|")
    a(f"""
v_add_f32 v8, v8, v9
v_add_f32 v9, v{O[0]+12}, v{O[1]+12}
v_mov_b32 v10, 0x0c800000
v_fmac_f32 v9, v8, v10
v_mov_b32 v10, 0x4b000000
v_cmp_nle_f32 vcc, v9, v10
s_lshl_b32 s55, s{S_W}, 2
s_add_u32 s55, s55, {FLG}
v_mov_b32 v9, s55
s_cmp_eq_u32 s{S_KH}, 0
s_cbranch_scc1 L_at_m0
""")
    def send(o):
        for i in range(3):
            a(f"ds_write_b128 v6, {vr(o+4*i,4)} offset:{i*1024}")
        a(f"ds_write_b32 v6, v{o+12} offset:3072")
    send(O[0])
    a("s_waitcnt lgkmcnt(0)")
    for i in range(0, 14, 2):
        a(f"v_mov_b64 {vr(O[0]+i,2)}, {vr(O[1]+i,2)}")
    a("s_branch L_at_m1")
    a.label("L_at_m0")
    send(O[1])
    a.label("L_at_m1")
    a(f"""s_cmp_lg_u64 vcc, 0
s_cselect_b32 s54, 1, 0
v_mov_b32 v8, s54
ds_write_b32 v9, v8
v_mov_b32 v9, {FLG}
s_waitcnt lgkmcnt(0)
s_barrier
ds_read_b128 v[32:35], v9
ds_read_b128 v[8:11], v9 offset:16
ds_read_b32 v{S[0]+12}, v7 offset:3072""")
    for i in range(3):
        a(f"ds_read_b128 {vr(S[0]+4*i,4)}, v7 offset:{i*1024}")
    o = O[0]
    a(f"""s_waitcnt lgkmcnt(3)
v_or3_b32 v8, v8, v9, v10
v_or3_b32 v8, v8, v11, v32
v_or3_b32 v8, v8, v33, v34
v_or_b32 v8, v8, v35
v_add_f32 v{o+12}, v{o+12}, v{S[0]+12}
v_readfirstlane_b32 s54, v8
v_rcp_f32 v6, v{o+12}
s_andn2_b32 s54, s54, s{S_MODE}
s_cmp_eq_u32 s54, 0
s_waitcnt lgkmcnt(0)
s_cbranch_scc1 L_at_fin
s_mov_b32 s{S_MODE}, 1
s_barrier
""")
    attn_issue(a, False)
    max_init(a)
    a(f"s_mov_b32 s56, s{S_KVB}\ns_mov_b32 s57, 64")
    a.label("L_at_max")
    a("s_waitcnt vmcnt(0)")
    qk(a, 0)
    a("s_nop 7\ns_nop 3")
    max_acc(a)
    a(f"""
s_add_u32 s56, s56, 2560
buffer_load_dwordx4 {vr(K1[0],4)}, v{K16}, {q4(SRD_WS)}, s56 offen
buffer_load_dword v{K2[0]}, v{K8}, {q4(SRD_WS)}, s56 offen offset:1024
s_sub_u32 s57, s57, 1
s_cmp_lg_u32 s57, 0
s_cbranch_scc1 L_at_max
""")
    max_fin(a)
    qk(a, 1)
    o_zero(a)
    ones_addr(a)
    ones_write(a, 0xfff)
    a("s_waitcnt vmcnt(0) lgkmcnt(0)\ns_barrier")
    G(a, 0)
    a("s_branch L_at_go")
    a.label("L_at_fin")
    stamp(a, 4)
    for i in range(0, 12, 2):
        a(f"v_pk_add_f32 {vr(o+i,2)}, {vr(o+i,2)}, {vr(S[0]+i,2)}")
    a(f"s_add_u32 s58, s{S_QT}, s{S_KH}")
    out_store(a, o, 6, f"s{S_HEAD}", "s58", OAF)
```

```python
from asmlib import *
from layout import *
from f1 import VL, L16, VN, VH, flag_set, flag_wait, flag_peek, flag_check, nonce_get
if os.environ.get('RST'):
    def stamp(a, i): pass
SRD_WOA, SRD_WOB, SRD_OUT = SRD_X, SRD_WA, SRD_WB
S_MB, S_CT, S_T16 = 74, 75, 76
OL8 = 213
S_WOF = 73
GV = 221
OFB = 168
R1, R2, Z0, Z1 = 20608, 82432, 0, 61824
def lds_b(b): return R1 + 5120*b if b < 8 else R2 + 5120*(b-8) if b < 16 else R2 + 5120*(b-6)
def lds_a(b):
    if b < 2: return R2 + 5120*(8+b)
    if b < 6: return Z0 + 5120*(b-2)
    if b < 10: return Z1 + 5120*(b-6)
    if b < 18: return R1 + 5120*(b-10)
    return R2 + 5120*(b-18)
MB, LB = 40*1280, 160*1280

def p5_setup(a):
    a(f"""
s_load_dwordx2 s[54:55], s[0:1], 16
s_load_dwordx2 s[56:57], s[0:1], 48
s_load_dwordx2 s[58:59], s[0:1], 64
s_lshl_b32 s{S_MB}, s{S_XCD}, 2
s_and_b32 s60, s{S_J}, 3
s_add_u32 s{S_MB}, s{S_MB}, s60
s_lshr_b32 s{S_CT}, s{S_J}, 2
s_lshl_b32 s{S_T16}, s{S_MB}, 2
s_add_u32 s{S_T16}, s{S_T16}, s{S_TT}
s_mul_i32 s{S_WOF}, s{S_CT}, {40*5120}
s_add_u32 s{S_WOF}, s{S_WOF}, {WOF}
s_waitcnt lgkmcnt(0)
""")
    srd(a, SRD_WOA, 54, WO_BYTES); srd(a, SRD_WOB, 56, WO_BYTES); srd(a, SRD_OUT, 58, OUT_BYTES)

WSCR = 131072
def wo_sel(a, fn):
    lb = a.newlabel("wo")
    a(f"""s_sub_u32 s56, s{S_W}, 4
s_lshl_b32 s57, s56, 5
s_add_u32 s57, s57, s{S_MB}
s_cmp_ge_u32 s57, 40
s_cbranch_scc1 {lb}""")
    fn()
    a.label(lb)
def wo_issue(a):
    def f():
        l1, l2 = a.newlabel("wo"), a.newlabel("wo")
        a(f"""s_lshl_b32 s56, s56, 13
s_add_u32 s56, s56, {WSCR}
s_sub_u32 s58, s57, 20
s_cmp_ge_u32 s57, 20
s_cselect_b32 s58, s58, s57
s_sub_u32 s59, s58, 16
s_mul_i32 s59, s59, {LB}
s_add_u32 s59, s59, {16*1280}
s_mul_i32 s55, s58, {MB}
s_cmp_ge_u32 s58, 16
s_cselect_b32 s55, s59, s55
s_movk_i32 s59, {4*1280}
s_cselect_b32 s58, 0, s59
s_cselect_b32 s59, {20*1280}, s59
s_mul_i32 s54, s{S_CT}, 160
s_add_u32 s55, s55, s54
v_lshrrev_b32 v6, 4, v{VL}
v_mul_u32_u24 v6, 1280, v6
v_and_b32 v7, 15, v{VL}
v_min_u32 v7, 9, v7
v_lshl_add_u32 v6, v7, 4, v6
s_cmp_ge_u32 s57, 20
s_cbranch_scc1 {l1}""")
        for srd_, end in ((SRD_WOA, f"s_branch {l2}\n{l1}:"), (SRD_WOB, f"{l2}:")):
            for kq in range(8):
                i = (kq >> 1) + 4 * (kq & 1)
                a(f"s_add_u32 m0, s56, {i*1024}")
                a("s_add_u32 s55, s55, s58" if kq == 4 else "s_nop 0")
                a(f"buffer_load_dwordx4 v6, {q4(srd_)}, s55 offen lds")
                if kq < 7: a("s_add_u32 s55, s55, s59")
            a(end)
    wo_sel(a, f)
def wo_move(a):
    def f():
        a(f"""s_lshl_b32 s56, s56, 13
s_add_u32 s56, s56, {WSCR}
v_lshrrev_b32 v6, 2, v{VL}
v_and_b32 v7, 3, v{VL}
v_mul_u32_u24 v7, 40, v7
v_lshl_add_u32 v6, v6, 8, v7
v_add_u32 v6, s56, v6
s_waitcnt vmcnt(0)""")
        for t in range(5):
            for aa in range(2):
                a(f"ds_read_b64_tr_b16 {vr(168+4*t+2*aa,2)}, v6 offset:{aa*4096 + t*8}")
    wo_sel(a, f)
def wo_store(a):
    def f():
        a(f"""s_mul_i32 s55, s57, 5120
s_add_u32 s55, s55, s{S_WOF}
s_add_u32 s54, s55, 4096""")
        for t in range(5):
            a(f"buffer_store_dwordx4 {vr(168+4*t,4)}, v{L16}, {q4(SRD_WS)}, {'s55' if t < 4 else 's54'} offen offset:{(t&3)*1024} sc1")
    wo_sel(a, f)
def wo_flag(a):
    def f():
        a(f"""s_waitcnt vmcnt(0)
s_lshl_b32 s60, s{S_CT}, 6
s_add_u32 s60, s60, s57
s_lshl_b32 s60, s60, 4
s_add_u32 s60, s60, {FL_WO}""")
        flag_set(a, "s60")
    wo_sel(a, f)
WO_AD = f"s_lshl_b32 s60, s{S_CT}, 10\ns_add_u32 s60, s60, {FL_WO}"
OB_AD = f"s_lshr_b32 s60, s{S_T16}, 1\ns_lshl_b32 s60, s60, 8\ns_add_u32 s60, s60, {FL_OB}"
def only7(a, fn):
    lb = a.newlabel("w7")
    a(f"s_cmp_lg_u32 s{S_W}, 7\ns_cbranch_scc1 {lb}")
    fn()
    a.label(lb)
def wo_peek(a): only7(a, lambda: flag_peek(a, WO_AD, 40, 10))
def wo_check(a): only7(a, lambda: flag_check(a, WO_AD, 40, 10))
def ob_peek(a): flag_peek(a, OB_AD, 16, 10)
def wo_touch(a):
    lb = a.newlabel("wot")
    a(f"""s_cmp_ge_u32 s{S_W}, 3
s_cbranch_scc1 {lb}
s_and_b32 s54, s{S_MB}, 3
s_mul_i32 s54, s54, 3
s_add_u32 s54, s54, s{S_W}
s_mul_i32 s54, s54, {60*128}
s_add_u32 s54, s54, s{S_WOF}
s_add_u32 s54, s54, {2*5120}
v_min_u32 v6, 59, v{VL}
v_lshlrev_b32 v6, 7, v6
buffer_load_dword v11, v6, {q4(SRD_WS)}, s54 offen""")
    a.label(lb)

def blk_pieces(s_lds, s_blk, sg=60):
    out = []
    for i in range(5):
        pre = f"s_mul_i32 s{sg}, {s_blk}, 5120\ns_add_u32 s{sg}, s{sg}, s{S_WOF}\n" if i == 0 else ""
        mid = "s_nop 0" if i == 0 else f"s_add_u32 s{sg}, s{sg}, 1024"
        out.append(pre + f"s_add_u32 m0, {s_lds}, {i*1024}\n{mid}\nbuffer_load_dwordx4 v{L16}, {q4(SRD_WS)}, s{sg} offen lds")
    return out
def blk_dma(a, s_lds, s_blk):
    for p in blk_pieces(s_lds, s_blk): a(p)

def p5_batch1(a, part):
    a(f"s_mul_i32 s54, s{S_W}, 5120")
    lb = a.newlabel("b1")
    if part == 0:
        a(f"s_add_u32 s56, s54, {R1}\ns_add_u32 s55, s{S_W}, 20")
    elif part == 1:
        a(f"s_add_u32 s56, s54, {R2}\ns_add_u32 s55, s{S_W}, 28")
    else:
        a(f"""s_add_u32 s56, s54, {R2 + 8*5120}
s_add_u32 s55, s{S_W}, 34
s_cmp_lt_u32 s{S_W}, 2
s_cselect_b32 s55, s{S_W}, s55
s_cmp_ge_u32 s{S_W}, 6
s_cbranch_scc1 {lb}""")
    blk_dma(a, "s56", "s55")
    a.label(lb)

def o_load_list(base, dst):
    setup = f"""s_mul_i32 s54, s{S_T16}, 20480
s_lshl_b32 s55, s{S_FH}, 10
s_add_u32 s54, s54, s55
s_add_u32 s54, s54, {base}"""
    L = []
    for i in range(8):
        L.append(f"buffer_load_dwordx4 {vr(dst+4*i,4)}, v{L16}, {q4(SRD_WS)}, s54 offen offset:{(i&1)*2048} sc1" + ("\ns_add_u32 s54, s54, 4096" if i & 1 else ""))
    for i in range(8, 10):
        L.append("\n".join(f"buffer_load_dwordx2 {vr(dst+4*i+2*z,2)}, v{OL8}, {q4(SRD_WS)}, s54 offen offset:{(i&1)*2048 + 128*z} sc1" for z in range(2)))
    return setup, L
def o_loads(a, base, dst, n=10):
    setup, L = o_load_list(base, dst)
    a(setup)
    for x in L[:n]: a(x)

def p5_ob_issue(a):
    a("s_waitcnt vmcnt(0)")
    flag_check(a, OB_AD, 16, 10)
    o_loads(a, OBF, OFB)
    a(f"""s_lshl_b32 s54, s{S_T16}, 6
s_add_u32 s54, s54, {GATE}
v_and_b32 v6, 15, v{VL}
v_lshlrev_b32 v6, 2, v6
buffer_load_dword v{GV}, v6, {q4(SRD_WS)}, s54 offen sc1""")

OF = os.environ.get('OUTF', '')
GO2 = 159232 + 64
OUTA = 214
def p5_misc(a):
    a(f"""v_and_b32 v6, 15, v{VL}
s_lshl_b32 s54, s{S_T16}, 4
v_add_u32 v6, s54, v6
v_mul_u32_u24 v6, 1280, v6
v_lshrrev_b32 v7, 4, v{VL}
v_mul_u32_u24 v7, 40, v7
s_mul_i32 s54, s{S_CT}, 160
v_add3_u32 v{OUTA}, v6, v7, s54
v_lshrrev_b32 v6, 4, v{VL}
v_and_b32 v7, 15, v{VL}
v_lshlrev_b32 v7, 3, v7
v_lshl_add_u32 v{OL8}, v6, 8, v7
v_mov_b32 v6, {GO2}
v_mov_b32 v7, 0
ds_write_b32 v6, v7""")
    if os.environ.get("TLB"):
        a(f"s_mov_b64 exec, 1\nbuffer_load_dword v11, v{OUTA}, {q4(SRD_OUT)}, 0 offen\ns_mov_b64 exec, -1")

def gen_p5(a, s_qb_head_flag):
    P5ST = os.environ.get("P5ST")
    RB = 6
    ACA, ACB = 16, 36
    WF = [56, 76]
    OFA = 96
    PRE = [136, 156, 176, 222, 56, 76]
    NPRE = len(PRE)
    NA = int(os.environ.get('NA', '5'))
    PKI = int(os.environ.get('PKI', '7'))
    PUBI = int(os.environ.get('PUBI', '3'))
    o7 = lambda fn: only7(a, fn)
    a(f"""s_lshl_b32 s63, s{S_MB}, 10
s_add_u32 s63, s63, {FL_OA}
v_mov_b32 v9, {GO2}
s_barrier""")
    a(f"""s_mul_i32 s56, s{S_TT}, 5120
s_mul_i32 s57, s{S_FH}, {Z1}
s_add_u32 s56, s56, s57
s_add_u32 s59, s{S_W}, 2""")
    P2_ = blk_pieces("s56", "s59", 61)
    if P5ST == "2": stamp(a, 0)
    a(f"""
s_mul_i32 s57, s{S_FH}, 5120
v_add_u32 v{RB}, s57, v{L16}
v_add_u32 v{RB+1}, 57344, v{RB}
v_add_u32 v{RB+2}, 114688, v{RB}
""")
    def reads(addr, dst):
        k = addr // 57344
        for t in range(5):
            a(f"ds_read_b128 {vr(dst+4*t,4)}, v{RB+k} offset:{addr - k*57344 + t*1024}")
    def mm(acc, wf, of, first):
        for t in range(5):
            a(f"v_mfma_f32_16x16x32_bf16 {vr(acc+4*t,4)}, {vr(wf+4*t,4)}, {vr(of,4)}, {'0' if first else vr(acc+4*t,4)}")
    def partb(i0, i1, pre=None, post=None):
        reads(lds_b(2*i0), WF[i0 & 1])
        for i in range(i0, i1):
            if i + 1 < i1:
                reads(lds_b(2*i+2), WF[(i+1) & 1])
                a("s_waitcnt lgkmcnt(5)")
            else:
                a("s_waitcnt lgkmcnt(0)")
            if pre: pre(i)
            mm(ACB, WF[i & 1], OFB + 4*i, i == 0)
            if post: post(i)
    def pub(i):
        if i == PUBI:
            a(f"s_waitcnt vmcnt({PUBI})")
            flag_set(a, s_qb_head_flag)
            stamp(a, 5)
    partb(0, 5, pub, lambda i: a(P2_[i]))
    def chk():
        lb = a.newlabel("pk")
        a(f"""s_waitcnt vmcnt(0)
v_cmp_ne_u32 vcc, s{S_NONCE}, v12
v_mov_b32 v12, s{S_NONCE}
s_nop 2
s_cmp_lg_u64 vcc, 0
s_cbranch_scc1 {lb}
ds_write_b32 v9, v12
s_waitcnt lgkmcnt(0)""")
        a.label(lb)
    if P5ST == "2": stamp(a, 1)
    a("s_barrier")
    a(f"""s_mul_i32 s56, s{S_W}, 5120
s_add_u32 s56, s56, {R1}
s_add_u32 s55, s{S_W}, 10
s_add_u32 s57, s56, {R2 - R1}
s_add_u32 s59, s55, 8""")
    P3_, P4_ = blk_pieces("s56", "s55", 61), blk_pieces("s57", "s59", 54)
    def post3(i):
        for j in ([0, 1], [2, 3], [4], [], [])[i - 5]:
            a(P3_[j])
            lb = a.newlabel("b3")
            a(f"s_cmp_ge_u32 s{S_W}, 2\ns_cbranch_scc1 {lb}")
            a(P4_[j])
            a.label(lb)
    if P5ST == "2": stamp(a, 2)
    def peek(i):
        if i == PKI: o7(lambda: a(f"buffer_load_dword v12, v{L16}, {q4(SRD_WS)}, s63 offen sc0 sc1"))
    partb(5, 10, peek, post3)
    if P5ST: stamp(a, 3)
    o7(chk)
    a(f"""s_waitcnt vmcnt(0)
s_barrier
ds_read_b32 v12, v9
s_waitcnt lgkmcnt(0)
v_readfirstlane_b32 s58, v12
s_cmp_lg_u32 s58, s{S_NONCE}
s_cbranch_scc1 L_p5_late""")
    reads(lds_a(0), PRE[0]); reads(lds_a(2), PRE[1])
    o_loads(a, OAF, OFA, NA)
    for i in range(2, NPRE):
        reads(lds_a(2*i), PRE[i])
    a("s_branch L_p5_go")
    a.label("L_p5_late")
    for i in range(NPRE):
        reads(lds_a(2*i), PRE[i])
    def poll():
        flag_wait(a, "s63", 64, sleep=1)
        a(f"v_mov_b32 v12, s{S_NONCE}\nds_write_b32 v9, v12")
    o7(poll)
    a(f"""s_mov_b32 s62, 0x4000000
L_p5_spin:
ds_read_b32 v12, v9
s_waitcnt lgkmcnt(0)
v_readfirstlane_b32 s58, v12
s_cmp_eq_u32 s58, s{S_NONCE}
s_cbranch_scc1 L_p5_ld
s_sub_u32 s62, s62, 1
s_cmp_lg_u32 s62, 0
s_cbranch_scc1 L_p5_spin
L_p5_ld:""")
    o_loads(a, OAF, OFA, NA)
    a.label("L_p5_go")
    stamp(a, 6)
    LA_ = o_load_list(OAF, OFA)[1]
    cnt = lambda j: 1 if j < 8 else 2
    for i in range(10):
        later = sum(5 for j in range(i + 1, min(10, i + NPRE)))
        a(f"s_waitcnt vmcnt({sum(cnt(j) for j in range(i + 1, min(10, i + NA)))}) lgkmcnt({min(15, later)})")
        if P5ST == "1" and i in (0, 4, 9): stamp(a, (0, 4, 9).index(i))
        mm(ACA, PRE[i % NPRE], OFA + 4*i, i == 0)
        if i + NA < 10: a(LA_[i + NA])
        if i + NPRE < 10: reads(lds_a(2*(i + NPRE)), PRE[i % NPRE])
    a(f"""
s_mul_i32 s54, s{S_TT}, 5120
s_add_u32 s54, s54, {R2 + 2*5120}
v_add_u32 v9, s54, v{L16}
v_mov_b32 v10, v{GV}
v_mov_b32 v11, v{GV}
s_nop 2
""")
    for i in range(0, 20, 2):
        a(f"v_pk_fma_f32 {vr(ACB+i,2)}, {vr(ACA+i,2)}, v[10:11], {vr(ACB+i,2)}")
    def fin(send, keep, off):
        for i in send:
            a(f"ds_write_b128 v9, {vr(ACB+4*i,4)} offset:{i*1024}")
        a("s_waitcnt lgkmcnt(0)\ns_barrier")
        for i in keep:
            a(f"ds_read_b128 {vr(ACA+4*i,4)}, v9 offset:{i*1024}")
        a("s_waitcnt lgkmcnt(0)")
        r0 = 4*keep[0]
        for i in range(r0, r0 + 4*len(keep), 2):
            a(f"v_pk_add_f32 {vr(ACB+i,2)}, {vr(ACB+i,2)}, {vr(ACA+i,2)}")
        for e in range(2*len(keep)):
            a(f"v_cvt_pk_bf16_f32 v{ACA+e}, v{ACB+r0+2*e}, v{ACB+r0+2*e+1}")
        a(f"buffer_store_dwordx4 {vr(ACA,4)}, v{OUTA}, {q4(SRD_OUT)}, 0 offen offset:{off}")
        if len(keep) == 3: a(f"buffer_store_dwordx2 {vr(ACA+4,2)}, v{OUTA}, {q4(SRD_OUT)}, 0 offen offset:16")
    a(f"s_cmp_eq_u32 s{S_FH}, 0\ns_cbranch_scc1 L_p5_lo")
    fin([0, 1, 2], [3, 4], 24)
    a("s_branch L_p5_end")
    a.label("L_p5_lo")
    fin([3, 4], [0, 1, 2], 0)
    a.label("L_p5_end")
```

```python
import sys
from asmlib import *
from layout import *
import f1, f2, f3
NAME = "gated_mix__mha_block__linear_kernel_hedgehog__prompt"
def load_srds(a, which):
    tab = [(SRD_PHI, 40, WPHI_BYTES), (SRD_WB, 32, WQKV_BYTES), (SRD_X, 0, X_BYTES), (SRD_WA, 8, WQKV_BYTES), (SRD_GATE, 56, GATEW_BYTES), (SRD_WS, 80, WS_BYTES), (SRD_DBG, 72, 256)]
    if os.environ.get("CPF0"): f1.code_prefetch0(a, int(os.environ["CPF0"]))
    for d, off, n in tab:
        a(f"s_load_dwordx2 s[{d}:{d+1}], s[0:1], {off}")
    for d, off, n in tab:
        a(f"s_mov_b32 s{d+2}, {hex(n)}\ns_mov_b32 s{d+3}, 0x20000")
    f1.common_init(a)
def build(mode):
    ref = open(f"cdna_kernels/{NAME}.s.ref").read().split("\n")
    head = [l for l in ref if l.startswith(";") and "@launch" not in l and "Override launch" not in l and "grid=ceil" not in l]
    a = Asm()
    for l in head: a.raw(l)
    kernels = []
    a.raw(f"; @launch grid=(256,1,1) block=(512,1,1) lds=163840")
    a.raw('.amdgcn_target "amdgcn-amd-amdhsa--gfx950"\n.text')
    kn = NAME + "_kernel"
    kernel_begin(a, kn)
    a("s_cmp_ge_u32 s2, 256\ns_cbranch_scc1 L_end1")
    stamp_init(a); stamp(a, 0)
    load_srds(a, 0)
    f1.set_fill(lambda t: (f2.attn_scalars(t), f2.go_init(t), f2.qkv_addr(t)), 54, 60)
    f1.set_fill(f2.static_setup, 60, 72)
    f1.set_fill(lambda t: (f1.b_addr(t), f2.ones_addr(t)), 73, 80)
    PK = int(os.environ.get("PEEK", "72"))
    f1.set_block(f2.qkv_peek, PK); f1.set_block(f2.qkv_check, 78)
    f1.gen_p12(a, {}); f2.gen_attn(a)
    a(f"s_lshr_b32 s77, s{f2.S_QT}, 1\ns_lshl_b32 s77, s77, 5\ns_add_u32 s77, s77, s{f2.S_HEAD}\ns_lshl_b32 s77, s77, 1\ns_add_u32 s77, s77, s{S_FH}\ns_lshl_b32 s77, s77, 4\ns_add_u32 s77, s77, {FL_OA}")
    f3.gen_p5(a, "s77")
    f1.nonce_clear(a)
    stamp_flush(a, 1, S_W, 8)
    a.label("L_end1"); a("s_endpgm")
    kernels = [(kn, 256)]
    a.raw('.section .rodata,"a"')
    for n, v in kernels:
        a.raw(kernel_desc(n, v, 102))
    return a.text()
if __name__ == "__main__":
    out = sys.argv[2] if len(sys.argv) > 2 else f"cdna_kernels/{NAME}.s"
    open(out, "w").write(build(sys.argv[1]))
```
